```python
import torch

def _softmax(x, axis=-1):
    return torch.softmax(x, dim=axis)
def _gelu(x):
    return torch.nn.functional.gelu(x, approximate="tanh")
def _silu(x):
    return torch.nn.functional.silu(x)
def _sigmoid(x):
    return torch.sigmoid(x)
def _layernorm(x, axis=-1, eps=1e-5):
    m = x.mean(dim=axis, keepdim=True)
    v = x.var(dim=axis, keepdim=True, unbiased=False)
    return (x - m) / torch.sqrt(v + eps)
def _scatter_add(tgt, idx, src, axis=0):
    return tgt.clone().index_add_(axis, idx, src)
def _segment_sum(src, seg, n):
    out = torch.zeros((n,) + src.shape[1:], dtype=src.dtype)
    return out.index_add_(0, seg, src)
def _pad(x, pw):
    flat = tuple(v for pair in reversed(pw) for v in pair)
    return torch.nn.functional.pad(x, flat)

kernel_name = 'gated_mix__mha_block__mixer_s_mlp__prompt'

def setup_inputs():

    _w = (lambda a: (lambda t: t.to(torch.bfloat16) if t.is_floating_point() else t)(torch.as_tensor(a)))
    def _A_setup():
        B, S, D, H = 1, 2048, 1024, 32
        return {
            "x": _w((lambda *s: torch.randn(*s, dtype=torch.bfloat16) * 0.1)(B, S, D)),
            "wqkv": _w((lambda *s: torch.randn(*s, dtype=torch.bfloat16) * 0.4)(D, 3 * D)),
            "wo": _w((lambda *s: torch.randn(*s, dtype=torch.bfloat16) * 0.4)(D, D)),
        }
    _A_in = _A_setup()

    def _B_setup():
        B, S, D, F = 1, 2048, 1024, 3584
        return {
            "x":  _w((lambda *s: torch.randn(*s, dtype=torch.bfloat16) * 0.1)(B, S, D)),
            "w1": _w((lambda *s: torch.randn(*s, dtype=torch.bfloat16) * 3.2)(D, D) * (D ** -0.5)),
            "w2": _w((lambda *s: torch.randn(*s, dtype=torch.bfloat16) * 3.2)(D, D) * (D ** -0.5)),
            "w3": _w((lambda *s: torch.randn(*s, dtype=torch.bfloat16) * 3.2)(D, F) * (D ** -0.5)),
            "w4": _w((lambda *s: torch.randn(*s, dtype=torch.bfloat16) * 3.2)(F, D) * (F ** -0.5)),
        }
    _B_in = _B_setup()

    return {
        "A_x": _A_in["x"],
        "A_wqkv": _A_in["wqkv"],
        "A_wo": _A_in["wo"],
        "B_x": _B_in["x"],
        "B_w1": _B_in["w1"],
        "B_w2": _B_in["w2"],
        "B_w3": _B_in["w3"],
        "B_w4": _B_in["w4"],
        "gate_w": _w((lambda *s: torch.randn(*s, dtype=torch.bfloat16) * 0.4)(1024) * 16.0),
    }

def reference(A_x, A_wqkv, A_wo, B_x, B_w1, B_w2, B_w3, B_w4, gate_w):
    def _A_ref(x, wqkv, wo):
        B, S, D = x.shape
        H = 32
        Dh = D // H
        qkv = (lambda x, *d: x.permute(*d))((x @ wqkv).reshape(B, S, 3, H, Dh), 2, 0, 3, 1, 4)
        q, k, v = qkv[0], qkv[1], qkv[2]
        scores = torch.einsum("bhqd,bhkd->bhqk", q, k) * (Dh ** -0.5)
        p = _softmax(scores, axis=-1)
        o = torch.einsum("bhqk,bhkd->bhqd", p, v)
        return (lambda x, *d: x.permute(*d))(o, 0, 2, 1, 3).reshape(B, S, D) @ wo

    def _B_ref(x, w1, w2, w3, w4):
        B, S, D = x.shape
        h = _gelu(_layernorm(x, axis=-1) @ w1)
        c = D // 4
        g0 = _pad(h[:, :, 0*c:1*c], ((0, 0), (1, 0), (0, 0)))[:, :S, :]
        g1 = _pad(h[:, :, 1*c:2*c], ((0, 0), (0, 1), (0, 0)))[:, 1:, :]
        g2 = _pad(h[:, :, 2*c:3*c], ((0, 0), (2, 0), (0, 0)))[:, :S, :]
        g3 = _pad(h[:, :, 3*c:   ], ((0, 0), (0, 2), (0, 0)))[:, 2:, :]
        hs = torch.concatenate([g0, g1, g2, g3], axis=-1) @ w2
        x1 = x + hs
        h2 = _gelu(_layernorm(x1, axis=-1) @ w3) @ w4
        return x1 + h2

    x = A_x
    g = _sigmoid((x * gate_w).sum(-1, keepdims=True))
    a = _A_ref(x, A_wqkv, A_wo)
    b = _B_ref(x, B_w1, B_w2, B_w3, B_w4)
    return g * a + (1 - g) * b
```

```python
class Asm:
    def __init__(self):
        self.lines = []
        self.lgkm = []
        self.vm = []
        self.uid = 0

    def __call__(self, s):
        for ln in s.strip("\n").split("\n"):
            self.lines.append("    " + ln.strip())

    def label(self, name):
        self.lines.append(name + ":")

    def comment(self, s):
        self.lines.append("    ; " + s)

    def newlabel(self, base):
        self.uid += 1
        return f"L_{base}_{self.uid}"

    def ds(self, s, tag=None):
        self(s)
        self.lgkm.append(tag)

    def vmem(self, s, tag=None):
        if s.rstrip().endswith(" lds") and self.lines and " m0," in self.lines[-1]:
            self("s_nop 0")
        self(s)
        self.vm.append(tag)

    def _need(self, q, tags):
        idx = -1
        for i, t in enumerate(q):
            if t in tags:
                idx = i
        if idx < 0:
            return None
        return len(q) - 1 - idx

    def wait_lgkm(self, *tags):
        n = self._need(self.lgkm, tags)
        if n is None:
            return
        n = min(n, 15)
        self(f"s_waitcnt lgkmcnt({n})")
        self.lgkm = self.lgkm[len(self.lgkm) - n:] if n else []

    def wait_vm(self, *tags):
        n = self._need(self.vm, tags)
        if n is None:
            return
        n = min(n, 63)
        self(f"s_waitcnt vmcnt({n})")
        self.vm = self.vm[len(self.vm) - n:] if n else []

    def wait_all(self, vm=True, lgkm=True):
        parts = []
        if vm:
            parts.append("vmcnt(0)"); self.vm = []
        if lgkm:
            parts.append("lgkmcnt(0)"); self.lgkm = []
        self("s_waitcnt " + " ".join(parts))

    def text(self):
        return "\n".join(self.lines) + "\n"


def kernel_header(name):
    return f""".globl {name}
.p2align 8
.type {name},@function
{name}:
"""

def kernel_desc(name, vgpr, sgpr=102, accum=None):
    if accum is None:
        accum = min(256, (vgpr + 3) // 4 * 4)
    return f""".p2align 6
.amdhsa_kernel {name}
  .amdhsa_next_free_vgpr {vgpr}
  .amdhsa_next_free_sgpr {sgpr}
  .amdhsa_accum_offset {accum}
  .amdhsa_group_segment_fixed_size 0
  .amdhsa_kernarg_size 96
  .amdhsa_user_sgpr_count 2
  .amdhsa_user_sgpr_kernarg_segment_ptr 1
  .amdhsa_system_sgpr_workgroup_id_x 1
.end_amdhsa_kernel
"""

def interleave(main, fill):
    out = []
    n = len(main)
    j = 0
    for i, m in enumerate(main):
        out.append(m)
        tgt = (len(fill) * (i + 1) + n - 1) // n
        while j < tgt and j < len(fill):
            out.append(fill[j]); j += 1
    out += fill[j:]
    return out
```

```python
from asmlib import *
import os
LDF = os.environ.get('LDFLAG', '')
S_SRDX = 8; S_SRDW = 12
S_SRDL = 96
S_LOFF = 24
S_LOFF2 = 25
S_SLOT = 26; S_DELTA = 27; S_CNT = 28
S_M0B = 29
S_GSTR = 30
S_LSTEP = 31
S_TMP = 32
V_LD = 4
V_PFD = 8
V_XRD = 10
V_WRD = 12
V_WF = 32; V_ACC = 64; V_XF = 128
SLOT = 49152
PFD = int(os.environ.get("PFD", "6"))

def xf(buf, tt, ks): return V_XF + 32 * buf + 8 * tt + 4 * ks
def wf(c, ks): return V_WF + 8 * c + 4 * ks
def acc(tt, c): return V_ACC + 4 * (4 * c + tt)

class Core16:
    def __init__(self, a, xmode, swap=False, nsteps=16, tag="", role="L"):
        self.a = a; self.xmode = xmode; self.swap = swap; self.nsteps = nsteps; self.tag = tag; self.role = role

    def dma_ops(self, stage):
        a = self.a
        if self.role == "P":
            return [lambda: a.vmem(f"buffer_load_dword v{V_PFD}, v{V_LD}, s[{S_SRDL}:{S_SRDL+3}], s{S_LOFF} offen", "pf"),
                    lambda: a(f"s_add_u32 s{S_LOFF}, s{S_LOFF}, s{S_LSTEP}")]
        if self.role == "S":
            xstep = 128 if self.xmode == "row" else 4096
            ops = [lambda: a(f"s_add_u32 m0, s{S_SLOT}, s{S_M0B}")]
            for j in range(4):
                v = V_LD + (j if self.xmode == "row" else 0)
                ops.append(lambda j=j, v=v: a.vmem(f"buffer_load_dwordx4 v{v}, s[{S_SRDX}:{S_SRDX+3}], s{S_LOFF} offen offset:{1024*j} {LDF}lds", ("st", stage)))
            ops.append(lambda: a(f"s_add_u32 m0, s{S_SLOT}, s{S_GSTR}"))
            for j in range(2):
                ops.append(lambda j=j: a.vmem(f"buffer_load_dwordx4 v{8+j}, s[{S_SRDW}:{S_SRDW+3}], s{S_LOFF2} offen offset:{1024*j} {LDF}lds", ("st", stage)))
            ops.append(lambda: a(f"s_add_u32 s{S_LOFF}, s{S_LOFF}, {xstep}"))
            ops.append(lambda: a(f"s_add_u32 s{S_LOFF2}, s{S_LOFF2}, s{S_LSTEP}"))
            return ops
        ops = [lambda: a(f"s_add_u32 m0, s{S_SLOT}, s{S_M0B}"),
               lambda: a(f"s_add_u32 s{S_LOFF2}, s{S_LOFF}, s{S_GSTR}")]
        for g in range(2):
            if g: ops.append(lambda: a("s_add_u32 m0, m0, 4096"))
            for j in range(4):
                ops.append(lambda j=j, g=g: a.vmem(f"buffer_load_dwordx4 v{V_LD+j}, s[{S_SRDL}:{S_SRDL+3}], s{S_LOFF2 if g else S_LOFF} offen offset:{1024*j} {LDF}lds", ("st", stage)))
        ops.append(lambda: a(f"s_add_u32 s{S_LOFF}, s{S_LOFF}, s{S_LSTEP}"))
        return ops

    def xr(self, buf, tt, ks):
        a = self.a
        d = xf(buf, tt, ks)
        if self.xmode == "row":
            return lambda: a.ds(f"ds_read_b128 v[{d}:{d+3}], v{V_XRD+ks} offset:{2048*tt}", ("x", buf, tt, ks))
        return lambda: a.ds(f"ds_read_b128 v[{d}:{d+3}], v{V_XRD} offset:{2048*tt+1024*ks}", ("x", buf, tt, ks))

    def wr(self, c, ks, r):
        a = self.a
        off = 8192 * ks + (1024 * r if self.xmode == "row" else 4096 * r)
        d = wf(c, ks) + 2 * r
        return lambda: a.ds(f"ds_read_b64_tr_b16 v[{d}:{d+1}], v{V_WRD+c} offset:{off}", ("w", c, ks))

    def reads(self, buf):
        o = [self.xr(buf, 0, 0), self.wr(0, 0, 0), self.wr(0, 0, 1), self.xr(buf, 0, 1), self.wr(0, 1, 0), self.wr(0, 1, 1)]
        for tt in range(1, 4):
            o += [self.xr(buf, tt, 0), self.xr(buf, tt, 1)]
        for c in range(1, 4):
            o += [self.wr(c, 0, 0), self.wr(c, 0, 1), self.wr(c, 1, 0), self.wr(c, 1, 1)]
        return o

    def group(self, buf, c, first=False):
        a = self.a
        ops = []
        for tt in range(4):
            for ks in range(2):
                def f(tt=tt, ks=ks):
                    a.wait_lgkm(("x", buf, tt, ks), ("w", c, ks))
                    A, B = wf(c, ks), xf(buf, tt, ks)
                    if self.swap: A, B = B, A
                    d = acc(tt, c)
                    cc = "0" if (first and ks == 0) else f"v[{d}:{d+3}]"
                    a(f"v_mfma_f32_16x16x32_bf16 v[{d}:{d+3}], v[{A}:{A+3}], v[{B}:{B+3}], {cc}")
                ops.append(f)
        return ops

    def bump_ops(self):
        a = self.a
        n = 2 if self.xmode == "row" else 1
        ops = [lambda i=i: a(f"v_add_u32 v{V_XRD+i}, s{S_DELTA}, v{V_XRD+i}") for i in range(n)]
        ops += [lambda i=i: a(f"v_add_u32 v{V_WRD+i}, s{S_DELTA}, v{V_WRD+i}") for i in range(4)]
        return ops

    def period(self, s, dma, last=False, extra=None, loop_tail=None, spread=None, prebar=None):
        a = self.a
        first = (s == 0)
        buf = s % 2
        sl = [[] for _ in range(33)]
        rd = self.reads(buf)
        if first:
            for i, o in enumerate(rd): sl[16 if i < 12 else 16 + (i - 11)].append(o)
        else:
            for i, o in enumerate(rd): sl[i + 1].append(o)
        if dma:
            d = self.dma_ops(s + 2)
            if self.role == "P": pos = [16 if first else 2] * 2
            elif self.role == "S": pos = [16] * 10 if first else [0, 2, 7, 12, 17, 21, 22, 27, 28, 28]
            else: pos = [16] * 12 if first else [0, 0, 1, 4, 8, 11, 13, 15, 18, 22, 25, 26]
            for p, o in zip(pos, d): sl[p].append(o)
        adv = [lambda: a(f"s_add_u32 s{S_SLOT}, s{S_SLOT}, {SLOT}"),
               lambda: a(f"s_cmp_eq_u32 s{S_SLOT}, {3*SLOT}"),
               lambda: a(f"s_cselect_b32 s{S_SLOT}, 0, s{S_SLOT}"),
               lambda: a(f"s_cmp_eq_u32 s{S_SLOT}, {2*SLOT}"),
               lambda: a(f"s_cselect_b32 s{S_DELTA}, s{S_TMP}, s{S_TMP+1}")]
        if not last:
            sl[29] += adv
            b = self.bump_ops()
            sl[30] += b[:3]; sl[31] += b[3:]
        if loop_tail: sl[31] += loop_tail
        for k, v in (extra or {}).items(): sl[k] += v
        if spread:
            lo = 17 if first else 1
            n = len(spread)
            for i, o in enumerate(spread): sl[lo + (i * (28 - lo)) // n].append(o)
        mf = self.group(1 - buf, 2, first=(s == 1)) + self.group(1 - buf, 3, first=(s == 1)) + self.group(buf, 0, first) + self.group(buf, 1, first)
        for i in range(33):
            for o in sl[i]: o()
            if i < 32 and not (first and i < 16): mf[i]()
        if not last:
            n = a._need(a.vm, [("st", s + 1)] + list(prebar or []))
            if n is None:
                a.wait_all(vm=False)
            else:
                a(f"s_waitcnt vmcnt({n}) lgkmcnt(0)")
                a.vm = a.vm[len(a.vm) - n:] if n else []
                a.lgkm = []
            a("s_barrier")

    def prologue_dma(self):
        a = self.a
        if self.role == "P":
            a(f"s_lshl_b32 s{S_TMP}, s{S_LSTEP}, 1")
            a(f"s_add_u32 s{S_LOFF}, s{S_LOFF}, s{S_TMP}")
            for st in range(PFD):
                for o in self.dma_ops(0): o()
            a(f"s_mov_b32 s{S_SLOT}, {2*SLOT}")
            return
        for st in (0, 1):
            for o in self.dma_ops(st): o()
            a(f"s_add_u32 s{S_SLOT}, s{S_SLOT}, {SLOT}")

    def mainloop(self, hooks=None, npeel=2):
        a = self.a
        hooks = hooks or {}
        N = self.nsteps
        L = self.role != "P"
        ND = 6 if self.role == "S" else 8
        assert N % 2 == 0 and npeel % 2 == 0 and N >= npeel + 4
        a(f"s_mov_b32 s{S_TMP}, {(-2*SLOT) & 0xffffffff}")
        a(f"s_mov_b32 s{S_TMP+1}, {SLOT}")
        a.wait_vm(("st", 0))
        a("s_barrier")
        if "start" in hooks: hooks["start"]()
        for s in range(npeel):
            self.period(s, dma=True, spread=(hooks[f"spread{s}"]() if f"spread{s}" in hooks else None), prebar=hooks.get(f"prebar{s}"))
            if f"after{s}" in hooks: hooks[f"after{s}"]()
        lab = a.newlabel("loop" + self.tag + self.role)
        a(f"s_mov_b32 s{S_CNT}, {(N-2-npeel)//2}")
        a.vm = [("st", 3)] * ND if L else []
        a.lgkm = []
        a.lines.append(".p2align 6")
        a.label(lab)
        self.period(2, dma=True)
        lt = [lambda: a(f"s_sub_u32 s{S_CNT}, s{S_CNT}, 1"), lambda: a(f"s_cmp_lg_u32 s{S_CNT}, 0")]
        self.period(3, dma=True, loop_tail=lt)
        if L: assert a.vm == [("st", 5)] * ND, a.vm
        a(f"s_cbranch_scc1 {lab}")
        a.vm = [("st", N - 1)] * ND if L else []
        if "pre_tail" in hooks: hooks["pre_tail"]()
        self.period(N - 2, dma=False, extra=({32: [hooks["pre_last"]]} if "pre_last" in hooks else None),
                    spread=(hooks["spreadN2"]() if "spreadN2" in hooks else None))
        self.period(N - 1, dma=False, last=True, extra=({0: [hooks["last_start"]]} if "last_start" in hooks else None),
                    spread=(hooks["spreadN1"]() if "spreadN1" in hooks else None))
        for o in self.group((N - 1) % 2, 2) + self.group((N - 1) % 2, 3): o()

def read_addr_setup16(a, xmode):
    a("v_bfe_u32 v17, v1, 2, 2")
    if xmode == "row":
        a("v_lshl_add_u32 v18, v3, 3, v17")
        a("v_and_b32 v19, 1, v3")
        a("v_lshl_add_u32 v19, v19, 2, v17")
    else:
        a("v_lshl_add_u32 v18, v3, 2, v17")
        a("v_and_b32 v19, 7, v18")
    a("s_lshl_b32 s33, s22, 2")
    a("v_xor_b32 v19, s33, v19")
    a("v_lshlrev_b32 v18, 8, v18")
    a("v_lshl_add_u32 v18, v19, 5, v18")
    a("v_and_b32 v20, 3, v1")
    a("v_lshl_add_u32 v18, v20, 3, v18")
    a(f"v_add_u32 v{V_WRD}, 32768, v18")
    for c in range(1, 4): a(f"v_xor_b32 v{V_WRD+c}, {c << 5}, v{V_WRD}")
    if xmode == "row":
        a("s_lshl_b32 s33, s21, 6")
        a("v_add_u32 v16, s33, v2")
        a("v_lshlrev_b32 v16, 7, v16")
        a("v_lshrrev_b32 v17, 1, v2")
        a("v_xor_b32 v17, v17, v3")
        a(f"v_lshl_add_u32 v{V_XRD}, v17, 4, v16")
        a(f"v_xor_b32 v{V_XRD+1}, 64, v{V_XRD}")
    else:
        a("s_lshl_b32 s33, s21, 13")
        a("v_lshlrev_b32 v16, 4, v1")
        a(f"v_add_u32 v{V_XRD}, s33, v16")
    a(f"s_mov_b32 s{S_SLOT}, 0")

def loader_setup16(a, xmode, s_ldw, s_col0b, s_xbase, kd, pf, uniq):
    a("s_cmp_ge_u32 s20, 6")
    a(f"s_cbranch_scc1 L_ldP_{uniq}")
    a("s_cmp_ge_u32 s20, 4")
    a(f"s_cbranch_scc1 L_ldW_{uniq}")
    a("s_mov_b32 s34, 0")
    a(f"s_lshl_b32 s{S_M0B}, s20, 13")
    a(f"s_mov_b32 s{S_LOFF}, 0")
    if xmode == "row":
        a("v_lshrrev_b32 v16, 3, v1")
        a("s_lshl_b32 s33, s20, 6")
        a(f"s_add_u32 s33, s33, s{s_xbase}")
        a("v_add_u32 v16, s33, v16")
        a("v_lshlrev_b32 v16, 11, v16")
        a("v_and_b32 v17, 7, v1")
        a("v_xor_b32 v17, v17, v3")
        a("v_xor_b32 v18, 4, v17")
        a("v_lshl_add_u32 v17, v17, 4, v16")
        a("v_lshl_add_u32 v18, v18, 4, v16")
        for j in range(4):
            a(f"v_add_u32 v{V_LD+j}, {4096 + j*8*2048 - j*1024}, v{17 if j % 2 == 0 else 18}")
        a(f"s_mov_b32 s{S_GSTR}, {32*2048}")
        a(f"s_movk_i32 s{S_LSTEP}, 128")
    else:
        a("s_lshl_b32 s33, s20, 1")
        a(f"s_add_u32 s33, s33, s{s_xbase}")
        a(f"s_mul_i32 s33, s33, {kd*64}")
        a("v_lshlrev_b32 v16, 4, v1")
        for j in range(4): a(f"v_add_u32 v{V_LD+j}, s33, v16")
        a(f"s_mov_b32 s{S_GSTR}, {kd*64}")
        a(f"s_movk_i32 s{S_LSTEP}, 4096")
    a(f"s_branch L_ldE_{uniq}")
    a.label(f"L_ldW_{uniq}")
    a("s_mov_b32 s34, 1")
    a("s_sub_u32 s33, s20, 4")
    a(f"s_lshl_b32 s{S_M0B}, s33, 13")
    a(f"s_add_u32 s{S_M0B}, s{S_M0B}, 32768")
    a(f"s_mov_b32 s{S_LOFF}, 0")
    a("s_lshl_b32 s33, s33, 5")
    a("v_add_u32 v16, s33, v3")
    a(f"v_mul_lo_u32 v16, v16, s{s_ldw}")
    a(f"v_add_u32 v16, s{s_col0b}, v16")
    a("v_lshlrev_b32 v17, 1, v3")
    a("v_xor_b32 v17, v2, v17")
    a("v_xor_b32 v18, 8, v17")
    a("v_lshl_add_u32 v17, v17, 4, v16")
    a("v_lshl_add_u32 v18, v18, 4, v16")
    a(f"s_lshl_b32 s33, s{s_ldw}, 2")
    a("s_sub_u32 s33, s33, 1024")
    for j in range(4):
        bit = ((j >> 1) & 1) if xmode == "row" else (j & 1)
        src = 18 if bit else 17
        if j == 0: a(f"v_mov_b32 v{V_LD}, v{src}")
        else:
            a(f"s_mul_i32 s{S_GSTR}, s33, {j}")
            a(f"v_add_u32 v{V_LD+j}, s{S_GSTR}, v{src}")
    a(f"s_lshl_b32 s{S_GSTR}, s{s_ldw}, 4")
    a(f"s_lshl_b32 s{S_LSTEP}, s{s_ldw}, 6")
    a(f"s_branch L_ldE_{uniq}")
    a.label(f"L_ldP_{uniq}")
    for j in range(1, 4): a(f"v_mov_b32 v{V_LD+j}, 0")
    a(f"s_mov_b32 s{S_M0B}, 0")
    a(f"s_mov_b32 s{S_GSTR}, 0")
    pf()
    a.label(f"L_ldE_{uniq}")

def loader_srd(a):
    a("s_cmp_eq_u32 s34, 0")
    a(f"s_cselect_b32 s{S_SRDL}, s8, s12")
    a(f"s_cselect_b32 s{S_SRDL+1}, s9, s13")
    a(f"s_cselect_b32 s{S_SRDL+2}, s10, s14")
    a(f"s_mov_b32 s{S_SRDL+3}, 0x00020000")

def sym_setup16(a, xmode, s_ldw, s_col0b, s_xbase, kd):
    a("v_lshlrev_b32 v18, 1, v3")
    a("v_xor_b32 v17, v2, v18")
    if xmode == "row":
        a("s_and_b32 s33, s20, 1")
        a("s_lshl_b32 s33, s33, 3")
        a("v_xor_b32 v17, s33, v17")
        a("v_mov_b32 v18, v17")
    else:
        a("v_xor_b32 v18, 8, v17")
    a("s_lshl_b32 s33, s20, 3")
    a("v_add_u32 v16, s33, v3")
    a(f"v_mul_lo_u32 v16, v16, s{s_ldw}")
    a(f"v_add_u32 v16, s{s_col0b}, v16")
    a("v_lshl_add_u32 v8, v17, 4, v16")
    a(f"s_lshl_b32 s33, s{s_ldw}, 2")
    a("s_sub_u32 s33, s33, 1024")
    a("v_lshl_add_u32 v18, v18, 4, v16")
    a("v_add_u32 v9, s33, v18")
    a(f"s_lshl_b32 s{S_LSTEP}, s{s_ldw}, 6")
    a(f"s_lshl_b32 s{S_M0B}, s20, 12")
    a(f"s_lshl_b32 s{S_GSTR}, s20, 11")
    a(f"s_add_u32 s{S_GSTR}, s{S_GSTR}, 32768")
    a(f"s_mov_b32 s{S_LOFF}, 0")
    a(f"s_mov_b32 s{S_LOFF2}, 0")
    if xmode == "row":
        a("v_lshrrev_b32 v16, 3, v1")
        a("s_lshl_b32 s33, s20, 5")
        a(f"s_add_u32 s33, s33, s{s_xbase}")
        a("v_add_u32 v16, s33, v16")
        a("v_lshlrev_b32 v16, 11, v16")
        a("v_and_b32 v17, 7, v1")
        a("v_xor_b32 v17, v17, v3")
        a("v_xor_b32 v18, 4, v17")
        a("v_lshl_add_u32 v17, v17, 4, v16")
        a("v_lshl_add_u32 v18, v18, 4, v16")
        for j in range(4):
            a(f"v_add_u32 v{V_LD+j}, {4096 + j*8*2048 - j*1024}, v{17 if j % 2 == 0 else 18}")
    else:
        a(f"s_add_u32 s33, s{s_xbase}, s20")
        a(f"s_mul_i32 s33, s33, {kd*64}")
        a("v_lshlrev_b32 v16, 4, v1")
        a(f"v_add_u32 v{V_LD}, s33, v16")
```

```python
import sys, math, os, struct
from asmlib import *
from gemm16 import *

MB = 1 << 20
WS_Q = 0
WS_KV = 4 * MB
WS_HS = 12 * MB
WS_X1 = 16 * MB
WS_O = 20 * MB
WS_H3 = 24 * MB
WS_ST = 40 * MB
WS_CS1 = WS_ST + 720896
WS_CS3 = WS_ST + 131072
WS_G = WS_ST + 393216
WS_P1 = WS_ST + 458752
WS_STAMP = WS_ST + MB
WS_SIZE = 56 * MB
WS_PA = 48 * MB
ST_FLAG = os.environ.get("STFLAG", "sc1")

def f2u(x): return struct.unpack("<I", struct.pack("<f", x))[0]
QSCALE = math.log2(math.e) / math.sqrt(32.0)
GC1 = -2.0 * math.log2(math.e) * math.sqrt(2.0 / math.pi)
GC2 = GC1 * 0.044715
STAMP = False

def srd(a, d, base, nbytes):
    a(f"s_mov_b32 s{d}, s{base}")
    a(f"s_mov_b32 s{d+1}, s{base+1}")
    a(f"s_mov_b32 s{d+2}, {nbytes}")
    a(f"s_mov_b32 s{d+3}, 0x00020000")

def stamp(a, idx, rt=False):
    if not STAMP or rt: return
    a(f"s_memtime s[90:91]")
    a(f"s_memrealtime s[92:93]")
    a("s_waitcnt lgkmcnt(0)")
    a(f"s_mov_b32 s{74+idx}, s90")
    a(f"s_mov_b32 s{82+idx}, s92")
    a.lgkm = []

def stamp_dump(a, n, kidx=0):
    if not STAMP: return
    lab = a.newlabel("nodump")
    a("s_cmp_lg_u32 s20, 0")
    a(f"s_cbranch_scc1 {lab}")
    a("s_lshl_b32 s92, s2, 6")
    a(f"s_add_u32 s92, s92, {WS_STAMP + kidx*65536}")
    a("v_mov_b32 v16, 0")
    for i in range(16):
        a(f"v_mov_b32 v17, s{74+i}")
        a(f"buffer_store_dword v17, v16, s[16:19], s92 offen offset:{4*i}")
    a.label(lab)

CODEPF = os.environ.get("CODEPF", "1")
def code_prefetch(a, kname, nloads, allcode=False, vd=8, va=9):
    if CODEPF == "0": return
    a("s_getpc_b64 s[92:93]")
    a.label(f"L_pc_{kname}")
    end = "L_code_end" if allcode else f"L_end_{kname}"
    a(f"s_mov_b32 s94, {end}-L_pc_{kname}")
    a("s_mov_b32 s95, 0x00020000")
    a(f"v_lshlrev_b32 v{va}, 6, v0")
    for i in range(nloads):
        a.vmem(f"buffer_load_dword v{vd}, v{va}, s[92:95], 0 offen", "cpf")
        if i < nloads - 1: a(f"v_add_u32 v{va}, 32768, v{va}")

def lane_setup(a):
    a("v_and_b32 v1, 63, v0")
    a("v_lshrrev_b32 v2, 6, v0")
    a("s_nop 0")
    a("v_readfirstlane_b32 s20, v2")
    a("v_and_b32 v2, 15, v1")
    a("v_lshrrev_b32 v3, 4, v1")
    a("s_lshr_b32 s21, s20, 1")
    a("s_and_b32 s22, s20, 1")

def wave_sum(a, regs):
    pad = max(0, 3 - len(regs))
    steps = ["row_shr:1 row_mask:0xf bank_mask:0xf bound_ctrl:0", "row_shr:2 row_mask:0xf bank_mask:0xf bound_ctrl:0",
             "row_shr:4 row_mask:0xf bank_mask:0xf bound_ctrl:0", "row_shr:8 row_mask:0xf bank_mask:0xf bound_ctrl:0",
             "row_bcast:15 row_mask:0xa bank_mask:0xf", "row_bcast:31 row_mask:0xc bank_mask:0xf"]
    a("s_nop 1")
    for st in steps:
        for r in regs:
            a(f"v_add_f32_dpp v{r}, v{r}, v{r} {st}")
        if pad: a(f"s_nop {pad-1}")

def gelu_block(a, regs, c1, c2, dd, tmp):
    n = len(regs)
    P = lambda r: f"v[{r}:{r+1}]"
    for i in range(0, n, 2): a(f"v_pk_mul_f32 {P(tmp[i])}, {P(regs[i])}, {P(regs[i])}")
    for i in range(0, n, 2): a(f"v_pk_fma_f32 {P(tmp[i])}, {P(tmp[i])}, {P(c2)}, {P(c1)}")
    for i in range(0, n, 2): a(f"v_pk_mul_f32 {P(tmp[i])}, {P(tmp[i])}, {P(regs[i])}")
    for i in range(n): a(f"v_exp_f32 v{tmp[i]}, v{tmp[i]}")
    a("s_nop 0")
    for i in range(0, n, 2): a(f"v_pk_fma_f32 {P(tmp[i])}, {P(tmp[i])}, {P(dd)}, {P(dd)}")
    for i in range(n): a(f"v_rcp_f32 v{tmp[i]}, v{tmp[i]}")
    a("s_nop 0")
    for i in range(0, n, 2): a(f"v_pk_mul_f32 {P(regs[i])}, {P(regs[i])}, {P(tmp[i])}")

LDS_X = 3 * SLOT

def ln_gelu_epilogue(a, s_dst_base, kd, v_voff, v_mask, stats_regs, cs_lds):
    a("s_lshl_b32 s33, s22, 8")
    a(f"s_add_u32 s33, s33, {LDS_X}")
    a(f"v_lshl_add_u32 v16, v3, 4, s33")
    for c in range(4):
        a.ds(f"ds_read_b128 v[{192+4*c}:{195+4*c}], v16 offset:{64*c}", "cs")
    for tt in range(4):
        m, r = stats_regs[tt]
        a(f"v_mul_f32 v224, {f2u(GC1)}, v{r}")
        a(f"v_mul_f32 v226, v{r}, v{r}")
        a(f"v_rcp_f32 v228, v{r}")
        a(f"v_mul_f32 v226, v226, v224")
        a(f"v_mul_f32 v226, {f2u(0.044715)}, v226")
        a(f"v_sub_f32 v230, 0, v{m}")
        a("v_mov_b32 v225, v224")
        a("v_mov_b32 v227, v226")
        a("v_mov_b32 v229, v228")
        a("v_mov_b32 v231, v230")
        a.wait_lgkm("cs")
        regs = []
        for c in range(4):
            d = acc(tt, c)
            for i in range(0, 4, 2):
                a(f"v_pk_fma_f32 v[{d+i}:{d+i+1}], v[230:231], v[{192+4*c+i}:{192+4*c+i+1}], v[{d+i}:{d+i+1}]")
            regs += [d, d + 1, d + 2, d + 3]
        gelu_block(a, regs, 224, 226, 228, list(range(32, 48)))
        t = 48 + 8 * (tt % 2)
        for i in range(8):
            a(f"v_cvt_pk_bf16_f32 v{t+i}, v{regs[2*i]}, v{regs[2*i+1]}")
        if v_mask:
            for i in range(8):
                a(f"v_cndmask_b32 v{t+i}, 0, v{t+i}, {v_mask[tt]}")
        for p in range(2):
            a(f"buffer_store_dwordx4 v[{t+4*p}:{t+4*p+3}], v{v_voff[tt]}, s[16:19], s{s_dst_base} offen offset:{1024*p} {ST_FLAG}")

def build(kernels, path):
    head = ""
    body = '.amdgcn_target "amdgcn-amd-amdhsa--gfx950"\n.text\n'
    desc = '.section .rodata,"a"\n'
    for name, text, cfg in kernels:
        head += f"; @launch kernel={name} grid=({cfg['grid']},1,1) block=({cfg['block']},1,1) lds={cfg['lds']}\n"
        body += kernel_header(name) + text + f"L_end_{name}:\n"
        desc += kernel_desc(name, cfg['vgpr'])
    body += "L_code_end:\n"
    open(path, "w").write(head + body + desc)

if __name__ == "__main__":
    if "--stamp" in sys.argv: STAMP = True
    pass
```

```python
from gen2 import *
import gen2

class Rec:
    def __init__(self, a): self.a = a; self.ops = []
    def __call__(self, *lines):
        self.ops.append(lambda: [self.a(l) for l in lines])
    def f(self, fn): self.ops.append(fn)
    def split(self, n):
        k = (len(self.ops) + n - 1) // n
        return [self.ops[i*k:(i+1)*k] for i in range(n)]

def rec_wave_sum(r, regs):
    steps = ["row_shr:1 row_mask:0xf bank_mask:0xf bound_ctrl:0", "row_shr:2 row_mask:0xf bank_mask:0xf bound_ctrl:0",
             "row_shr:4 row_mask:0xf bank_mask:0xf bound_ctrl:0", "row_shr:8 row_mask:0xf bank_mask:0xf bound_ctrl:0",
             "row_bcast:15 row_mask:0xa bank_mask:0xf", "row_bcast:31 row_mask:0xc bank_mask:0xf"]
    r("s_nop 1")
    for st in steps:
        for x in regs: r(f"v_add_f32_dpp v{x}, v{x}, v{x} {st}")

def k1():
    a = Asm(); a.uid = 1000
    name = "k1_kernel"
    a("s_cmp_ge_u32 s2, 256")
    a("s_cbranch_scc1 L_k1_end")
    a("s_load_dwordx4 s[4:7], s[0:1], 0")
    a("s_load_dwordx4 s[36:39], s[0:1], 32")
    a("s_load_dwordx4 s[60:63], s[0:1], 80")
    a("s_load_dwordx2 s[72:73], s[0:1], 64")
    code_prefetch(a, name, 2, allcode=True, vd=29, va=30)
    stamp(a, 0)
    lane_setup(a)
    a("s_and_b32 s40, s2, 7")
    a("s_lshr_b32 s41, s2, 3")
    a("s_and_b32 s42, s40, 1")
    a("s_lshl_b32 s42, s42, 2")
    a("s_and_b32 s43, s41, 3")
    a("s_add_u32 s42, s42, s43")
    a("s_lshr_b32 s43, s40, 1")
    a("s_lshr_b32 s44, s41, 2")
    a("s_cmp_eq_u32 s43, 3")
    a("s_movk_i32 s23, 6144")
    a("s_cselect_b32 s23, 2048, s23")
    a("s_cselect_b32 s45, 0, s43")
    a("s_lshl_b32 s58, s45, 11")
    a("s_lshl_b32 s45, s44, 8")
    a("s_add_u32 s45, s45, s58")
    a("s_lshl_b32 s46, s42, 8")
    a("s_lshl_b32 s47, s42, 3")
    a("s_add_u32 s47, s47, s44")
    def pf_setup():
        a(f"s_mov_b32 s{S_LOFF}, 0")
        a("s_sub_u32 s33, s20, 6")
        a("s_lshl_b32 s33, s33, 6")
        a("s_cmp_ge_u32 s41, 16")
        a("s_cbranch_scc1 L_k1_pfw")
        a("s_mov_b32 s34, 0")
        a("s_and_b32 s48, s40, 1")
        a("s_lshl_b32 s48, s48, 10")
        a("s_lshl_b32 s49, s41, 6")
        a("s_add_u32 s48, s48, s49")
        a("v_add_u32 v16, s48, v1")
        a("v_lshlrev_b32 v16, 11, v16")
        a("s_add_u32 s33, s33, 4096")
        a(f"v_add_u32 v{V_LD}, s33, v16")
        a(f"s_movk_i32 s{S_LSTEP}, 128")
        a("s_branch L_ldE_k1")
        a.label("L_k1_pfw")
        a("s_mov_b32 s34, 1")
        a("s_sub_u32 s48, s41, 16")
        a("s_lshl_b32 s48, s48, 2")
        a("v_add_u32 v16, s48, v3")
        a("v_mul_lo_u32 v16, v16, s23")
        a("v_lshl_add_u32 v16, v2, 7, v16")
        a("s_add_u32 s33, s33, s58")
        a(f"v_add_u32 v{V_LD}, s33, v16")
        a(f"s_lshl_b32 s{S_LSTEP}, s23, 6")
    sym_setup16(a, "row", 23, 45, 46, 1024)
    read_addr_setup16(a, "row")
    a("s_waitcnt lgkmcnt(0)")
    stamp(a, 1)
    a("s_sub_u32 s8, s4, 4096")
    a("s_subb_u32 s9, s5, 0")
    a(f"s_mov_b32 s10, {4*MB + 4096}")
    a("s_mov_b32 s11, 0x00020000")
    a("s_cmp_eq_u32 s43, 3")
    a("s_cselect_b32 s12, s36, s6")
    a("s_cselect_b32 s13, s37, s7")
    a(f"s_mov_b32 s14, {6*MB}")
    a(f"s_cselect_b32 s14, {2*MB}, s14")
    a("s_mov_b32 s15, 0x00020000")
    stamp(a, 2)

    def signal():
        lab = a.newlabel("nosig")
        a("s_cmp_lg_u32 s20, 0")
        a(f"s_cbranch_scc1 {lab}")
        a("v_mov_b32 v16, 0")
        a("v_mov_b32 v17, 1")
        a("s_mov_b64 s[50:51], exec")
        a("s_mov_b64 exec, 1")
        a("buffer_atomic_add v17, v16, s[64:67], 0 offen")
        a("s_mov_b64 exec, s[50:51]")
        a.label(lab)

    def rs_loads(kind):
        a(f"s_add_u32 s48, s47, {(kind-1)*64}")
        a("s_lshl_b32 s48, s48, 4")
        a("s_lshl_b32 s49, s20, 1")
        a("s_add_u32 s59, s48, s49")
        a("s_lshl_b32 s49, s59, 11")
        a("s_add_u32 s49, s49, 4096")
        a("v_lshlrev_b32 v16, 5, v1")
        for r in range(2):
            for h in range(2):
                d = 192 + 8 * r + 4 * h
                a.vmem(f"buffer_load_dwordx4 v[{d}:{d+3}], v16, s[8:11], s49 offen offset:{2048*r+16*h}", "duty")
        srd(a, 68, 72, 2048)
        for h in range(2):
            a.vmem(f"buffer_load_dwordx4 v[{216+4*h}:{219+4*h}], v16, s[68:71], 0 offen offset:{16*h}", "duty")
    def rs_ops():
        r = Rec(a)
        r.f(lambda: a.wait_vm("duty"))
        for i in range(6): r(f"v_mov_b32 v{208+i}, 0")
        for i in range(8):
            r(f"v_lshlrev_b32 v224, 16, v{216+i}")
            r(f"v_and_b32 v225, 0xffff0000, v{216+i}")
            for q in range(2):
                x = 192 + 8 * q + i
                r(f"v_lshlrev_b32 v{226+2*q}, 16, v{x}")
                r(f"v_and_b32 v{227+2*q}, 0xffff0000, v{x}")
            for q in range(2):
                for h in range(2):
                    r(f"v_add_f32 v{208+2*q}, v{208+2*q}, v{226+2*q+h}")
                    r(f"v_fma_f32 v{209+2*q}, v{226+2*q+h}, v{226+2*q+h}, v{209+2*q}")
                    r(f"v_mul_f32 v{226+2*q+h}, v{226+2*q+h}, v{224+h}")
            for q in range(2): r(f"v_cvt_pk_bf16_f32 v{226+2*q}, v{226+2*q}, v{227+2*q}")
            for q in range(2):
                r(f"v_lshlrev_b32 v{227+2*q}, 16, v{226+2*q}")
                r(f"v_and_b32 v{226+2*q}, 0xffff0000, v{226+2*q}")
                r(f"v_add_f32 v{212+q}, v{212+q}, v{227+2*q}")
                r(f"v_add_f32 v{212+q}, v{212+q}, v{226+2*q}")
        rec_wave_sum(r, [208, 209, 210, 211, 212, 213])
        for q in range(2):
            s_, q_ = 208 + 2 * q, 209 + 2 * q
            r(f"v_mul_f32 v{s_}, {f2u(1/1024)}, v{s_}")
            r(f"v_mul_f32 v{q_}, {f2u(1/1024)}, v{q_}")
            r(f"v_fma_f32 v{q_}, -v{s_}, v{s_}, v{q_}")
            r(f"v_max_f32 v{q_}, 0, v{q_}")
            r(f"v_add_f32 v{q_}, {f2u(1e-5)}, v{q_}")
            r(f"v_rsq_f32 v{q_}, v{q_}")
        r("v_cvt_pk_bf16_f32 v212, v212, v213")
        r("v_and_b32 v213, 0xffff0000, v212")
        r("v_lshlrev_b32 v212, 16, v212")
        for q in range(2): r(f"v_mul_f32 v{212+q}, {f2u(-math.log2(math.e))}, v{212+q}")
        for q in range(2): r(f"v_exp_f32 v{212+q}, v{212+q}")
        r("s_nop 0")
        for q in range(2): r(f"v_add_f32 v{212+q}, 1.0, v{212+q}")
        for q in range(2): r(f"v_rcp_f32 v{212+q}, v{212+q}")
        r("s_nop 0")
        r("v_cvt_pk_bf16_f32 v212, v212, v213")
        r("v_lshlrev_b32 v216, 16, v212")
        r("v_and_b32 v218, 0xffff0000, v212")
        r("v_sub_f32 v217, 1.0, v216")
        r("v_sub_f32 v219, 1.0, v218")
        r("v_cvt_pk_bf16_f32 v212, v217, v219")
        r("v_lshlrev_b32 v217, 16, v212")
        r("v_and_b32 v219, 0xffff0000, v212")
        r("s_lshl_b32 s49, s59, 3")
        r(f"s_add_u32 s54, s49, {WS_G}")
        r(f"s_add_u32 s49, s49, {WS_ST}")
        r("v_mov_b32 v16, 0")
        r("s_mov_b32 s52, 0")
        r("s_mov_b32 s53, 0x80000000")
        def st():
            a("s_mov_b64 exec, s[52:53]")
            a.vmem("buffer_store_dwordx4 v[208:211], v16, s[16:19], s49 offen sc1", "dst")
            a.vmem("buffer_store_dwordx4 v[216:219], v16, s[16:19], s54 offen sc1", "dst")
            a("s_mov_b64 exec, -1")
        r.f(st)
        return r
    def cs_loads():
        srd(a, 68, 36, 2 * MB)
        a("s_lshl_b32 s48, s42, 7")
        a("s_lshl_b32 s49, s20, 4")
        a("s_add_u32 s48, s48, s49")
        a("s_lshl_b32 s48, s48, 11")
        a("s_lshl_b32 s49, s44, 8")
        a("s_add_u32 s48, s48, s49")
        a("v_lshlrev_b32 v16, 11, v3")
        a("v_lshl_add_u32 v16, v2, 4, v16")
        for r in range(4):
            a.vmem(f"buffer_load_dwordx4 v[{192+4*r}:{195+4*r}], v16, s[68:71], s48 offen", "duty")
            if r < 3: a("s_add_u32 s48, s48, 8192")
    def cs_ops1():
        r = Rec(a)
        r.f(lambda: a.wait_vm("duty"))
        for q in range(4):
            for i in range(4):
                x = 192 + 4 * q + i
                if q == 0:
                    r(f"v_lshlrev_b32 v{208+2*i}, 16, v{x}")
                    r(f"v_and_b32 v{209+2*i}, 0xffff0000, v{x}")
                else:
                    r(f"v_lshlrev_b32 v216, 16, v{x}")
                    r(f"v_and_b32 v217, 0xffff0000, v{x}")
                    r(f"v_add_f32 v{208+2*i}, v{208+2*i}, v216")
                    r(f"v_add_f32 v{209+2*i}, v{209+2*i}, v217")
        r("s_lshl_b32 s48, s20, 11")
        r(f"s_add_u32 s48, s48, {LDS_X}")
        r("v_lshlrev_b32 v16, 9, v3")
        r("v_lshl_add_u32 v16, v2, 5, v16")
        r("v_add_u32 v16, s48, v16")
        r.f(lambda: a.ds("ds_write_b128 v16, v[208:211]", "csw"))
        r.f(lambda: a.ds("ds_write_b128 v16, v[212:215] offset:16", "csw"))
        return r.ops
    def cs_ops2():
        r = Rec(a)
        r("v_and_b32 v16, 127, v0")
        r("v_lshrrev_b32 v17, 7, v0")
        r("v_lshlrev_b32 v18, 12, v17")
        r("v_lshl_add_u32 v18, v16, 2, v18")
        r(f"v_add_u32 v19, {LDS_X}, v18")
        for q in range(8): r.f(lambda q=q: a.ds(f"ds_read_b32 v{192+q}, v19 offset:{512*q}", "csr"))
        r("s_lshl_b32 s48, s42, 14")
        r("s_lshl_b32 s49, s44, 9")
        r("s_add_u32 s48, s48, s49")
        r(f"s_add_u32 s48, s48, {WS_CS1}")
        for _ in range(4): r("s_nop 0")
        r.f(lambda: a.wait_lgkm("csr"))
        for q in range(1, 8): r(f"v_add_f32 v192, v192, v{192+q}")
        r.f(lambda: a.vmem("buffer_store_dword v192, v18, s[16:19], s48 offen sc1", "dst"))
        return r.ops

    for role in ("S",):
        if role == "P": a.label("L_k1_roleP")
        a.vm = []; a.lgkm = []
        Core16(a, "row", role=role).prologue_dma()
        vm0 = list(a.vm)
        srd(a, 16, 62, WS_SIZE)
        srd(a, 64, 60, 256)
        for k in (1, 2, 3):
            a(f"s_cmp_eq_u32 s43, {k}")
            a(f"s_cbranch_scc1 L_k1_p{k}{role}")
        for kind in range(4):
            if kind: a.label(f"L_k1_p{kind}{role}")
            a.vm = list(vm0); a.lgkm = []
            core = Core16(a, "row", swap=(kind == 2), tag=f"k1{kind}", role=role)
            hk = dict(start=lambda: stamp(a, 3), after0=lambda: stamp(a, 4), pre_tail=lambda: stamp(a, 5))
            if kind == 0:
                cs_loads()
                hk.update(spread2=cs_ops1, spread3=cs_ops2, prebar5=["dst"], after5=signal)
                core.mainloop(hooks=hk, npeel=6)
            elif kind in (1, 2):
                rs_loads(kind)
                parts = rs_ops().split(4)
                for i in range(4): hk[f"spread{2+i}"] = (lambda i=i: parts[i])
                hk.update(prebar7=["dst"], after7=signal)
                core.mainloop(hooks=hk, npeel=8)
            else:
                def poll_issue():
                    stamp(a, 5)
                    a("v_mov_b32 v16, 0")
                    a.vmem("buffer_load_dword v27, v16, s[64:67], 0 offen sc1", "poll")
                def poll_check():
                    lab = a.newlabel("poll"); ok = a.newlabel("pollok")
                    a.wait_vm("poll")
                    a.label(lab)
                    a("v_readfirstlane_b32 s48, v27")
                    a("s_cmp_ge_u32 s48, 192")
                    a(f"s_cbranch_scc1 {ok}")
                    a("s_sleep 2")
                    a("buffer_load_dword v27, v16, s[64:67], 0 offen sc1")
                    a("s_waitcnt vmcnt(0)")
                    a(f"s_branch {lab}")
                    a.label(ok)
                def stat_loads():
                    a("s_lshl_b32 s48, s21, 6")
                    a("s_add_u32 s48, s48, s46")
                    a("s_lshl_b32 s48, s48, 3")
                    a(f"s_add_u32 s48, s48, {WS_ST}")
                    a("v_lshlrev_b32 v16, 3, v2")
                    for tt in range(4):
                        a.vmem(f"buffer_load_dwordx2 v[{208+2*tt}:{209+2*tt}], v16, s[16:19], s48 offen offset:{128*tt} sc1", "stat")
                    a("v_and_b32 v17, 127, v0")
                    a("v_lshrrev_b32 v18, 7, v0")
                    a("v_lshlrev_b32 v19, 15, v18")
                    a("v_lshl_add_u32 v19, v17, 2, v19")
                    a("s_lshl_b32 s48, s44, 9")
                    a(f"s_add_u32 s48, s48, {WS_CS1}")
                    for kb in range(8):
                        a.vmem(f"buffer_load_dword v{216+kb}, v19, s[16:19], s48 offen sc1", "csp")
                        if kb < 7: a("s_add_u32 s48, s48, 4096")
                def w2pf():
                    srd(a, 68, 38, 2 * MB)
                    a("s_lshl_b32 s48, s47, 3")
                    a("s_add_u32 s48, s48, s20")
                    a("s_lshl_b32 s48, s48, 12")
                    a("v_lshlrev_b32 v27, 6, v1")
                    a("buffer_load_dword v28, v27, s[68:71], s48 offen")
                hk.update(after1=w2pf, pre_tail=poll_issue, pre_last=poll_check, last_start=stat_loads)
                core.mainloop(hooks=hk)
            a(f"s_branch L_k1_ep{kind}")
    for kind in range(3):
        a.label(f"L_k1_ep{kind}")
        stamp(a, 6)
        hsh, tsh = (17, 11) if kind == 0 else (18, 12)
        base = WS_Q if kind == 0 else (WS_KV + (2048 if kind == 2 else 0))
        a("s_lshl_b32 s48, s44, 2")
        a("s_lshl_b32 s49, s22, 1")
        a("s_add_u32 s48, s48, s49")
        a(f"s_lshl_b32 s48, s48, {hsh}")
        a("s_lshl_b32 s49, s42, 3")
        a("s_lshl_b32 s50, s21, 1")
        a("s_add_u32 s49, s49, s50")
        a(f"s_lshl_b32 s49, s49, {tsh}")
        a("s_add_u32 s48, s48, s49")
        a(f"s_add_u32 s48, s48, {base}")
        a("v_lshrrev_b32 v16, 3, v2")
        a(f"v_lshlrev_b32 v16, {7 if kind == 0 else 8}, v16")
        a("v_and_b32 v17, 7, v2")
        a("v_lshl_add_u32 v16, v17, 4, v16")
        a("v_lshl_add_u32 v16, v3, 9, v16")
        if kind == 0:
            a(f"v_mov_b32 v18, {f2u(QSCALE)}"); a(f"v_mov_b32 v19, {f2u(QSCALE)}")
        n = 0
        for p in range(2):
            for o in range(4):
                t = 128 + 4 * n; n += 1
                if kind == 2:
                    c, pp = (n - 1) // 2, (n - 1) % 2
                    d0, d1 = acc(2 * pp, c), acc(2 * pp + 1, c)
                    soff = (c >> 1) * (1 << hsh) + pp * (1 << tsh); imm = (c & 1) * 128
                else:
                    d0, d1 = acc(o, 2 * p), acc(o, 2 * p + 1)
                    soff = (o >> 1) * (1 << tsh) + p * (1 << hsh); imm = (o & 1) * (256 if kind == 0 else 128)
                if kind == 0:
                    for d in (d0, d0 + 2, d1, d1 + 2):
                        a(f"v_pk_mul_f32 v[{d}:{d+1}], v[{d}:{d+1}], v[18:19]")
                a(f"v_cvt_pk_bf16_f32 v{t}, v{d0}, v{d0+1}")
                a(f"v_cvt_pk_bf16_f32 v{t+1}, v{d0+2}, v{d0+3}")
                a(f"v_cvt_pk_bf16_f32 v{t+2}, v{d1}, v{d1+1}")
                a(f"v_cvt_pk_bf16_f32 v{t+3}, v{d1+2}, v{d1+3}")
                a(f"s_add_u32 s49, s48, {soff}")
                a(f"buffer_store_dwordx4 v[{t}:{t+3}], v16, s[16:19], s49 offen offset:{imm} {ST_FLAG}")
        a("s_branch L_k1_fin")
    a.label("L_k1_ep3")
    a.vm = []; a.lgkm = []
    stamp(a, 6)
    a("s_lshr_b32 s48, s44, 1")
    a("s_lshr_b32 s49, s48, 1")
    a("s_add_u32 s49, s49, 1")
    a("s_sub_u32 s50, 0, s49")
    a("s_and_b32 s48, s48, 1")
    a("s_cmp_eq_u32 s48, 0")
    a("s_cselect_b32 s49, s49, s50")
    a("s_lshl_b32 s48, s21, 6")
    a("s_add_u32 s48, s48, s46")
    a("s_add_u32 s48, s48, s49")
    masks = []
    for tt in range(4):
        v = 28 + tt
        a(f"v_add_u32 v16, s48, v2")
        if tt: a(f"v_add_u32 v16, {16*tt}, v16")
        a(f"v_mov_b32 v18, 2048")
        a(f"v_cmp_lt_u32 s[{50+2*tt}:{51+2*tt}], v16, v18")
        masks.append(f"s[{50+2*tt}:{51+2*tt}]")
        a("v_and_b32 v16, 2047, v16")
        a("v_lshrrev_b32 v17, 5, v16")
        a("v_lshlrev_b32 v17, 16, v17")
        a("v_bfe_u32 v18, v16, 4, 1")
        a("v_lshl_add_u32 v17, v18, 11, v17")
        a("v_and_b32 v18, 15, v16")
        a("v_lshl_add_u32 v17, v18, 4, v17")
        a(f"v_lshl_add_u32 v{v}, v3, 8, v17")
    a("s_waitcnt vmcnt(0)")
    for kb in range(1, 8): a(f"v_add_f32 v216, v216, v{216+kb}")
    a("v_lshlrev_b32 v19, 2, v0")
    a(f"v_add_u32 v19, {LDS_X + 1024}, v19")
    a("ds_write_b32 v19, v216")
    a("s_lshl_b32 s49, s22, 8")
    a(f"s_add_u32 s49, s49, {LDS_X + 1024}")
    a("v_lshl_add_u32 v19, v1, 2, s49")
    a("s_waitcnt lgkmcnt(0)")
    a("s_barrier")
    for g in range(4): a(f"ds_read_b32 v{216+g}, v19 offset:{512*g}")
    a("s_lshl_b32 s48, s44, 1")
    a("s_add_u32 s48, s48, s22")
    a("s_lshl_b32 s48, s48, 12")
    a(f"s_add_u32 s48, s48, {WS_HS}")
    a("s_waitcnt lgkmcnt(0)")
    a("v_add_f32 v216, v216, v217")
    a("v_add_f32 v218, v218, v219")
    a("v_add_f32 v216, v216, v218")
    a(f"v_subrev_u32 v19, 1024, v19")
    a("ds_write_b32 v19, v216")
    a("s_waitcnt lgkmcnt(0)")
    ln_gelu_epilogue(a, 48, 1024, [28, 29, 30, 31], masks, [(208 + 2 * t, 209 + 2 * t) for t in range(4)], None)
    a.label("L_k1_fin")
    if gen2.STAMP: a("s_waitcnt vmcnt(0)")
    stamp(a, 7); stamp_dump(a, 8, 0)
    a.label("L_k1_end")
    a("s_endpgm")
    return name, a.text(), dict(grid=256, block=512, lds=163840, vgpr=232)
```

```python
from gen2 import *
import gen2

SL2 = 40960
A_Q = 32
A_NEG = 48
A_S = 64
A_P = 96
A_O = 104
A_L = 136
A_SEL = 144
A_K = 148
A_V = 164
G_ACC = 180
G_X = 196
G_W = 204
X_RES = 212
C3 = 228
NV2 = 244
V_KVD = 4; V_XD = 5; V_WD = 6
V_KVR = 7; V_XR = 8; V_WR = 9
S_KVO = 24; S_XO = 25; S_WO = 26; S_SL = 27; S_DL = 28; S_CN = 29; S_MK = 30; S_MX = 31; S_MW = 34; S_T0 = 32; S_T1 = 33

class K2:
    def __init__(self, a): self.a = a; self.midbar = 0; self.prio = os.environ.get('PRIO', '1') == '1'
    def dma(self, stage):
        a = self.a
        t = ("st", stage)
        return [
            lambda: a(f"s_add_u32 m0, s{S_SL}, s{S_MK}"),
            lambda: a.vmem(f"buffer_load_dwordx4 v{V_KVD}, s[16:19], s{S_KVO} offen {LDF}lds", t),
            lambda: a.vmem(f"buffer_load_dwordx4 v{V_KVD}, s[16:19], s{S_KVO} offen offset:1024 {LDF}lds", t),
            lambda: a(f"s_add_u32 m0, s{S_SL}, s{S_MX}"),
            lambda: a.vmem(f"buffer_load_dwordx4 v{V_XD}, s[16:19], s{S_XO} offen {LDF}lds", t),
            lambda: a.vmem(f"buffer_load_dwordx4 v{V_XD}, s[16:19], s{S_XO} offen offset:1024 {LDF}lds", t),
            lambda: a(f"s_add_u32 m0, s{S_SL}, s{S_MW}"),
            lambda: a.vmem(f"buffer_load_dwordx4 v{V_WD}, s[12:15], s{S_WO} offen {LDF}lds", t),
            lambda: a(f"s_add_u32 s{S_KVO}, s{S_KVO}, 16384"),
            lambda: a(f"s_add_u32 s{S_XO}, s{S_XO}, 4096"),
            lambda: a(f"s_add_u32 s{S_WO}, s{S_WO}, {64*2048}"),
        ]
    def kreads(self, kt):
        a = self.a; k = A_K + 8 * (kt % 2); off = 4096 * (kt % 2)
        return [lambda: a.ds(f"ds_read_b128 v[{k}:{k+3}], v{V_KVR} offset:{off}", ("k", kt, 0)),
                lambda: a.ds(f"ds_read_b128 v[{k+4}:{k+7}], v{V_KVR} offset:{off+1024}", ("k", kt, 1))]
    def vreads(self, kt):
        a = self.a; v = A_V + 8 * (kt % 2); off = 4096 * (kt % 2) + 2048
        return [lambda: a.ds(f"ds_read_b128 v[{v}:{v+3}], v{V_KVR} offset:{off}", ("v", kt, 0)),
                lambda: a.ds(f"ds_read_b128 v[{v+4}:{v+7}], v{V_KVR} offset:{off+1024}", ("v", kt, 1))]
    def greads(self, T):
        a = self.a; i = T % 4
        gx = G_X + 4 * (T % 2); gw = G_W + 4 * (T % 2)
        kg, s = i >> 1, i & 1
        return [lambda: a.ds(f"ds_read_b128 v[{gx}:{gx+3}], v{V_XR} offset:{1024*kg+512*s}", ("gx", T)),
                lambda: a.ds(f"ds_read_b64_tr_b16 v[{gw}:{gw+1}], v{V_WR} offset:{(32*kg+8*s)*128}", ("gw", T)),
                lambda: a.ds(f"ds_read_b64_tr_b16 v[{gw+2}:{gw+3}], v{V_WR} offset:{(32*kg+8*s+16)*128}", ("gw", T))]
    def reads(self, t):
        T = t + 2
        if T > 63: return []
        kv = self.kreads(T // 2) if T % 2 == 0 else self.vreads(T // 2)
        return kv + self.greads(T)
    def qk(self, u, half, czero=False):
        a = self.a
        kt, qs = u >> 1, u & 1
        k = A_K + 8 * (kt % 2) + 4 * half; S = A_S + 16 * (u % 2); q = A_Q + 8 * qs + 4 * half
        def f():
            a.wait_lgkm(("k", kt, half))
            c = (("0" if czero else f"v[{A_NEG}:{A_NEG+15}]") if half == 0 else f"v[{S}:{S+15}]")
            a(f"v_mfma_f32_32x32x16_bf16 v[{S}:{S+15}], v[{k}:{k+3}], v[{q}:{q+3}], {c}")
        return f
    def gm(self, T):
        a = self.a
        gx = G_X + 4 * (T % 2); gw = G_W + 4 * (T % 2)
        def f():
            a.wait_lgkm(("gx", T), ("gw", T))
            c = "0" if T == 0 else f"v[{G_ACC}:{G_ACC+15}]"
            a(f"v_mfma_f32_32x32x16_bf16 v[{G_ACC}:{G_ACC+15}], v[{gw}:{gw+3}], v[{gx}:{gx+3}], {c}")
        return f
    def pv(self, u, half):
        a = self.a
        kt, qs = u >> 1, u & 1
        v = A_V + 8 * (kt % 2) + 4 * half; p = A_P + 4 * half; O = A_O + 16 * qs
        def f():
            a.wait_lgkm(("v", kt, half))
            c = "0" if (u < 2 and half == 0) else f"v[{O}:{O+15}]"
            a(f"v_mfma_f32_32x32x16_bf16 v[{O}:{O+15}], v[{v}:{v+3}], v[{p}:{p+3}], {c}")
        return f
    def sm(self, u, half):
        a = self.a
        p = A_P + 4 * half; L = A_L + 4 * (u & 1)
        def f():
            c = "0" if (u < 2 and half == 0) else f"v[{L}:{L+3}]"
            a(f"v_mfma_f32_16x16x32_bf16 v[{L}:{L+3}], v[{A_SEL}:{A_SEL+3}], v[{p}:{p+3}], {c}")
        return f
    def slot(self, t, misc=(), cut=None):
        a = self.a
        S = A_S + 16 * (t % 2)
        esuf = "_e64" if os.environ.get("EXP64") else ""
        e = lambda i: (lambda: a(f"v_exp_f32{esuf} v{S+i}, v{S+i}"))
        c = lambda i: (lambda: a(f"v_cvt_pk_bf16_f32 v{A_P+i}, v{S+2*i}, v{S+2*i+1}"))
        rd = self.reads(t)
        nxt = 0 <= t + 1 <= 63
        prev = 1 <= t <= 64
        cur = 0 <= t <= 63
        seq = []
        def M(f, cond):
            if cond: seq.append(f)
        def V(*fs):
            if cur: seq.extend(fs)
        M(self.qk(t + 1, 0), nxt)
        V(e(0), e(1), e(2))
        M(self.pv(t - 1, 1), prev)
        V(c(0), e(3), e(4), c(1))
        M(self.qk(t + 1, 1), nxt)
        V(e(5), e(6), c(2), e(7))
        M(self.sm(t - 1, 1), prev)
        V(e(8), c(3))
        M(self.gm(t + 1), nxt)
        V(e(9), e(10), c(4), e(11))
        M(self.pv(t, 0), cur)
        V(e(12), c(5), e(13), e(14))
        M(self.sm(t, 0), cur)
        V(e(15), c(6), c(7))
        fill = list(rd) + list(misc)
        n = len(seq)
        out = []; j = 0
        lim = (n - 6) if cut is None else max(1, cut[0] - 3)
        for i, f in enumerate(seq):
            out.append(f)
            tgt = (len(fill) * (i + 1)) // max(1, lim) if n > 6 else len(fill)
            while j < min(tgt, len(fill)):
                out.append(fill[j]); j += 1
            if cut is not None and i == cut[0]:
                out += fill[j:]; j = len(fill)
                out.append(cut[1])
        out += fill[j:]
        for f in out: f()

    def period(self, s, dma, barrier=True, loop_tail=None, extra=None):
        a = self.a
        d = self.dma(s + 2) if dma else []
        adv = [lambda: a(f"s_add_u32 s{S_SL}, s{S_SL}, {SL2}"),
               lambda: a(f"s_cmp_eq_u32 s{S_SL}, {3*SL2}"),
               lambda: a(f"s_cselect_b32 s{S_SL}, 0, s{S_SL}"),
               lambda: a(f"s_cmp_eq_u32 s{S_SL}, {2*SL2}"),
               lambda: a(f"s_cselect_b32 s{S_DL}, s{S_T0}, s{S_T1}")]
        bump = [lambda v=v: a(f"v_add_u32 v{v}, s{S_DL}, v{v}") for v in (V_KVR, V_XR, V_WR)]
        misc = [d[0:3], d[3:6], d[6:] + adv, (bump + (loop_tail or [])) if barrier else []]
        def bar():
            n = a._need(a.vm, [("st", s + 1)])
            if n is None:
                a.wait_all(vm=False)
            else:
                a(f"s_waitcnt vmcnt({n}) lgkmcnt(0)")
                a.vm = a.vm[len(a.vm) - n:] if n else []
                a.lgkm = []
            a("s_barrier")
        for i in range(4):
            if self.prio: a(f"s_setprio {3-i}")
            cut = (self.midbar, bar) if (i == 3 and barrier and self.midbar) else None
            self.slot(4 * s - 2 + i, misc[i] + ((extra or {}).get(i, [])), cut)
        if barrier and not self.midbar:
            bar()

def k2():
    a = Asm()
    a.uid = 2000
    name = "k2_kernel"
    a("s_cmp_ge_u32 s2, 256")
    a("s_cbranch_scc1 L_k2_end")
    a("s_load_dwordx2 s[4:5], s[0:1], 0")
    a("s_load_dwordx2 s[6:7], s[0:1], 40")
    a("s_load_dwordx2 s[56:57], s[0:1], 16")
    a("s_load_dwordx2 s[58:59], s[0:1], 56")
    a("s_load_dwordx2 s[62:63], s[0:1], 88")
    a("s_load_dwordx2 s[60:61], s[0:1], 48")
    code_prefetch(a, name, 1, vd=30, va=31)
    stamp(a, 0)
    a("v_and_b32 v1, 63, v0")
    a("v_lshrrev_b32 v2, 6, v0")
    a("s_mov_b32 s35, 0")
    a("v_readfirstlane_b32 s20, v2")
    a("v_and_b32 v2, 31, v1")
    a("v_lshrrev_b32 v3, 5, v1")
    a("s_lshr_b32 s21, s20, 1")
    a("s_and_b32 s22, s20, 1")
    a("s_and_b32 s40, s2, 7")
    a("s_lshr_b32 s41, s2, 3")
    a("s_lshl_b32 s42, s40, 2")
    a("s_and_b32 s43, s41, 3")
    a("s_add_u32 s42, s42, s43")
    a("s_lshr_b32 s43, s41, 2")
    a("s_and_b32 s44, s40, 3")
    a("s_lshl_b32 s44, s44, 2")
    a("s_and_b32 s45, s41, 3")
    a("s_add_u32 s44, s44, s45")
    a("s_lshr_b32 s45, s40, 2")
    a("s_lshl_b32 s45, s45, 3")
    a("s_add_u32 s45, s45, s43")
    a("v_lshlrev_b32 v16, 4, v1")
    a("s_lshl_b32 s46, s42, 18")
    a("s_lshl_b32 s47, s20, 11")
    a("s_add_u32 s46, s46, s47")
    a(f"s_add_u32 s46, s46, {WS_KV}")
    a(f"v_add_u32 v{V_KVD}, s46, v16")
    a("s_lshl_b32 s46, s44, 2")
    a("s_add_u32 s46, s46, s21")
    a("s_lshl_b32 s46, s46, 16")
    a("s_lshl_b32 s47, s22, 11")
    a("s_add_u32 s46, s46, s47")
    a(f"s_add_u32 s46, s46, {WS_HS}")
    a(f"v_add_u32 v{V_XD}, s46, v16")
    a("v_lshrrev_b32 v17, 3, v1")
    a("s_lshl_b32 s46, s20, 3")
    a("v_add_u32 v17, s46, v17")
    a("v_lshlrev_b32 v17, 11, v17")
    a("v_and_b32 v18, 7, v1")
    a("v_bfe_u32 v19, v1, 4, 1")
    a("v_lshlrev_b32 v19, 2, v19")
    a("v_xor_b32 v18, v18, v19")
    a("v_lshl_add_u32 v17, v18, 4, v17")
    a("s_lshl_b32 s46, s45, 7")
    a(f"v_add_u32 v{V_WD}, s46, v17")
    a(f"s_lshl_b32 s{S_MK}, s20, 11")
    a(f"s_add_u32 s{S_MX}, s{S_MK}, 16384")
    a(f"s_lshl_b32 s{S_MW}, s20, 10")
    a(f"s_add_u32 s{S_MW}, s{S_MW}, 32768")
    a("s_lshl_b32 s46, s22, 13")
    a(f"v_add_u32 v{V_KVR}, s46, v16")
    a("v_lshrrev_b32 v17, 4, v2")
    a("v_lshlrev_b32 v17, 11, v17")
    a("v_lshl_add_u32 v17, v3, 8, v17")
    a("v_and_b32 v18, 15, v2")
    a("v_lshl_add_u32 v10, v18, 4, v17")
    a("s_lshl_b32 s46, s21, 12")
    a("s_add_u32 s46, s46, 16384")
    a(f"v_add_u32 v{V_XR}, s46, v10")
    a("v_bfe_u32 v17, v1, 2, 2")
    a("v_lshl_add_u32 v18, v3, 2, v17")
    a("v_bfe_u32 v19, v1, 1, 1")
    a("v_bfe_u32 v20, v1, 4, 1")
    a("v_lshl_add_u32 v19, v19, 1, v20")
    a("s_lshl_b32 s46, s22, 2")
    a("v_add_u32 v19, s46, v19")
    a("v_lshrrev_b32 v17, 1, v17")
    a("v_lshlrev_b32 v17, 2, v17")
    a("v_xor_b32 v19, v19, v17")
    a("v_lshlrev_b32 v18, 7, v18")
    a("v_lshl_add_u32 v18, v19, 4, v18")
    a("v_and_b32 v20, 1, v1")
    a("v_lshl_add_u32 v18, v20, 3, v18")
    a(f"v_add_u32 v{V_WR}, 32768, v18")
    a("v_bfe_u32 v17, v1, 2, 1")
    a("v_bfe_u32 v18, v1, 4, 1")
    a("v_cmp_eq_u32 vcc, v17, v18")
    a("v_mov_b32 v19, 0x3f803f80")
    a("s_nop 0")
    for i in range(4): a(f"v_cndmask_b32 v{A_SEL+i}, 0, v19, vcc")
    for r in (S_KVO, S_XO, S_WO, S_SL): a(f"s_mov_b32 s{r}, 0")
    a(f"s_mov_b32 s{S_T0}, {(-2*SL2) & 0xffffffff}")
    a(f"s_mov_b32 s{S_T1}, {SL2}")
    a("s_lshl_b32 s46, s42, 17")
    a("s_lshl_b32 s47, s43, 3")
    a("s_add_u32 s47, s47, s20")
    a("s_andn2_b32 s48, s47, 1")
    a("s_lshl_b32 s48, s48, 11")
    a("s_add_u32 s46, s46, s48")
    a("s_waitcnt lgkmcnt(0)")
    stamp(a, 1)
    srd(a, 8, 4, 4 * MB)
    srd(a, 12, 6, 2 * MB)
    srd(a, 16, 62, WS_SIZE)
    K = K2(a)
    for i in range(4):
        a.vmem(f"buffer_load_dwordx4 v[{A_Q+4*i}:{A_Q+4*i+3}], v16, s[16:19], s46 offen offset:{1024*i}", "q")
    for st in (0, 1):
        for f in K.dma(st): f()
        a(f"s_add_u32 s{S_SL}, s{S_SL}, {SL2}")
    a.wait_vm(("st", 0))
    a("s_barrier")
    stamp(a, 2)
    k1b = A_K + 8
    a.ds(f"ds_read_b128 v[{k1b}:{k1b+3}], v16", "k0")
    a.ds(f"ds_read_b128 v[{k1b+4}:{k1b+7}], v16 offset:1024", "k0")
    for f in K.reads(-2): f()
    for f in K.dma(2): f()
    a.wait_lgkm("k0")
    for qs in range(2):
        S = A_S + 16 * qs
        a(f"v_mfma_f32_32x32x16_bf16 v[{S}:{S+15}], v[{k1b}:{k1b+3}], v[{A_Q+8*qs}:{A_Q+8*qs+3}], 0")
        a(f"v_mfma_f32_32x32x16_bf16 v[{S}:{S+15}], v[{k1b+4}:{k1b+7}], v[{A_Q+8*qs+4}:{A_Q+8*qs+7}], v[{S}:{S+15}]")
    for f in K.reads(-1): f()
    a("s_nop 7"); a("s_nop 7")
    S = A_S
    a(f"v_max3_f32 v17, v{S}, v{S+1}, v{S+2}")
    a(f"v_max3_f32 v18, v{S+3}, v{S+4}, v{S+5}")
    for i in range(6, 32, 4):
        a(f"v_max3_f32 v17, v17, v{S+i}, v{S+i+1}")
        if i + 3 < 32: a(f"v_max3_f32 v18, v18, v{S+i+2}, v{S+i+3}")
    a("v_max_f32 v17, v17, v18")
    a("v_mov_b32 v18, v17")
    a("s_nop 1")
    a("v_permlane32_swap_b32 v17, v18")
    a("s_nop 1")
    a("v_max_f32 v17, v17, v18")
    for i in range(16): a(f"v_sub_f32 v{A_NEG+i}, 0, v17")
    a("s_nop 1")
    K.qk(0, 0)(); K.qk(0, 1)(); K.gm(0)()
    a("s_nop 7"); a("s_nop 3")
    adv = [lambda: a(f"s_mov_b32 s{S_SL}, 0"), lambda: a(f"s_mov_b32 s{S_DL}, {SL2}")]
    K.slot(0, adv)
    K.slot(1)
    for v in (V_KVR, V_XR, V_WR): a(f"v_add_u32 v{v}, s{S_DL}, v{v}")
    n = a._need(a.vm, [("st", 1)])
    a(f"s_waitcnt vmcnt({n}) lgkmcnt(0)")
    a.vm = a.vm[len(a.vm) - n:]; a.lgkm = []
    a("s_barrier")
    stamp(a, 3)
    a("s_lshl_b32 s48, s2, 3")
    a("s_add_u32 s48, s48, s20")
    a("s_cmp_lt_u32 s48, 896")
    a("s_cselect_b32 s64, s58, s56")
    a("s_cselect_b32 s65, s59, s57")
    a(f"s_mov_b32 s66, {2*MB}")
    a(f"s_cselect_b32 s66, {7*MB}, s66")
    a("s_mov_b32 s67, 0x00020000")
    a("s_cselect_b32 s49, 0, 896")
    a("s_sub_u32 s36, s48, s49")
    a("s_lshl_b32 s36, s36, 13")
    a("s_add_u32 s37, s36, 4096")
    a("s_mul_i32 s38, s48, 11")
    a("s_lshr_b32 s38, s38, 10")
    a("s_sub_u32 s38, 13, s38")
    a("s_cmp_ge_u32 s48, 1152" if not os.environ.get("NOPF") else "s_cmp_ge_u32 s48, 0")
    a("s_cselect_b32 s38, 0, s38")
    a("v_lshlrev_b32 v11, 6, v1")
    srd(a, 68, 60, 7 * MB)
    a("v_cmp_le_u32 vcc, 28, v1")
    a("v_mov_b32 v13, 28")
    a("s_nop 0")
    a("v_cndmask_b32 v12, 0, v13, vcc")
    a("v_sub_u32 v13, v1, v12")
    a("v_cndmask_b32 v12, 0, 1, vcc")
    a("v_mul_u32_u24 v14, 7168, v12")
    a("v_lshl_add_u32 v14, v13, 4, v14")
    a("v_cmp_le_u32 vcc, 56, v1")
    a("v_mov_b32 v15, 0x7fffffff")
    a("s_nop 0")
    a("v_cndmask_b32 v14, v14, v15, vcc")
    a("v_mul_u32_u24 v15, 896, v12")
    a("v_lshl_add_u32 v15, v13, 5, v15")
    a("s_mul_i32 s48, s20, 1792")
    a("s_add_u32 s48, s48, 65536")
    a("v_add_u32 v15, s48, v15")
    a("v_lshlrev_b32 v13, 5, v1")
    a("v_add_u32 v13, 98304, v13")
    a("v_cndmask_b32 v15, v15, v13, vcc")
    a("s_lshr_b32 s48, s2, 4")
    a("s_lshl_b32 s48, s48, 6")
    a("s_lshl_b32 s49, s20, 3")
    a("s_add_u32 s48, s48, s49")
    a("s_mul_i32 s48, s48, 7168")
    a("s_and_b32 s49, s2, 15")
    a("s_mul_i32 s49, s49, 448")
    a("s_add_u32 s72, s48, s49")
    a("s_and_b32 s39, s2, 7")
    a("s_add_u32 s39, s39, 3")
    def pf(ver):
        a(f"s_cmp_lg_u32 s39, s{S_CN}")
        a("s_cbranch_scc1 L_k2_noc3" + ver)
        for i in range(4):
            a(f"buffer_load_dwordx4 v[{C3+4*i}:{C3+4*i+3}], v14, s[68:71], s72 offen")
            if i < 3: a(f"s_add_u32 s72, s72, {2*7168}")
        a.label("L_k2_noc3" + ver)
        a(f"s_cmp_lg_u32 s38, s{S_CN}")
        a("s_cbranch_scc1 L_k2_nopf" + ver)
        a("buffer_load_dword v26, v11, s[64:67], s36 offen")
        a("buffer_load_dword v27, v11, s[64:67], s37 offen")
        a.label("L_k2_nopf" + ver)
    a(f"s_mov_b32 s{S_CN}, 13")
    MID = int(os.environ.get("MIDBAR", "0"))
    vm_in = list(a.vm)
    if MID:
        a("s_cmp_ge_u32 s20, 4")
        a("s_cbranch_scc1 L_k2_loopB")
    for ver in ("", "B") if MID else ("",):
        K.midbar = MID if ver else 0
        a.vm = list(vm_in); a.lgkm = []
        a.lines.append(".p2align 6")
        a.label("L_k2_loop" + ver)
        lt = [lambda: a(f"s_sub_u32 s{S_CN}, s{S_CN}, 1"), lambda: a(f"s_cmp_lg_u32 s{S_CN}, 0")]
        K.period(1, dma=True, loop_tail=[lambda: pf(ver)] + lt)
        assert a.vm == [("st", 3)] * 5, a.vm
        a("s_cbranch_scc1 L_k2_loop" + ver)
        if MID and not ver: a("s_branch L_k2_tail")
    a.label("L_k2_tail")
    K.midbar = 0
    a.vm = [("st", 15)] * 5
    stamp(a, 4)
    K.period(14, dma=False)
    def xres():
        a("s_lshl_b32 s46, s44, 7")
        a("s_lshl_b32 s48, s21, 5")
        a("s_add_u32 s46, s46, s48")
        a("s_lshl_b32 s48, s46, 11")
        a("s_lshl_b32 s49, s45, 7")
        a("s_add_u32 s48, s48, s49")
        a("s_lshl_b32 s49, s22, 6")
        a("s_add_u32 s48, s48, s49")
        a("v_lshlrev_b32 v17, 11, v2")
        a("v_lshl_add_u32 v17, v3, 3, v17")
        for s in range(2):
            for b in range(2):
                d = X_RES + 4 * s + 2 * b
                a.vmem(f"buffer_load_dwordx2 v[{d}:{d+1}], v17, s[8:11], s48 offen offset:{32*b+16*s}", "xres")
        a("s_lshl_b32 s48, s47, 8")
        a(f"s_add_u32 s48, s48, {WS_G}")
        a("v_lshlrev_b32 v17, 3, v2")
        a.vmem("buffer_load_dword v25, v17, s[16:19], s48 offen", "xres")
    K.period(15, dma=False, barrier=False, extra={0: [xres]})
    a("s_waitcnt lgkmcnt(0)"); a.lgkm = []
    a("s_barrier")
    K.slot(62); K.slot(63)
    a("s_nop 1")
    K.slot(64)
    stamp(a, 5)
    a.wait_vm("xres")
    PK = 220
    for s in range(2):
        for b in range(2):
            for w in range(2):
                src = X_RES + 4 * s + 2 * b + w
                d = G_ACC + 8 * s + 4 * b + 2 * w
                a(f"v_lshlrev_b32 v17, 16, v{src}")
                a(f"v_and_b32 v18, 0xffff0000, v{src}")
                a(f"v_add_f32 v{d}, v{d}, v17")
                a(f"v_add_f32 v{d+1}, v{d+1}, v18")
    for i in range(8):
        a(f"v_cvt_pk_bf16_f32 v{PK+i}, v{G_ACC+2*i}, v{G_ACC+2*i+1}")
    a("s_lshl_b32 s48, s44, 2")
    a("s_add_u32 s48, s48, s21")
    a("s_lshl_b32 s48, s48, 16")
    a("s_lshl_b32 s49, s45, 12")
    a("s_add_u32 s48, s48, s49")
    a("s_lshl_b32 s49, s22, 10")
    a("s_add_u32 s48, s48, s49")
    a(f"s_add_u32 s48, s48, {WS_X1}")
    a(f"buffer_store_dwordx4 v[{PK}:{PK+3}], v10, s[16:19], s48 offen {ST_FLAG}")
    a(f"buffer_store_dwordx4 v[{PK+4}:{PK+7}], v10, s[16:19], s48 offen offset:512 {ST_FLAG}")
    a("v_mov_b32 v19, 0x3f803f80")
    a("v_mov_b32 v20, 0")
    a("v_mov_b32 v21, 0")
    for i in range(8):
        a(f"v_dot2_f32_bf16 v20, v{PK+i}, v19, v20")
        a(f"v_dot2_f32_bf16 v21, v{PK+i}, v{PK+i}, v21")
    a("s_nop 2")
    a("v_mov_b32 v22, v20")
    a("v_mov_b32 v23, v21")
    a("s_nop 1")
    a("v_permlane32_swap_b32 v20, v22")
    a("v_permlane32_swap_b32 v21, v23")
    a("s_nop 1")
    a("v_add_f32 v20, v20, v22")
    a("v_add_f32 v21, v21, v23")
    a("v_mov_b32 v26, 0x00003f80")
    a("v_mov_b32 v27, 0x3f800000")
    for i in range(8): a(f"v_mov_b32 v{A_S+i}, 0")
    for r in range(4):
        for i in range(4):
            a(f"v_dot2_f32_bf16 v{A_S+2*i}, v{C3+4*r+i}, v26, v{A_S+2*i}")
            a(f"v_dot2_f32_bf16 v{A_S+2*i+1}, v{C3+4*r+i}, v27, v{A_S+2*i+1}")
    a("s_nop 2")
    a(f"ds_write_b128 v15, v[{A_S}:{A_S+3}]")
    a(f"ds_write_b128 v15, v[{A_S+4}:{A_S+7}] offset:16")
    a("s_lshl_b32 s48, s20, 13")
    a("v_add_u32 v22, s48, v16")
    a("s_xor_b32 s48, s48, 8192")
    a("v_add_u32 v23, s48, v16")
    a("s_cmp_eq_u32 s22, 0")
    a("s_cbranch_scc0 L_k2_x1")
    for i in range(4): a(f"ds_write_b128 v22, v[{A_O+16+4*i}:{A_O+19+4*i}] offset:{1024*i}")
    a(f"ds_write_b32 v22, v{A_L+4} offset:4096")
    a("s_branch L_k2_x2")
    a.label("L_k2_x1")
    for i in range(4): a(f"ds_write_b128 v22, v[{A_O+4*i}:{A_O+3+4*i}] offset:{1024*i}")
    a(f"ds_write_b32 v22, v{A_L} offset:4096")
    a("ds_write_b64 v22, v[20:21] offset:4104")
    a("s_waitcnt lgkmcnt(0)")
    for i in range(16): a(f"v_mov_b32 v{A_O+i}, v{A_O+16+i}")
    a(f"v_mov_b32 v{A_L}, v{A_L+4}")
    for i in range(8): a(f"v_mov_b32 v{A_Q+i}, v{A_Q+8+i}")
    a.label("L_k2_x2")
    a("s_waitcnt lgkmcnt(0)")
    a("s_barrier")
    for i in range(4): a(f"ds_read_b128 v[{A_O+16+4*i}:{A_O+19+4*i}], v23 offset:{1024*i}")
    a(f"ds_read_b32 v{A_L+4}, v23 offset:4096")
    a("ds_read_b64 v[28:29], v23 offset:4104")
    a("v_lshlrev_b32 v24, 3, v2")
    a("s_lshl_b32 s48, s46, 3")
    a("s_lshl_b32 s49, s45, 14")
    a("s_add_u32 s48, s48, s49")
    a(f"s_add_u32 s48, s48, {WS_P1}")
    a("s_waitcnt lgkmcnt(0)")
    a("s_cmp_eq_u32 s22, 0")
    a("s_cbranch_scc0 L_k2_st2")
    a("v_add_f32 v20, v20, v28")
    a("v_add_f32 v21, v21, v29")
    a(f"buffer_store_dwordx2 v[20:21], v24, s[16:19], s48 offen {ST_FLAG}")
    a.label("L_k2_st2")
    for i in range(16): a(f"v_add_f32 v{A_O+i}, v{A_O+i}, v{A_O+16+i}")
    a(f"v_add_f32 v{A_L}, v{A_L}, v{A_L+4}")
    a(f"v_max3_f32 v18, abs(v{A_O}), abs(v{A_O+1}), abs(v{A_O+2})")
    for i in range(3, 15, 2):
        a(f"v_max3_f32 v18, v18, abs(v{A_O+i}), abs(v{A_O+i+1})")
    a(f"v_max3_f32 v18, v18, abs(v{A_O+15}), abs(v{A_O+15})")
    a(f"v_mov_b32 v19, {f2u(2.0**60)}")
    a(f"v_cmp_nlt_f32 vcc, v{A_L}, v19")
    a(f"v_mov_b32 v19, {f2u(2.0**120)}")
    a(f"v_cmp_nlt_f32 s[50:51], v18, v19")
    a(f"v_mov_b32 v19, {f2u(2.0**-60)}")
    a(f"v_cmp_ngt_f32 s[52:53], v{A_L}, v19")
    a("s_nop 1")
    a("s_or_b64 vcc, vcc, s[50:51]")
    a("s_or_b64 vcc, vcc, s[52:53]")
    if os.environ.get("FORCE_FB"): a("s_mov_b64 vcc, -1")
    a("s_cbranch_vccnz L_k2_fallback")
    a.label("L_k2_fin")
    a(f"v_rcp_f32 v18, v{A_L}")
    a("s_nop 0")
    a("v_mul_f32 v18, v18, v25")
    for i in range(16): a(f"v_mul_f32 v{A_O+i}, v{A_O+i}, v18")
    for i in range(8): a(f"v_cvt_pk_bf16_f32 v{A_P+i}, v{A_O+2*i}, v{A_O+2*i+1}")
    a("s_lshl_b32 s48, s47, 16")
    a("s_lshr_b32 s49, s42, 1")
    a("s_lshl_b32 s49, s49, 12")
    a("s_add_u32 s48, s48, s49")
    a("s_and_b32 s49, s42, 1")
    a("s_lshl_b32 s49, s49, 10")
    a("s_add_u32 s48, s48, s49")
    a(f"s_add_u32 s48, s48, {WS_O}")
    a(f"buffer_store_dwordx4 v[{A_P}:{A_P+3}], v10, s[16:19], s48 offen {ST_FLAG}")
    a(f"buffer_store_dwordx4 v[{A_P+4}:{A_P+7}], v10, s[16:19], s48 offen offset:512 {ST_FLAG}")
    a("s_cmp_ge_u32 s20, 4")
    a("s_cbranch_scc1 L_k2_done")
    a("v_lshlrev_b32 v17, 2, v0")
    a("v_add_u32 v18, 65536, v17")
    for r in range(16): a(f"ds_read_b32 v{A_S+r}, v18 offset:{896*r}")
    a("s_lshr_b32 s48, s2, 4")
    a("s_mul_i32 s48, s48, 14336")
    a("s_and_b32 s49, s2, 15")
    a("s_mul_i32 s49, s49, 896")
    a("s_add_u32 s48, s48, s49")
    a(f"s_add_u32 s48, s48, {WS_CS3}")
    a("v_mov_b32 v18, 224")
    a("v_cmp_lt_u32 vcc, v0, v18")
    a("s_waitcnt lgkmcnt(0)")
    for r in range(2, 16): a(f"v_add_f32 v{A_S+r%2}, v{A_S+r%2}, v{A_S+r}")
    a(f"v_add_f32 v{A_S}, v{A_S}, v{A_S+1}")
    a("s_and_b64 exec, exec, vcc")
    a(f"buffer_store_dword v{A_S}, v17, s[16:19], s48 offen {ST_FLAG}")
    a("s_mov_b64 exec, -1")
    a.label("L_k2_done")
    if gen2.STAMP: a("s_waitcnt vmcnt(0)")
    stamp(a, 6); stamp(a, 7); stamp_dump(a, 8, 1)
    a.label("L_k2_end")
    a("s_endpgm")
    a.label("L_k2_fallback")
    a("s_lshl_b32 s52, s42, 18")
    a(f"s_add_u32 s52, s52, {WS_KV}")
    a("s_mov_b32 s53, s52")
    a("s_mov_b32 s54, 64")
    a("v_mov_b32 v18, 0xff800000")
    S = A_S
    a.label("L_k2_fb1")
    a(f"buffer_load_dwordx4 v[{A_K}:{A_K+3}], v16, s[16:19], s53 offen")
    a(f"buffer_load_dwordx4 v[{A_K+4}:{A_K+7}], v16, s[16:19], s53 offen offset:1024")
    a("s_waitcnt vmcnt(0)")
    a(f"v_mfma_f32_32x32x16_bf16 v[{S}:{S+15}], v[{A_K}:{A_K+3}], v[{A_Q}:{A_Q+3}], 0")
    a(f"v_mfma_f32_32x32x16_bf16 v[{S}:{S+15}], v[{A_K+4}:{A_K+7}], v[{A_Q+4}:{A_Q+7}], v[{S}:{S+15}]")
    a("s_nop 7"); a("s_nop 7")
    for i in range(0, 16, 2): a(f"v_max3_f32 v18, v18, v{S+i}, v{S+i+1}")
    a("s_add_u32 s53, s53, 4096")
    a("s_sub_u32 s54, s54, 1")
    a("s_cmp_lg_u32 s54, 0")
    a("s_cbranch_scc1 L_k2_fb1")
    a("v_mov_b32 v19, v18")
    a("s_nop 1")
    a("v_permlane32_swap_b32 v18, v19")
    a("s_nop 1")
    a("v_max_f32 v18, v18, v19")
    for i in range(16): a(f"v_sub_f32 v{A_NEG+i}, 0, v18")
    for i in range(16): a(f"v_mov_b32 v{A_O+i}, 0")
    for i in range(4): a(f"v_mov_b32 v{A_L+i}, 0")
    a("s_mov_b32 s53, s52")
    a("s_mov_b32 s54, 64")
    a.label("L_k2_fb2")
    for i in range(2):
        a(f"buffer_load_dwordx4 v[{A_K+4*i}:{A_K+4*i+3}], v16, s[16:19], s53 offen offset:{1024*i}")
        a(f"buffer_load_dwordx4 v[{A_V+4*i}:{A_V+4*i+3}], v16, s[16:19], s53 offen offset:{2048+1024*i}")
    a("s_waitcnt vmcnt(0)")
    a(f"v_mfma_f32_32x32x16_bf16 v[{S}:{S+15}], v[{A_K}:{A_K+3}], v[{A_Q}:{A_Q+3}], v[{A_NEG}:{A_NEG+15}]")
    a(f"v_mfma_f32_32x32x16_bf16 v[{S}:{S+15}], v[{A_K+4}:{A_K+7}], v[{A_Q+4}:{A_Q+7}], v[{S}:{S+15}]")
    a("s_nop 7"); a("s_nop 7")
    for i in range(16): a(f"v_exp_f32 v{S+i}, v{S+i}")
    a("s_nop 0")
    for i in range(8): a(f"v_cvt_pk_bf16_f32 v{A_P+i}, v{S+2*i}, v{S+2*i+1}")
    a("s_nop 1")
    for h in range(2):
        a(f"v_mfma_f32_32x32x16_bf16 v[{A_O}:{A_O+15}], v[{A_V+4*h}:{A_V+4*h+3}], v[{A_P+4*h}:{A_P+4*h+3}], v[{A_O}:{A_O+15}]")
        a(f"v_mfma_f32_16x16x32_bf16 v[{A_L}:{A_L+3}], v[{A_SEL}:{A_SEL+3}], v[{A_P+4*h}:{A_P+4*h+3}], v[{A_L}:{A_L+3}]")
    a("s_add_u32 s53, s53, 4096")
    a("s_sub_u32 s54, s54, 1")
    a("s_cmp_lg_u32 s54, 0")
    a("s_cbranch_scc1 L_k2_fb2")
    a("s_nop 7"); a("s_nop 7")
    a("s_branch L_k2_fin")
    return name, a.text(), dict(grid=256, block=512, lds=3 * SL2, vgpr=NV2)
```

```python
from gen2 import *
import gen2

WOHALF = False
P1N = 16

def k3():
    from k1gen import Rec
    a = Asm(); a.uid = 3000
    name = "k3_kernel"
    a("s_cmp_ge_u32 s2, 224")
    a("s_cbranch_scc1 L_k3_end")
    a("s_load_dwordx2 s[6:7], s[0:1], 48")
    a("s_load_dwordx2 s[62:63], s[0:1], 88")
    code_prefetch(a, name, 1, vd=27, va=26)
    stamp(a, 0)
    lane_setup(a)
    a("s_and_b32 s40, s2, 7")
    a("s_lshr_b32 s41, s2, 3")
    a("s_and_b32 s42, s40, 1")
    a("s_lshl_b32 s42, s42, 2")
    a("s_and_b32 s43, s41, 3")
    a("s_add_u32 s42, s42, s43")
    a("s_lshr_b32 s43, s40, 1")
    a("s_mul_i32 s43, s43, 7")
    a("s_lshr_b32 s44, s41, 2")
    a("s_add_u32 s44, s44, s43")
    a("s_movk_i32 s23, 7168")
    a("s_lshl_b32 s45, s44, 8")
    a("s_lshl_b32 s46, s42, 3")
    def pf_setup():
        a(f"s_mov_b32 s{S_LOFF}, 0")
        a("s_lshl_b32 s48, s41, 1")
        a("s_add_u32 s48, s48, s20")
        a("s_sub_u32 s48, s48, 6")
        a("s_lshr_b32 s33, s48, 5")
        a("s_lshl_b32 s33, s33, 6")
        a("s_and_b32 s48, s48, 31")
        a("s_cmp_ge_u32 s48, 16")
        a("s_cbranch_scc1 L_k3_pfw")
        a("s_mov_b32 s34, 0")
        a("s_and_b32 s49, s40, 1")
        a("s_lshl_b32 s49, s49, 5")
        a("s_lshl_b32 s48, s48, 1")
        a("s_add_u32 s48, s48, s49")
        a("v_lshrrev_b32 v16, 5, v1")
        a("v_add_u32 v16, s48, v16")
        a("v_lshlrev_b32 v16, 16, v16")
        a("v_and_b32 v17, 31, v1")
        a("v_lshl_add_u32 v16, v17, 7, v16")
        a(f"v_add_u32 v{V_LD}, s33, v16")
        a(f"s_movk_i32 s{S_LSTEP}, 4096")
        a("s_branch L_ldE_k3")
        a.label("L_k3_pfw")
        a("s_mov_b32 s34, 1")
        a("s_sub_u32 s48, s48, 16")
        a("s_lshl_b32 s48, s48, 2")
        a("v_add_u32 v16, s48, v3")
        a("v_mul_lo_u32 v16, v16, s23")
        a("v_lshl_add_u32 v16, v2, 7, v16")
        a("s_lshl_b32 s49, s43, 8")
        a("s_add_u32 s33, s33, s49")
        a(f"v_add_u32 v{V_LD}, s33, v16")
        a(f"s_lshl_b32 s{S_LSTEP}, s23, 6")
    sym_setup16(a, "frag", 23, 45, 46, 1024)
    read_addr_setup16(a, "frag")
    a("s_waitcnt lgkmcnt(0)")
    stamp(a, 1)
    a(f"s_add_u32 s8, s62, {WS_X1}")
    a("s_addc_u32 s9, s63, 0")
    a(f"s_mov_b32 s10, {4*MB}")
    a("s_mov_b32 s11, 0x00020000")
    srd(a, 12, 6, 7 * MB)
    stamp(a, 2)
    def aux_loads():
        r = Rec(a)
        r("v_lshrrev_b32 v16, 1, v0")
        r("v_lshlrev_b32 v16, 3, v16")
        r("v_and_b32 v17, 1, v0")
        r("v_lshl_add_u32 v16, v17, 17, v16")
        r("s_lshl_b32 s48, s42, 11", f"s_add_u32 s48, s48, {WS_P1}")
        for i in range(8 if "p" not in os.environ.get("NOAUX", "") else 0):
            r.f(lambda i=i: (a.vmem(f"buffer_load_dwordx2 v[{192+2*i}:{193+2*i}], v16, s[16:19], s48 offen", "aux"), a("s_add_u32 s48, s48, 16384")))
        r("v_and_b32 v17, 127, v0")
        r("v_lshrrev_b32 v18, 7, v0")
        r("v_mul_u32_u24 v18, 57344, v18")
        r("v_lshl_add_u32 v18, v17, 2, v18")
        r("s_lshl_b32 s48, s44, 9", f"s_add_u32 s48, s48, {WS_CS3}")
        for kb in range(4 if "c" not in os.environ.get("NOAUX", "") else 0):
            r.f(lambda kb=kb: (a.vmem(f"buffer_load_dword v{208+kb}, v18, s[16:19], s48 offen", "aux"), a("s_add_u32 s48, s48, 14336")))
        return r
    def aux_ops1():
        r = Rec(a)
        r.f(lambda: a.wait_vm("aux"))
        for i in range(1, 8):
            r(f"v_add_f32 v192, v192, v{192+2*i}")
            r(f"v_add_f32 v193, v193, v{193+2*i}")
        for kb in range(1, 4): r(f"v_add_f32 v208, v208, v{208+kb}")
        r("v_add_f32_dpp v192, v192, v192 quad_perm:[1,0,3,2] row_mask:0xf bank_mask:0xf")
        r("v_add_f32_dpp v193, v193, v193 quad_perm:[1,0,3,2] row_mask:0xf bank_mask:0xf")
        r("v_lshlrev_b32 v17, 2, v0")
        r(f"v_add_u32 v17, {LDS_X + 4096}, v17")
        r(f"v_mul_f32 v192, {f2u(1/1024)}, v192")
        r(f"v_mul_f32 v193, {f2u(1/1024)}, v193")
        r.f(lambda: a.ds("ds_write_b32 v17, v208", "auxw"))
        r("v_fma_f32 v193, -v192, v192, v193")
        r("v_max_f32 v193, 0, v193")
        r(f"v_add_f32 v193, {f2u(1e-5)}, v193")
        r("v_rsq_f32 v193, v193")
        r("v_lshrrev_b32 v16, 1, v0")
        r("v_lshlrev_b32 v16, 3, v16")
        r(f"v_add_u32 v16, {LDS_X + 1024}, v16")
        r.f(lambda: a.ds("ds_write_b64 v16, v[192:193]", "auxw"))
        return r.ops
    def aux_ops2():
        r = Rec(a)
        r("s_lshl_b32 s49, s22, 8")
        r(f"s_add_u32 s49, s49, {LDS_X}")
        r("v_lshl_add_u32 v17, v1, 2, s49")
        for g in range(4): r.f(lambda g=g: a.ds(f"ds_read_b32 v{216+g}, v17 offset:{4096+512*g}", "auxr"))
        r("s_lshl_b32 s48, s21, 9")
        r(f"s_add_u32 s48, s48, {LDS_X + 1024}")
        r("v_lshl_add_u32 v16, v2, 3, s48")
        for tt in range(4): r.f(lambda tt=tt: a.ds(f"ds_read_b64 v[{208+2*tt}:{209+2*tt}], v16 offset:{128*tt}", "auxr2"))
        r.f(lambda: a.wait_lgkm("auxr"))
        r("v_add_f32 v216, v216, v217")
        r("v_add_f32 v218, v218, v219")
        r("v_add_f32 v216, v216, v218")
        r.f(lambda: a.ds("ds_write_b32 v17, v216", "auxw"))
        r("s_lshl_b32 s48, s21, 1")
        r("s_add_u32 s48, s48, s46")
        r("s_mul_i32 s48, s48, 229376")
        r("s_lshl_b32 s49, s44, 1")
        r("s_add_u32 s49, s49, s22")
        r("s_lshl_b32 s49, s49, 12")
        r("s_add_u32 s48, s48, s49")
        r(f"s_add_u32 s48, s48, {WS_H3}")
        r("v_lshlrev_b32 v28, 4, v1")
        r("v_add_u32 v29, 2048, v28")
        r("v_add_u32 v30, 229376, v28")
        r("v_add_u32 v31, 229376, v29")
        return r.ops
    for role in ("S",):
        if role == "P": a.label("L_k3_roleP")
        a.vm = []; a.lgkm = []
        core = Core16(a, "frag", tag="k3", role=role)
        core.prologue_dma()
        srd(a, 16, 62, WS_SIZE)
        al = aux_loads().split(2)
        hk = dict(start=lambda: stamp(a, 3), after0=lambda: stamp(a, 4), spread1=lambda: al[0], spread2=lambda: al[1], spread4=aux_ops1, spread5=aux_ops2, pre_tail=lambda: stamp(a, 5))
        core.mainloop(hooks=hk, npeel=6)
        if role == "L": a("s_branch L_k3_ep")
    a.label("L_k3_ep")
    a.vm = []; a.lgkm = []
    stamp(a, 6)
    ln_gelu_epilogue(a, 48, 3584, [28, 29, 30, 31], None, [(208 + 2 * t, 209 + 2 * t) for t in range(4)], None)
    if gen2.STAMP: a("s_waitcnt vmcnt(0)")
    stamp(a, 7); stamp_dump(a, 8, 2)
    a.label("L_k3_end")
    a("s_endpgm")
    return name, a.text(), dict(grid=224, block=512, lds=163840, vgpr=232)

SK = 32768
K_XD = 4; K_WD = 5
K_XR = 8
K_WR = 10
K_XF = 32
K_WF = 128
K_ACC = 64
NA1, NA2, NB = (20, 8, 36) if WOHALF else (16, 16, 40)

class CoreK:
    def __init__(self, a): self.a = a
    def dma(self, stage):
        a = self.a; t = ("st", stage); sl = (stage % 4) * SK
        return [
            lambda: a(f"s_add_u32 m0, s29, {sl}"),
            lambda: a.vmem(f"buffer_load_dwordx4 v{K_XD}, s[16:19], s24 offen {LDF}lds", t),
            lambda: a.vmem(f"buffer_load_dwordx4 v{K_XD}, s[16:19], s24 offen offset:1024 {LDF}lds", t),
            lambda: a(f"s_add_u32 m0, s29, {sl + 16384}"),
            lambda: a.vmem(f"buffer_load_dwordx4 v{K_WD}, s[12:15], s25 offen {LDF}lds", t),
            lambda: a.vmem(f"buffer_load_dwordx4 v{K_WD+1}, s[12:15], s25 offen offset:1024 {LDF}lds", t),
            lambda: a("s_add_u32 s24, s24, 4096"),
            lambda: a(f"s_add_u32 s25, s25, {64*2048}"),
        ]
    def reads(self, s):
        a = self.a; buf = s % 2; sl = s % 4; pr = sl >> 1; off = (sl & 1) * SK
        o = []
        def xr(tt):
            d = K_XF + 16 * buf + 4 * tt
            return lambda: a.ds(f"ds_read_b128 v[{d}:{d+3}], v{K_XR+pr} offset:{off + 2048*tt}", ("x", s, tt))
        def wr(c, r):
            d = K_WF + 16 * buf + 4 * c + 2 * r
            return lambda: a.ds(f"ds_read_b64_tr_b16 v[{d}:{d+1}], v{K_WR+4*pr+c} offset:{off + 4096*r}", ("w", s, c))
        o = [xr(0), wr(0, 0), wr(0, 1), xr(1), xr(2), xr(3)]
        for c in range(1, 4): o += [wr(c, 0), wr(c, 1)]
        return o
    def mfmas(self, s):
        a = self.a; buf = s % 2
        o = []
        for c in range(4):
            for tt in range(4):
                def f(c=c, tt=tt):
                    a.wait_lgkm(("x", s, tt), ("w", s, c))
                    A = K_WF + 16 * buf + 4 * c; B = K_XF + 16 * buf + 4 * tt; d = K_ACC + 4 * (4 * c + tt)
                    a(f"v_mfma_f32_16x16x32_bf16 v[{d}:{d+3}], v[{A}:{A+3}], v[{B}:{B+3}], v[{d}:{d+3}]")
                o.append(f)
        return o
    def period(self, s, dma, last=False, extra=None, first_real=None):
        a = self.a
        sl = [[] for _ in range(17)]
        for i, o in enumerate(self.reads(s)): sl[min(i + 1, 12) if s else 0].append(o)
        if dma:
            for p, o in zip([0, 2, 5, 7, 9, 12, 13, 13], self.dma(s + 3)): sl[p].append(o)
        for k, v in (extra or {}).items(): sl[k] += v
        mf = self.mfmas(s - 1) if s else None
        for i in range(17):
            for o in sl[i]: o()
            if i < 16 and mf: mf[i]()
        if not last:
            n = a._need(a.vm, [("st", s + 1)])
            if n is None: a.wait_all(vm=False)
            else:
                a(f"s_waitcnt vmcnt({n}) lgkmcnt(0)")
                a.vm = a.vm[len(a.vm) - n:] if n else []; a.lgkm = []
            a("s_barrier")

def k4():
    a = Asm(); a.uid = 4000
    name = "k4_kernel"
    a("s_cmp_ge_u32 s2, 256")
    a("s_cbranch_scc1 L_k4_end")
    a("s_load_dwordx2 s[4:5], s[0:1], 16")
    a("s_load_dwordx2 s[6:7], s[0:1], 56")
    a("s_load_dwordx2 s[58:59], s[0:1], 72")
    a("s_load_dwordx4 s[60:63], s[0:1], 80")
    code_prefetch(a, name, 1, vd=23, va=21)
    stamp(a, 0)
    a("v_and_b32 v1, 63, v0")
    a("v_lshrrev_b32 v2, 6, v0")
    a("s_nop 0")
    a("v_readfirstlane_b32 s20, v2")
    a("v_and_b32 v2, 15, v1")
    a("v_lshrrev_b32 v3, 4, v1")
    a("s_lshr_b32 s23, s20, 2")
    a("s_bfe_u32 s21, s20, 0x10001")
    a("s_and_b32 s22, s20, 1")
    a("s_and_b32 s40, s2, 7")
    a("s_lshr_b32 s41, s2, 3")
    a("s_and_b32 s43, s40, 1")
    a("s_lshr_b32 s42, s40, 1")
    a("s_lshl_b32 s42, s42, 2")
    a("s_and_b32 s44, s41, 3")
    a("s_add_u32 s42, s42, s44")
    a("s_lshr_b32 s44, s41, 2")
    a("s_lshl_b32 s47, s42, 3")
    a("s_add_u32 s47, s47, s44")
    a("v_lshlrev_b32 v20, 4, v1")
    a("s_lshl_b32 s48, s42, 2")
    a("s_lshr_b32 s49, s20, 1")
    a("s_add_u32 s48, s48, s49")
    a("s_lshl_b32 s50, s22, 11")
    a("s_mul_i32 s49, s48, 229376")
    a("s_add_u32 s49, s49, s50")
    a(f"s_add_u32 s49, s49, {WS_H3}")
    a(f"v_add_u32 v{K_XD}, s49, v20")
    a("s_lshl_b32 s49, s48, 16")
    a("s_add_u32 s49, s49, s50")
    a(f"s_add_u32 s49, s49, {WS_O}")
    a("v_add_u32 v7, s49, v20")
    a("v_lshlrev_b32 v18, 1, v3")
    a("v_xor_b32 v18, v2, v18")
    a("v_xor_b32 v19, 8, v18")
    a("s_lshl_b32 s48, s20, 3")
    a("v_add_u32 v21, s48, v3")
    a("v_lshlrev_b32 v21, 11, v21")
    a("s_lshl_b32 s48, s44, 8")
    a("v_add_u32 v21, s48, v21")
    a(f"v_lshl_add_u32 v{K_WD}, v18, 4, v21")
    a("v_lshl_add_u32 v19, v19, 4, v21")
    a(f"v_add_u32 v{K_WD+1}, {4*2048-1024}, v19")
    a("s_lshl_b32 s29, s20, 11")
    a("s_lshl_b32 s48, s21, 13")
    a("s_lshl_b32 s49, s23, 10")
    a("s_add_u32 s48, s48, s49")
    a(f"v_add_u32 v{K_XR}, s48, v20")
    a(f"v_add_u32 v{K_XR+1}, {2*SK}, v{K_XR}")
    a("v_bfe_u32 v18, v1, 2, 2")
    a("v_lshl_add_u32 v18, v3, 2, v18")
    a("v_and_b32 v19, 7, v18")
    a("s_lshl_b32 s48, s22, 2")
    a("v_xor_b32 v19, s48, v19")
    a("v_lshlrev_b32 v18, 8, v18")
    a("v_lshl_add_u32 v18, v19, 5, v18")
    a("v_and_b32 v19, 3, v1")
    a("v_lshl_add_u32 v18, v19, 3, v18")
    a("s_lshl_b32 s48, s23, 13")
    a("s_add_u32 s48, s48, 16384")
    a(f"v_add_u32 v{K_WR}, s48, v18")
    for c in range(1, 4): a(f"v_xor_b32 v{K_WR+c}, {c<<5}, v{K_WR}")
    for c in range(4): a(f"v_add_u32 v{K_WR+4+c}, {2*SK}, v{K_WR+c}")
    a("s_cmp_eq_u32 s43, 0")
    a(f"s_cselect_b32 s24, {NA1*4096}, 0")
    a(f"s_cselect_b32 s25, {NA1*64*2048}, 0")
    a(f"s_cselect_b32 s28, {NB//4 - 1}, {(NA1+NA2)//4 - 1}")
    a("s_mov_b32 s30, 0")
    a("s_waitcnt lgkmcnt(0)")
    stamp(a, 1)
    srd(a, 12, 6, 7 * MB)
    srd(a, 16, 62, WS_SIZE)
    srd(a, 8, 58, 4 * MB)
    srd(a, 64, 60, 256)
    C = CoreK(a)
    for st in range(3):
        for f in C.dma(st): f()
    a("s_lshl_b32 s48, s42, 7")
    a("s_lshl_b32 s49, s21, 6")
    a("s_add_u32 s46, s48, s49")
    a("s_lshl_b32 s48, s46, 3")
    a(f"s_add_u32 s48, s48, {WS_G}")
    a("v_lshlrev_b32 v18, 3, v2")
    for tt in range(4):
        a.vmem(f"buffer_load_dwordx2 v[{24+2*tt}:{25+2*tt}], v18, s[16:19], s48 offen offset:{128*tt}", "gate")
    a("s_lshl_b32 s50, s42, 2")
    a("s_lshl_b32 s51, s21, 1")
    a("s_add_u32 s50, s50, s51")
    a("s_lshl_b32 s50, s50, 16")
    a("s_lshl_b32 s51, s44, 1")
    a("s_add_u32 s51, s51, s22")
    a("s_lshl_b32 s51, s51, 12")
    a("s_add_u32 s50, s50, s51")
    a("s_lshl_b32 s51, s23, 10")
    a("s_add_u32 s50, s50, s51")
    a("s_cmp_eq_u32 s43, 0")
    a(f"s_mov_b32 s51, {WS_PA}")
    a(f"s_cselect_b32 s51, {WS_X1}, s51")
    a("s_add_u32 s36, s50, s51")
    a("s_add_u32 s37, s36, 65536")
    for i in range(64): a(f"v_mov_b32 v{K_ACC+i}, 0")
    a.wait_vm(("st", 0))
    a("s_barrier")
    stamp(a, 2)
    C.period(0, dma=True)
    for s in range(1, 5): C.period(s, dma=True)
    stamp(a, 3)
    a("s_sub_u32 s28, s28, 1")
    a("s_mov_b32 s30, 1")
    vm_top = list(a.vm)
    a.lines.append(".p2align 6")
    a.label("L_k4_loop")
    a("s_cmp_eq_u32 s43, 0")
    a("s_cbranch_scc1 L_k4_nosw")
    a(f"s_cmp_eq_u32 s30, {NA1//4 - 1}")
    a("s_cbranch_scc1 L_k4_sw_dma")
    a(f"s_cmp_eq_u32 s30, {NA1//4}")
    a("s_cbranch_scc1 L_k4_sw_scale")
    a.label("L_k4_nosw")
    lt = [lambda: a("s_add_u32 s30, s30, 1"), lambda: a("s_sub_u32 s28, s28, 1"), lambda: a("s_cmp_lg_u32 s28, 0")]
    for s in range(5, 9): C.period(s, dma=True, extra=({15: lt} if s == 8 else None))
    assert [(t[0], t[1] - 4) for t in a.vm] == vm_top, (a.vm, vm_top)
    a("s_cbranch_scc1 L_k4_loop")
    stamp(a, 4)
    a.vm = [("st", 38)] * 4 + [("st", 39)] * 4
    def poll_issue():
        a("s_lshr_b32 s48, s47, 5")
        a("s_lshl_b32 s48, s48, 2")
        a("v_mov_b32 v18, 0")
        a.vmem("buffer_load_dword v19, v18, s[64:67], s48 offen sc1", "poll")
    a("s_lshl_b32 s56, s47, 15")
    a("s_lshl_b32 s49, s20, 12")
    a("s_add_u32 s56, s56, s49")
    a(f"s_add_u32 s56, s56, {WS_PART}")
    a("s_and_b32 s52, s47, 31")
    a("s_lshr_b32 s53, s47, 5")
    a("s_lshl_b32 s53, s53, 2")
    a("s_mov_b32 s55, 0")
    def early():
        a("s_cmp_eq_u32 s43, 0")
        a("s_cbranch_scc0 L_k4_noearly")
        for tt in range(4):
            a(f"buffer_load_dwordx4 v[{176+4*tt}:{179+4*tt}], v20, s[16:19], s{36 + (tt>>1)} offen offset:{2048*(tt&1)}")
        a("v_readfirstlane_b32 s54, v19")
        a("s_lshr_b32 s54, s54, s52")
        a("s_and_b32 s55, s54, 1")
        a("s_cbranch_scc0 L_k4_noearly")
        for i in range(4):
            a(f"buffer_load_dwordx4 v[{160+4*i}:{163+4*i}], v20, s[16:19], s56 offen offset:{1024*i} sc1")
        a.label("L_k4_noearly")
    C.period(37, dma=False, extra={8: [poll_issue]})
    C.period(38, dma=False, extra={16: [lambda: a.wait_vm("poll")]})
    C.period(39, dma=False, last=True, extra={0: [early]})
    for f in C.mfmas(39): f()
    stamp(a, 5)
    a("s_barrier")
    a("s_nop 3")
    a("s_lshl_b32 s48, s20, 13")
    a("v_add_u32 v21, s48, v20")
    a("s_xor_b32 s48, s20, 4")
    a("s_lshl_b32 s48, s48, 13")
    a("v_add_u32 v22, s48, v20")
    a("s_cmp_eq_u32 s23, 0")
    a("s_cbranch_scc0 L_k4_x1")
    for i in range(8): a(f"ds_write_b128 v21, v[{K_ACC+32+4*i}:{K_ACC+35+4*i}] offset:{1024*i}")
    a("s_branch L_k4_x2")
    a.label("L_k4_x1")
    for i in range(8): a(f"ds_write_b128 v21, v[{K_ACC+4*i}:{K_ACC+3+4*i}] offset:{1024*i}")
    a("s_waitcnt lgkmcnt(0)")
    for i in range(32): a(f"v_mov_b32 v{K_ACC+i}, v{K_ACC+32+i}")
    a.label("L_k4_x2")
    a("s_waitcnt lgkmcnt(0)")
    a("s_barrier")
    for i in range(8): a(f"ds_read_b128 v[{K_ACC+32+4*i}:{K_ACC+35+4*i}], v22 offset:{1024*i}")
    a("s_cmp_eq_u32 s43, 0")
    a("s_cbranch_scc1 L_k4_main_ep")
    a("s_waitcnt lgkmcnt(0)")
    for i in range(32): a(f"v_add_f32 v{K_ACC+i}, v{K_ACC+i}, v{K_ACC+32+i}")
    for tt in range(4):
        t = 32 + 4 * tt
        d0, d1 = K_ACC + 4 * tt, K_ACC + 4 * (4 + tt)
        a(f"v_cvt_pk_bf16_f32 v{t}, v{d0}, v{d0+1}")
        a(f"v_cvt_pk_bf16_f32 v{t+1}, v{d0+2}, v{d0+3}")
        a(f"v_cvt_pk_bf16_f32 v{t+2}, v{d1}, v{d1+1}")
        a(f"v_cvt_pk_bf16_f32 v{t+3}, v{d1+2}, v{d1+3}")
        a(f"buffer_store_dwordx4 v[{t}:{t+3}], v20, s[16:19], s56 offen offset:{1024*tt} sc1")
    a("s_waitcnt vmcnt(0)")
    a("s_barrier")
    a("s_cmp_lg_u32 s20, 0")
    a("s_cbranch_scc1 L_k4_fin")
    a("s_and_b32 s48, s47, 31")
    a("s_lshl_b32 s48, 1, s48")
    a("v_mov_b32 v19, s48")
    a("s_lshr_b32 s48, s47, 5")
    a("s_lshl_b32 s48, s48, 2")
    a("v_mov_b32 v18, 0")
    a("s_mov_b64 exec, 1")
    a("buffer_atomic_or v19, v18, s[64:67], s48 offen")
    a("s_branch L_k4_fin")
    a.label("L_k4_main_ep")
    a("s_cmp_eq_u32 s55, 1")
    a("s_cbranch_scc1 L_k4_have")
    a("buffer_load_dword v19, v18, s[64:67], s53 offen sc1")
    a.label("L_k4_have")
    a("s_waitcnt vmcnt(4) lgkmcnt(0)")
    a("s_waitcnt vmcnt(1)") if False else None
    for i in range(32): a(f"v_add_f32 v{K_ACC+i}, v{K_ACC+i}, v{K_ACC+32+i}")
    a("s_cmp_eq_u32 s55, 1")
    a("s_cbranch_scc1 L_k4_have2")
    a("s_waitcnt vmcnt(1)")
    a.label("L_k4_have2")
    for tt in range(4):
        for cl in range(2):
            for w in range(2):
                src = 176 + 4 * tt + 2 * cl + w
                d = K_ACC + 4 * (4 * cl + tt) + 2 * w
                a(f"v_lshlrev_b32 v48, 16, v{src}")
                a(f"v_and_b32 v49, 0xffff0000, v{src}")
                a(f"v_add_f32 v{d}, v{d}, v48")
                a(f"v_add_f32 v{d+1}, v{d+1}, v49")
    a("s_cmp_eq_u32 s55, 1")
    a("s_cbranch_scc1 L_k4_have3")
    a.label("L_k4_poll")
    a("s_waitcnt vmcnt(0)")
    a("v_readfirstlane_b32 s54, v19")
    a("s_lshr_b32 s54, s54, s52")
    a("s_and_b32 s54, s54, 1")
    a("s_cbranch_scc1 L_k4_pollok")
    a("s_sleep 1")
    a("buffer_load_dword v19, v18, s[64:67], s53 offen sc1")
    a("s_branch L_k4_poll")
    a.label("L_k4_pollok")
    for i in range(4):
        a(f"buffer_load_dwordx4 v[{160+4*i}:{163+4*i}], v20, s[16:19], s56 offen offset:{1024*i} sc1")
    a.label("L_k4_have3")
    a("v_lshrrev_b32 v48, 1, v3")
    a("v_and_b32 v49, 1, v3")
    a("v_lshl_add_u32 v48, v49, 1, v48")
    a("v_lshlrev_b32 v48, 4, v48")
    a("v_lshl_add_u32 v48, v2, 11, v48")
    a("s_lshl_b32 s50, s46, 11")
    a("s_lshl_b32 s51, s44, 8")
    a("s_add_u32 s50, s50, s51")
    a("s_lshl_b32 s51, s22, 7")
    a("s_add_u32 s50, s50, s51")
    a("s_lshl_b32 s51, s23, 6")
    a("s_add_u32 s50, s50, s51")
    a("s_waitcnt vmcnt(0)")
    for tt in range(4):
        for cl in range(2):
            for w in range(2):
                src = 160 + 4 * tt + 2 * cl + w
                d = K_ACC + 4 * (4 * cl + tt) + 2 * w
                a(f"v_lshlrev_b32 v50, 16, v{src}")
                a(f"v_and_b32 v51, 0xffff0000, v{src}")
                a(f"v_fma_f32 v{d}, v{d}, v{25+2*tt}, v50")
                a(f"v_fma_f32 v{d+1}, v{d+1}, v{25+2*tt}, v51")
        t = 32 + 4 * tt
        d0, d1 = K_ACC + 4 * tt, K_ACC + 4 * (4 + tt)
        a(f"v_cvt_pk_bf16_f32 v{t}, v{d0}, v{d0+1}")
        a(f"v_cvt_pk_bf16_f32 v{t+1}, v{d0+2}, v{d0+3}")
        a(f"v_cvt_pk_bf16_f32 v{t+2}, v{d1}, v{d1+1}")
        a(f"v_cvt_pk_bf16_f32 v{t+3}, v{d1+2}, v{d1+3}")
        a("s_nop 1")
        a(f"v_permlane16_swap_b32 v{t}, v{t+2}")
        a(f"v_permlane16_swap_b32 v{t+1}, v{t+3}")
        a("s_nop 1")
        a(f"buffer_store_dwordx4 v[{t}:{t+3}], v48, s[8:11], s50 offen")
        a("s_add_u32 s50, s50, 32768")
    a.label("L_k4_fin")
    if gen2.STAMP: a("s_mov_b64 exec, -1"); a("s_waitcnt vmcnt(0)")
    stamp(a, 6); stamp(a, 7); stamp_dump(a, 8, 3)
    a.label("L_k4_end")
    a("s_endpgm")
    a.label("L_k4_sw_dma")
    if WOHALF:
        for tt in range(4):
            a(f"buffer_load_dwordx4 v[{160+4*tt}:{163+4*tt}], v20, s[16:19], s{36 + (tt>>1)} offen offset:{2048*(tt&1)}")
    a(f"v_mov_b32 v{K_XD}, v7")
    a("s_mov_b32 s12, s4")
    a("s_mov_b32 s13, s5")
    a(f"s_mov_b32 s14, {2*MB}")
    a(f"s_mov_b32 s24, {(16-NA2)*4096}")
    a(f"s_mov_b32 s25, {(16-NA2)*64*2048}")
    a("s_branch L_k4_nosw")
    a.label("L_k4_sw_scale")
    a("s_nop 7")
    for c in range(4):
        for tt in range(4):
            for i in range(4):
                d = K_ACC + 4 * (4 * c + tt) + i
                a(f"v_mul_f32 v{d}, v{d}, v{25+2*tt}")
    if not WOHALF:
        a("s_nop 1")
        a("s_branch L_k4_nosw")
    a("s_cmp_eq_u32 s23, 0")
    a("s_cbranch_scc0 L_k4_pa1")
    for kh in range(2):
        if kh: a.label("L_k4_pa1")
        for tt in range(4):
            for cl in range(2):
                for w in range(2):
                    src = 160 + 4 * tt + 2 * cl + w
                    d = K_ACC + 4 * (4 * (2 * kh + cl) + tt) + 2 * w
                    a(f"v_lshlrev_b32 v21, 16, v{src}")
                    a(f"v_and_b32 v22, 0xffff0000, v{src}")
                    a(f"v_add_f32 v{d}, v{d}, v21")
                    a(f"v_add_f32 v{d+1}, v{d+1}, v22")
        a("s_nop 1")
        a("s_branch L_k4_nosw")
    return name, a.text(), dict(grid=256, block=512, lds=4 * SK, vgpr=192)
```

```python
import sys
import gen2
from gen2 import build
from k1gen import k1
from k2gen import k2
from k34gen import k3, k4
if "--stamp" in sys.argv: gen2.STAMP = True
build([k1(), k2(), k3(), k4()], sys.argv[1])
```

```python
from asmlib import *
import os
LDF = os.environ.get('LDFLAG', '')
S_SRDX = 8; S_SRDW = 12
S_SRDL = 96
S_LOFF = 24
S_LOFF2 = 25
S_SLOT = 26; S_DELTA = 27; S_CNT = 28
S_M0B = 29
S_GSTR = 30
S_LSTEP = 31
S_TMP = 32
V_LD = 4
V_PFD = 8
V_XRD = 10
V_WRD = 12
V_CSR = 21; V_CSD = 224; V_CSA = 232
V_WF = 32; V_ACC = 64; V_XF = 128
SLOT = 49152
PFD = int(os.environ.get("PFD", "6"))

def xf(buf, tt, ks): return V_XF + 32 * buf + 8 * tt + 4 * ks
def wf(c, ks): return V_WF + 8 * c + 4 * ks
def acc(tt, c): return V_ACC + 4 * (4 * c + tt)

class Core16:
    def __init__(self, a, xmode, swap=False, nsteps=16, tag="", role="L", xflag="", colsum=False):
        self.xflag = xflag; self.colsum = colsum
        self.a = a; self.xmode = xmode; self.swap = swap; self.nsteps = nsteps; self.tag = tag; self.role = role

    def dma_ops(self, stage):
        a = self.a
        if self.role == "P":
            return [lambda: a.vmem(f"buffer_load_dword v{V_PFD}, v{V_LD}, s[{S_SRDL}:{S_SRDL+3}], s{S_LOFF} offen", "pf"),
                    lambda: a(f"s_add_u32 s{S_LOFF}, s{S_LOFF}, s{S_LSTEP}")]
        if self.role == "S":
            xstep = 128 if self.xmode == "row" else 4096
            ops = [lambda: a(f"s_add_u32 m0, s{S_SLOT}, s{S_M0B}")]
            for j in range(4):
                v = V_LD + (j if self.xmode == "row" else 0)
                ops.append(lambda j=j, v=v: a.vmem(f"buffer_load_dwordx4 v{v}, s[{S_SRDX}:{S_SRDX+3}], s{S_LOFF} offen offset:{1024*j} {self.xflag}lds", ("st", stage)))
            ops.append(lambda: a(f"s_add_u32 m0, s{S_SLOT}, s{S_GSTR}"))
            for j in range(2):
                ops.append(lambda j=j: a.vmem(f"buffer_load_dwordx4 v{8+j}, s[{S_SRDW}:{S_SRDW+3}], s{S_LOFF2} offen offset:{1024*j} {LDF}lds", ("st", stage)))
            ops.append(lambda: a(f"s_add_u32 s{S_LOFF}, s{S_LOFF}, {xstep}"))
            ops.append(lambda: a(f"s_add_u32 s{S_LOFF2}, s{S_LOFF2}, s{S_LSTEP}"))
            return ops
        ops = [lambda: a(f"s_add_u32 m0, s{S_SLOT}, s{S_M0B}"),
               lambda: a(f"s_add_u32 s{S_LOFF2}, s{S_LOFF}, s{S_GSTR}")]
        for g in range(2):
            if g: ops.append(lambda: a("s_add_u32 m0, m0, 4096"))
            for j in range(4):
                ops.append(lambda j=j, g=g: a.vmem(f"buffer_load_dwordx4 v{V_LD+j}, s[{S_SRDL}:{S_SRDL+3}], s{S_LOFF2 if g else S_LOFF} offen offset:{1024*j} {LDF}lds", ("st", stage)))
        ops.append(lambda: a(f"s_add_u32 s{S_LOFF}, s{S_LOFF}, s{S_LSTEP}"))
        return ops

    def xr(self, buf, tt, ks):
        a = self.a
        d = xf(buf, tt, ks)
        if self.xmode == "row":
            return lambda: a.ds(f"ds_read_b128 v[{d}:{d+3}], v{V_XRD+ks} offset:{2048*tt}", ("x", buf, tt, ks))
        return lambda: a.ds(f"ds_read_b128 v[{d}:{d+3}], v{V_XRD} offset:{2048*tt+1024*ks}", ("x", buf, tt, ks))

    def wr(self, c, ks, r):
        a = self.a
        off = 8192 * ks + (1024 * r if self.xmode == "row" else 4096 * r)
        d = wf(c, ks) + 2 * r
        return lambda: a.ds(f"ds_read_b64_tr_b16 v[{d}:{d+1}], v{V_WRD+c} offset:{off}", ("w", c, ks))

    def reads(self, buf):
        o = [self.xr(buf, 0, 0), self.wr(0, 0, 0), self.wr(0, 0, 1), self.xr(buf, 0, 1), self.wr(0, 1, 0), self.wr(0, 1, 1)]
        for tt in range(1, 4):
            o += [self.xr(buf, tt, 0), self.xr(buf, tt, 1)]
        for c in range(1, 4):
            o += [self.wr(c, 0, 0), self.wr(c, 0, 1), self.wr(c, 1, 0), self.wr(c, 1, 1)]
        return o

    def group(self, buf, c, first=False):
        a = self.a
        ops = []
        for tt in range(4):
            for ks in range(2):
                def f(tt=tt, ks=ks):
                    a.wait_lgkm(("x", buf, tt, ks), ("w", c, ks))
                    A, B = wf(c, ks), xf(buf, tt, ks)
                    if self.swap: A, B = B, A
                    d = acc(tt, c)
                    cc = "0" if (first and ks == 0) else f"v[{d}:{d+3}]"
                    a(f"v_mfma_f32_16x16x32_bf16 v[{d}:{d+3}], v[{A}:{A+3}], v[{B}:{B+3}], {cc}")
                ops.append(f)
        return ops

    def bump_ops(self):
        a = self.a
        n = 2 if self.xmode == "row" else 1
        ops = [lambda i=i: a(f"v_add_u32 v{V_XRD+i}, s{S_DELTA}, v{V_XRD+i}") for i in range(n)]
        ops += [lambda i=i: a(f"v_add_u32 v{V_WRD+i}, s{S_DELTA}, v{V_WRD+i}") for i in range(4)]
        if self.colsum: ops.append(lambda: a(f"v_add_u32 v{V_CSR}, s{S_DELTA}, v{V_CSR}"))
        return ops

    def period(self, s, dma, last=False, extra=None, loop_tail=None, spread=None, prebar=None):
        a = self.a
        first = (s == 0)
        buf = s % 2
        sl = [[] for _ in range(33)]
        rd = self.reads(buf)
        if first:
            for i, o in enumerate(rd): sl[16 if i < 12 else 16 + (i - 11)].append(o)
        else:
            for i, o in enumerate(rd): sl[i + 1].append(o)
        if dma:
            d = self.dma_ops(s + 2)
            if self.role == "P": pos = [16 if first else 2] * 2
            elif self.role == "S":
                pos = [16] * 10 if first else [0, 2, 7, 12, 17, 21, 22, 27, 28, 28]
                if prebar and not first and os.environ.get("EARLYD", "1") == "1": pos = [0, 1, 2, 4, 5, 6, 7, 9, 10, 10]
            else: pos = [16] * 12 if first else [0, 0, 1, 4, 8, 11, 13, 15, 18, 22, 25, 26]
            for p, o in zip(pos, d): sl[p].append(o)
        adv = [lambda: a(f"s_add_u32 s{S_SLOT}, s{S_SLOT}, {SLOT}"),
               lambda: a(f"s_cmp_eq_u32 s{S_SLOT}, {3*SLOT}"),
               lambda: a(f"s_cselect_b32 s{S_SLOT}, 0, s{S_SLOT}"),
               lambda: a(f"s_cmp_eq_u32 s{S_SLOT}, {2*SLOT}"),
               lambda: a(f"s_cselect_b32 s{S_DELTA}, s{S_TMP}, s{S_TMP+1}")]
        if not last:
            sl[29] += adv
            b = self.bump_ops()
            sl[30] += b[:3]; sl[31] += b[3:]
        if loop_tail: sl[31] += loop_tail
        for k, v in (extra or {}).items(): sl[k] += v
        if spread:
            lo = 17 if first else 1
            n = len(spread)
            for i, o in enumerate(spread): sl[lo + (i * (28 - lo)) // n].append(o)
        if self.colsum:
            lo = 16 if first else 0
            sl[lo].append(lambda: a.ds(f"ds_read_b128 v[{V_CSD}:{V_CSD+3}], v{V_CSR}", "csd"))
            sl[lo].append(lambda: a.ds(f"ds_read_b128 v[{V_CSD+4}:{V_CSD+7}], v{V_CSR} offset:8192", "csd"))
            ops = [lambda: a.wait_lgkm("csd")]
            for j in range(8):
                x = V_CSD + j; q = V_CSA + 2 * (j % 4)
                ops += [lambda x=x: a(f"v_lshlrev_b32 v22, 16, v{x}"), lambda x=x: a(f"v_and_b32 v23, 0xffff0000, v{x}"),
                        lambda q=q: a(f"v_add_f32 v{q}, v{q}, v22"), lambda q=q: a(f"v_add_f32 v{q+1}, v{q+1}, v23")]
            l2 = lo + 6
            for i, o in enumerate(ops): sl[l2 + (i * (29 - l2)) // len(ops)].append(o)
        mf = self.group(1 - buf, 2, first=(s == 1)) + self.group(1 - buf, 3, first=(s == 1)) + self.group(buf, 0, first) + self.group(buf, 1, first)
        for i in range(33):
            for o in sl[i]: o()
            if i < 32 and not (first and i < 16): mf[i]()
        if not last:
            n = a._need(a.vm, [("st", s + 1)])
            if prebar: n = 0
            if n is None:
                a.wait_all(vm=False)
            else:
                a(f"s_waitcnt vmcnt({n}) lgkmcnt(0)")
                a.vm = a.vm[len(a.vm) - n:] if n else []
                a.lgkm = []
            a("s_barrier")

    def prologue_dma(self):
        a = self.a
        if self.role == "P":
            a(f"s_lshl_b32 s{S_TMP}, s{S_LSTEP}, 1")
            a(f"s_add_u32 s{S_LOFF}, s{S_LOFF}, s{S_TMP}")
            for st in range(PFD):
                for o in self.dma_ops(0): o()
            a(f"s_mov_b32 s{S_SLOT}, {2*SLOT}")
            return
        for st in (0, 1):
            for o in self.dma_ops(st): o()
            a(f"s_add_u32 s{S_SLOT}, s{S_SLOT}, {SLOT}")

    def mainloop(self, hooks=None, npeel=2, ntail=0):
        a = self.a
        hooks = hooks or {}
        N = self.nsteps
        L = self.role != "P"
        ND = 6 if self.role == "S" else 8
        assert N % 2 == 0 and npeel % 2 == 0 and N >= npeel + 4
        a(f"s_mov_b32 s{S_TMP}, {(-2*SLOT) & 0xffffffff}")
        a(f"s_mov_b32 s{S_TMP+1}, {SLOT}")
        a.wait_vm(("st", 0))
        a("s_barrier")
        if "start" in hooks: hooks["start"]()
        for s in range(npeel):
            self.period(s, dma=True, spread=(hooks[f"spread{s}"]() if f"spread{s}" in hooks else None), prebar=hooks.get(f"prebar{s}"))
            if f"after{s}" in hooks: hooks[f"after{s}"]()
        lab = a.newlabel("loop" + self.tag + self.role)
        a(f"s_mov_b32 s{S_CNT}, {(N-2-npeel-ntail)//2}")
        a.vm = [("st", 3)] * ND if L else []
        a.lgkm = []
        a.lines.append(".p2align 6")
        a.label(lab)
        self.period(2, dma=True)
        lt = [lambda: a(f"s_sub_u32 s{S_CNT}, s{S_CNT}, 1"), lambda: a(f"s_cmp_lg_u32 s{S_CNT}, 0")]
        self.period(3, dma=True, loop_tail=lt)
        if L: assert a.vm == [("st", 5)] * ND, a.vm
        a(f"s_cbranch_scc1 {lab}")
        a.vm = [("st", N - 1 - ntail)] * ND if L else []
        for s in range(N - 2 - ntail, N - 2):
            self.period(s, dma=True, spread=(hooks[f"spread{s}"]() if f"spread{s}" in hooks else None), prebar=hooks.get(f"prebar{s}"),
                        extra=({32: [hooks[f"end{s}"]]} if f"end{s}" in hooks else None))
            if f"after{s}" in hooks: hooks[f"after{s}"]()
        if "pre_tail" in hooks: hooks["pre_tail"]()
        self.period(N - 2, dma=False, extra=({32: [hooks["pre_last"]]} if "pre_last" in hooks else None),
                    spread=(hooks["spreadN2"]() if "spreadN2" in hooks else None))
        self.period(N - 1, dma=False, last=True, extra=({0: [hooks["last_start"]]} if "last_start" in hooks else None),
                    spread=(hooks["spreadN1"]() if "spreadN1" in hooks else None))
        fin = self.group((N - 1) % 2, 2) + self.group((N - 1) % 2, 3)
        fo = hooks["final"]() if "final" in hooks else []
        for o in interleave(fin, fo): o()

def read_addr_setup16(a, xmode):
    a("v_bfe_u32 v17, v1, 2, 2")
    if xmode == "row":
        a("v_lshl_add_u32 v18, v3, 3, v17")
        a("v_and_b32 v19, 1, v3")
        a("v_lshl_add_u32 v19, v19, 2, v17")
    else:
        a("v_lshl_add_u32 v18, v3, 2, v17")
        a("v_and_b32 v19, 7, v18")
    a("s_lshl_b32 s33, s22, 2")
    a("v_xor_b32 v19, s33, v19")
    a("v_lshlrev_b32 v18, 8, v18")
    a("v_lshl_add_u32 v18, v19, 5, v18")
    a("v_and_b32 v20, 3, v1")
    a("v_lshl_add_u32 v18, v20, 3, v18")
    a(f"v_add_u32 v{V_WRD}, 32768, v18")
    for c in range(1, 4): a(f"v_xor_b32 v{V_WRD+c}, {c << 5}, v{V_WRD}")
    if xmode == "row":
        a("s_lshl_b32 s33, s21, 6")
        a("v_add_u32 v16, s33, v2")
        a("v_lshlrev_b32 v16, 7, v16")
        a("v_lshrrev_b32 v17, 1, v2")
        a("v_xor_b32 v17, v17, v3")
        a(f"v_lshl_add_u32 v{V_XRD}, v17, 4, v16")
        a(f"v_xor_b32 v{V_XRD+1}, 64, v{V_XRD}")
    else:
        a("s_lshl_b32 s33, s21, 13")
        a("v_lshlrev_b32 v16, 4, v1")
        a(f"v_add_u32 v{V_XRD}, s33, v16")
    a(f"s_mov_b32 s{S_SLOT}, 0")

def loader_setup16(a, xmode, s_ldw, s_col0b, s_xbase, kd, pf, uniq):
    a("s_cmp_ge_u32 s20, 6")
    a(f"s_cbranch_scc1 L_ldP_{uniq}")
    a("s_cmp_ge_u32 s20, 4")
    a(f"s_cbranch_scc1 L_ldW_{uniq}")
    a("s_mov_b32 s34, 0")
    a(f"s_lshl_b32 s{S_M0B}, s20, 13")
    a(f"s_mov_b32 s{S_LOFF}, 0")
    if xmode == "row":
        a("v_lshrrev_b32 v16, 3, v1")
        a("s_lshl_b32 s33, s20, 6")
        a(f"s_add_u32 s33, s33, s{s_xbase}")
        a("v_add_u32 v16, s33, v16")
        a("v_lshlrev_b32 v16, 11, v16")
        a("v_and_b32 v17, 7, v1")
        a("v_xor_b32 v17, v17, v3")
        a("v_xor_b32 v18, 4, v17")
        a("v_lshl_add_u32 v17, v17, 4, v16")
        a("v_lshl_add_u32 v18, v18, 4, v16")
        for j in range(4):
            a(f"v_add_u32 v{V_LD+j}, {4096 + j*8*2048 - j*1024}, v{17 if j % 2 == 0 else 18}")
        a(f"s_mov_b32 s{S_GSTR}, {32*2048}")
        a(f"s_movk_i32 s{S_LSTEP}, 128")
    else:
        a("s_lshl_b32 s33, s20, 1")
        a(f"s_add_u32 s33, s33, s{s_xbase}")
        a(f"s_mul_i32 s33, s33, {kd*64}")
        a("v_lshlrev_b32 v16, 4, v1")
        for j in range(4): a(f"v_add_u32 v{V_LD+j}, s33, v16")
        a(f"s_mov_b32 s{S_GSTR}, {kd*64}")
        a(f"s_movk_i32 s{S_LSTEP}, 4096")
    a(f"s_branch L_ldE_{uniq}")
    a.label(f"L_ldW_{uniq}")
    a("s_mov_b32 s34, 1")
    a("s_sub_u32 s33, s20, 4")
    a(f"s_lshl_b32 s{S_M0B}, s33, 13")
    a(f"s_add_u32 s{S_M0B}, s{S_M0B}, 32768")
    a(f"s_mov_b32 s{S_LOFF}, 0")
    a("s_lshl_b32 s33, s33, 5")
    a("v_add_u32 v16, s33, v3")
    a(f"v_mul_lo_u32 v16, v16, s{s_ldw}")
    a(f"v_add_u32 v16, s{s_col0b}, v16")
    a("v_lshlrev_b32 v17, 1, v3")
    a("v_xor_b32 v17, v2, v17")
    a("v_xor_b32 v18, 8, v17")
    a("v_lshl_add_u32 v17, v17, 4, v16")
    a("v_lshl_add_u32 v18, v18, 4, v16")
    a(f"s_lshl_b32 s33, s{s_ldw}, 2")
    a("s_sub_u32 s33, s33, 1024")
    for j in range(4):
        bit = ((j >> 1) & 1) if xmode == "row" else (j & 1)
        src = 18 if bit else 17
        if j == 0: a(f"v_mov_b32 v{V_LD}, v{src}")
        else:
            a(f"s_mul_i32 s{S_GSTR}, s33, {j}")
            a(f"v_add_u32 v{V_LD+j}, s{S_GSTR}, v{src}")
    a(f"s_lshl_b32 s{S_GSTR}, s{s_ldw}, 4")
    a(f"s_lshl_b32 s{S_LSTEP}, s{s_ldw}, 6")
    a(f"s_branch L_ldE_{uniq}")
    a.label(f"L_ldP_{uniq}")
    for j in range(1, 4): a(f"v_mov_b32 v{V_LD+j}, 0")
    a(f"s_mov_b32 s{S_M0B}, 0")
    a(f"s_mov_b32 s{S_GSTR}, 0")
    pf()
    a.label(f"L_ldE_{uniq}")

def loader_srd(a):
    a("s_cmp_eq_u32 s34, 0")
    a(f"s_cselect_b32 s{S_SRDL}, s8, s12")
    a(f"s_cselect_b32 s{S_SRDL+1}, s9, s13")
    a(f"s_cselect_b32 s{S_SRDL+2}, s10, s14")
    a(f"s_mov_b32 s{S_SRDL+3}, 0x00020000")

def sym_setup16(a0, xmode, s_ldw, s_col0b, s_xbase, kd, remap=None):
    import re
    def a(s):
        if remap:
            s = re.sub(r"\bv(\d+)\b", lambda m: "v%d" % remap.get(int(m.group(1)), int(m.group(1))), s)
        a0(s)
    a("v_lshlrev_b32 v18, 1, v3")
    a("v_xor_b32 v17, v2, v18")
    if xmode == "row":
        a("s_and_b32 s33, s20, 1")
        a("s_lshl_b32 s33, s33, 3")
        a("v_xor_b32 v17, s33, v17")
        a("v_mov_b32 v18, v17")
    else:
        a("v_xor_b32 v18, 8, v17")
    a("s_lshl_b32 s33, s20, 3")
    a("v_add_u32 v16, s33, v3")
    a(f"v_mul_lo_u32 v16, v16, s{s_ldw}")
    a(f"v_add_u32 v16, s{s_col0b}, v16")
    a("v_lshl_add_u32 v8, v17, 4, v16")
    a(f"s_lshl_b32 s33, s{s_ldw}, 2")
    a("s_sub_u32 s33, s33, 1024")
    a("v_lshl_add_u32 v18, v18, 4, v16")
    a("v_add_u32 v9, s33, v18")
    a(f"s_lshl_b32 s{S_LSTEP}, s{s_ldw}, 6")
    a(f"s_lshl_b32 s{S_M0B}, s20, 12")
    a(f"s_lshl_b32 s{S_GSTR}, s20, 11")
    a(f"s_add_u32 s{S_GSTR}, s{S_GSTR}, 32768")
    a(f"s_mov_b32 s{S_LOFF}, 0")
    a(f"s_mov_b32 s{S_LOFF2}, 0")
    if xmode == "row":
        a("v_lshrrev_b32 v16, 3, v1")
        a("s_lshl_b32 s33, s20, 5")
        a(f"s_add_u32 s33, s33, s{s_xbase}")
        a("v_add_u32 v16, s33, v16")
        a("v_lshlrev_b32 v16, 11, v16")
        a("v_and_b32 v17, 7, v1")
        a("v_xor_b32 v17, v17, v3")
        a("v_xor_b32 v18, 4, v17")
        a("v_lshl_add_u32 v17, v17, 4, v16")
        a("v_lshl_add_u32 v18, v18, 4, v16")
        for j in range(4):
            a(f"v_add_u32 v{V_LD+j}, {4096 + j*8*2048 - j*1024}, v{17 if j % 2 == 0 else 18}")
    else:
        a(f"s_add_u32 s33, s{s_xbase}, s20")
        a(f"s_mul_i32 s33, s33, {kd*64}")
        a("v_lshlrev_b32 v16, 4, v1")
        a(f"v_add_u32 v{V_LD}, s33, v16")
```

```python
import sys, math, os, struct
from asmlib import *
from gemm16 import *

MB = 1 << 20
COMPACT = os.environ.get("COMPACT", "0") == "1"
if COMPACT:
    WS_KV = 0; WS_HS = 8 * MB; WS_H3 = 0; WS_Q = 14 * MB; WS_X1 = 18 * MB; WS_O = 22 * MB; WS_ST = 26 * MB; WS_PART = 28 * MB
else:
    WS_Q = 0; WS_KV = 4 * MB; WS_HS = 12 * MB; WS_X1 = 16 * MB; WS_O = 20 * MB; WS_H3 = 24 * MB; WS_ST = 40 * MB; WS_PART = 44 * MB
WS_CS1 = WS_ST + 720896
WS_CS3 = WS_ST + 131072
WS_G = WS_ST + 393216
WS_P1 = WS_ST + 458752
WS_CSF = WS_ST + 65536
WS_ST1 = WS_ST + 98304
WS_STAMP = WS_ST + MB
WS_FLAG = WS_ST + 917504
WS_SIZE = 56 * MB
WS_PA = 48 * MB
ST_FLAG = os.environ.get("STFLAG", "sc1")

def f2u(x): return struct.unpack("<I", struct.pack("<f", x))[0]
QSCALE = math.log2(math.e) / math.sqrt(32.0)
GC1 = -2.0 * math.log2(math.e) * math.sqrt(2.0 / math.pi)
GC2 = GC1 * 0.044715
STAMP = False

def srd(a, d, base, nbytes):
    a(f"s_mov_b32 s{d}, s{base}")
    a(f"s_mov_b32 s{d+1}, s{base+1}")
    a(f"s_mov_b32 s{d+2}, {nbytes}")
    a(f"s_mov_b32 s{d+3}, 0x00020000")

def stamp(a, idx, rt=False):
    if not STAMP or rt: return
    a(f"s_memtime s[90:91]")
    a(f"s_memrealtime s[92:93]")
    a("s_waitcnt lgkmcnt(0)")
    a(f"s_mov_b32 s{74+idx}, s90")
    a(f"s_mov_b32 s{82+idx}, s92")
    a.lgkm = []

def stamp_dump(a, n, kidx=0):
    if not STAMP: return
    lab = a.newlabel("nodump")
    a("s_cmp_lg_u32 s20, 0")
    a(f"s_cbranch_scc1 {lab}")
    a("s_lshl_b32 s92, s2, 6")
    a(f"s_add_u32 s92, s92, {WS_STAMP + kidx*65536}")
    a("v_mov_b32 v16, 0")
    for i in range(16):
        a(f"v_mov_b32 v17, s{74+i}")
        a(f"buffer_store_dword v17, v16, s[16:19], s92 offen offset:{4*i}")
    a.label(lab)

CODEPF = os.environ.get("CODEPF", "1")
def code_prefetch(a, kname, nloads, allcode=False, vd=8, va=9):
    if CODEPF == "0": return
    a("s_getpc_b64 s[92:93]")
    a.label(f"L_pc_{kname}")
    end = "L_code_end" if allcode else f"L_end_{kname}"
    a(f"s_mov_b32 s94, {end}-L_pc_{kname}")
    a("s_mov_b32 s95, 0x00020000")
    a(f"v_lshlrev_b32 v{va}, 6, v0")
    for i in range(nloads):
        a.vmem(f"buffer_load_dword v{vd}, v{va}, s[92:95], 0 offen", "cpf")
        if i < nloads - 1: a(f"v_add_u32 v{va}, 32768, v{va}")

def lane_setup(a):
    a("v_and_b32 v1, 63, v0")
    a("v_lshrrev_b32 v2, 6, v0")
    a("s_nop 0")
    a("v_readfirstlane_b32 s20, v2")
    a("v_and_b32 v2, 15, v1")
    a("v_lshrrev_b32 v3, 4, v1")
    a("s_lshr_b32 s21, s20, 1")
    a("s_and_b32 s22, s20, 1")

def wave_sum(a, regs):
    pad = max(0, 3 - len(regs))
    steps = ["row_shr:1 row_mask:0xf bank_mask:0xf bound_ctrl:0", "row_shr:2 row_mask:0xf bank_mask:0xf bound_ctrl:0",
             "row_shr:4 row_mask:0xf bank_mask:0xf bound_ctrl:0", "row_shr:8 row_mask:0xf bank_mask:0xf bound_ctrl:0",
             "row_bcast:15 row_mask:0xa bank_mask:0xf", "row_bcast:31 row_mask:0xc bank_mask:0xf"]
    a("s_nop 1")
    for st in steps:
        for r in regs:
            a(f"v_add_f32_dpp v{r}, v{r}, v{r} {st}")
        if pad: a(f"s_nop {pad-1}")

def gelu_block(a, regs, c1, c2, dd, tmp, scale=None):
    n = len(regs)
    P = lambda r: f"v[{r}:{r+1}]"
    for i in range(0, n, 2): a(f"v_pk_mul_f32 {P(tmp[i])}, {P(regs[i])}, {P(regs[i])}")
    for i in range(0, n, 2): a(f"v_pk_fma_f32 {P(tmp[i])}, {P(tmp[i])}, {P(c2)}, {P(c1)}")
    for i in range(0, n, 2): a(f"v_pk_mul_f32 {P(tmp[i])}, {P(tmp[i])}, {P(regs[i])}")
    for i in range(n): a(f"v_exp_f32 v{tmp[i]}, v{tmp[i]}")
    if scale is not None:
        for i in range(0, n, 2): a(f"v_pk_mul_f32 {P(regs[i])}, {P(regs[i])}, {P(scale)}")
    a("s_nop 0")
    for i in range(0, n, 2): a(f"v_pk_fma_f32 {P(tmp[i])}, {P(tmp[i])}, {P(dd)}, {P(dd)}")
    for i in range(n): a(f"v_rcp_f32 v{tmp[i]}, v{tmp[i]}")
    a("s_nop 0")
    for i in range(0, n, 2): a(f"v_pk_mul_f32 {P(regs[i])}, {P(regs[i])}, {P(tmp[i])}")

LDS_X = 3 * SLOT

def ln_gelu_epilogue(a, s_dst_base, kd, v_voff, v_mask, stats_regs, cs_lds, scale=None, tag=None):
    if cs_lds is None:
        a("s_lshl_b32 s33, s22, 8")
        a(f"s_add_u32 s33, s33, {LDS_X}")
        a(f"v_lshl_add_u32 v16, v3, 4, s33")
    elif cs_lds != "regs":
        a(f"v_lshl_add_u32 v16, v3, 4, s{cs_lds}")
    for c in range(4 if cs_lds != "regs" else 0):
        a.ds(f"ds_read_b128 v[{192+4*c}:{195+4*c}], v16 offset:{64*c}", "cs")
    for tt in range(4):
        m, r = stats_regs[tt]
        a(f"v_mul_f32 v224, {f2u(GC1)}, v{r}")
        a(f"v_mul_f32 v226, v{r}, v{r}")
        a(f"v_rcp_f32 v228, v{r}")
        a(f"v_mul_f32 v226, v226, v224")
        a(f"v_mul_f32 v226, {f2u(0.044715)}, v226")
        a(f"v_sub_f32 v230, 0, v{m}")
        a("v_mov_b32 v225, v224")
        a("v_mov_b32 v227, v226")
        a("v_mov_b32 v229, v228")
        a("v_mov_b32 v231, v230")
        if scale:
            a(f"v_mov_b32 v232, v{scale[tt]}")
            a(f"v_mov_b32 v233, v{scale[tt]}")
        a.wait_lgkm("cs")
        regs = []
        for c in range(4):
            d = acc(tt, c)
            for i in range(0, 4, 2):
                a(f"v_pk_fma_f32 v[{d+i}:{d+i+1}], v[230:231], v[{192+4*c+i}:{192+4*c+i+1}], v[{d+i}:{d+i+1}]")
            regs += [d, d + 1, d + 2, d + 3]
        gelu_block(a, regs, 224, 226, 228, list(range(32, 48)), scale=(232 if scale else None))
        t = 48 + 8 * (tt % 2)
        for i in range(8):
            a(f"v_cvt_pk_bf16_f32 v{t+i}, v{regs[2*i]}, v{regs[2*i+1]}")
        if v_mask:
            for i in range(8):
                a(f"v_cndmask_b32 v{t+i}, 0, v{t+i}, {v_mask[tt]}")
        for p in range(2):
            a.vmem(f"buffer_store_dwordx4 v[{t+4*p}:{t+4*p+3}], v{v_voff[tt]}, s[16:19], s{s_dst_base} offen offset:{1024*p} {ST_FLAG}", tag)

def build(kernels, path):
    head = ""
    body = '.amdgcn_target "amdgcn-amd-amdhsa--gfx950"\n.text\n'
    desc = '.section .rodata,"a"\n'
    for name, text, cfg in kernels:
        head += f"; @launch kernel={name} grid=({cfg['grid']},1,1) block=({cfg['block']},1,1) lds={cfg['lds']}\n"
        body += kernel_header(name) + text + f"L_end_{name}:\n"
        desc += kernel_desc(name, cfg['vgpr'])
    body += "L_code_end:\n"
    open(path, "w").write(head + body + desc)

if __name__ == "__main__":
    if "--stamp" in sys.argv: STAMP = True
    pass
```

```python
from gen2 import *
import gen2

class Rec:
    def __init__(self, a): self.a = a; self.ops = []
    def __call__(self, *lines):
        self.ops.append(lambda: [self.a(l) for l in lines])
    def f(self, fn): self.ops.append(fn)
    def split(self, n):
        k = (len(self.ops) + n - 1) // n
        return [self.ops[i*k:(i+1)*k] for i in range(n)]

def rec_wave_sum(r, regs):
    steps = ["row_shr:1 row_mask:0xf bank_mask:0xf bound_ctrl:0", "row_shr:2 row_mask:0xf bank_mask:0xf bound_ctrl:0",
             "row_shr:4 row_mask:0xf bank_mask:0xf bound_ctrl:0", "row_shr:8 row_mask:0xf bank_mask:0xf bound_ctrl:0",
             "row_bcast:15 row_mask:0xa bank_mask:0xf", "row_bcast:31 row_mask:0xc bank_mask:0xf"]
    r("s_nop 1")
    for st in steps:
        for x in regs: r(f"v_add_f32_dpp v{x}, v{x}, v{x} {st}")

def k1():
    a = Asm(); a.uid = 1000
    name = "k1_kernel"
    a("s_cmp_ge_u32 s2, 256")
    a("s_cbranch_scc1 L_k1_end")
    a("s_load_dwordx4 s[4:7], s[0:1], 0")
    a("s_load_dwordx4 s[36:39], s[0:1], 32")
    a("s_load_dwordx4 s[60:63], s[0:1], 80")
    a("s_load_dwordx2 s[72:73], s[0:1], 64")
    code_prefetch(a, name, 3, allcode=True, vd=29, va=30)
    stamp(a, 0)
    lane_setup(a)
    a("s_and_b32 s40, s2, 7")
    a("s_lshr_b32 s41, s2, 3")
    a("s_and_b32 s42, s40, 1")
    a("s_lshl_b32 s42, s42, 2")
    a("s_and_b32 s43, s41, 3")
    a("s_add_u32 s42, s42, s43")
    a("s_lshr_b32 s43, s40, 1")
    a("s_lshr_b32 s44, s41, 2")
    a("s_cmp_eq_u32 s43, 3")
    a("s_movk_i32 s23, 6144")
    a("s_cselect_b32 s23, 2048, s23")
    a("s_cselect_b32 s45, 0, s43")
    a("s_lshl_b32 s58, s45, 11")
    a("s_lshl_b32 s45, s44, 8")
    a("s_add_u32 s45, s45, s58")
    a("s_lshl_b32 s46, s42, 8")
    a("s_lshl_b32 s47, s42, 3")
    a("s_add_u32 s47, s47, s44")
    def pf_setup():
        a(f"s_mov_b32 s{S_LOFF}, 0")
        a("s_sub_u32 s33, s20, 6")
        a("s_lshl_b32 s33, s33, 6")
        a("s_cmp_ge_u32 s41, 16")
        a("s_cbranch_scc1 L_k1_pfw")
        a("s_mov_b32 s34, 0")
        a("s_and_b32 s48, s40, 1")
        a("s_lshl_b32 s48, s48, 10")
        a("s_lshl_b32 s49, s41, 6")
        a("s_add_u32 s48, s48, s49")
        a("v_add_u32 v16, s48, v1")
        a("v_lshlrev_b32 v16, 11, v16")
        a("s_add_u32 s33, s33, 4096")
        a(f"v_add_u32 v{V_LD}, s33, v16")
        a(f"s_movk_i32 s{S_LSTEP}, 128")
        a("s_branch L_ldE_k1")
        a.label("L_k1_pfw")
        a("s_mov_b32 s34, 1")
        a("s_sub_u32 s48, s41, 16")
        a("s_lshl_b32 s48, s48, 2")
        a("v_add_u32 v16, s48, v3")
        a("v_mul_lo_u32 v16, v16, s23")
        a("v_lshl_add_u32 v16, v2, 7, v16")
        a("s_add_u32 s33, s33, s58")
        a(f"v_add_u32 v{V_LD}, s33, v16")
        a(f"s_lshl_b32 s{S_LSTEP}, s23, 6")
    sym_setup16(a, "row", 23, 45, 46, 1024)
    read_addr_setup16(a, "row")
    a("s_waitcnt lgkmcnt(0)")
    stamp(a, 1)
    a("s_sub_u32 s8, s4, 4096")
    a("s_subb_u32 s9, s5, 0")
    a(f"s_mov_b32 s10, {4*MB + 4096}")
    a("s_mov_b32 s11, 0x00020000")
    a("s_cmp_eq_u32 s43, 3")
    a("s_cselect_b32 s12, s36, s6")
    a("s_cselect_b32 s13, s37, s7")
    a(f"s_mov_b32 s14, {6*MB}")
    a(f"s_cselect_b32 s14, {2*MB}, s14")
    a("s_mov_b32 s15, 0x00020000")
    stamp(a, 2)

    def signal():
        lab = a.newlabel("nosig")
        a("s_cmp_lg_u32 s20, 0")
        a(f"s_cbranch_scc1 {lab}")
        a("v_mov_b32 v16, 0")
        a("v_mov_b32 v17, 1")
        a("s_mov_b64 s[50:51], exec")
        a("s_mov_b64 exec, 1")
        a("buffer_atomic_add v17, v16, s[64:67], 0 offen")
        a("s_mov_b64 exec, s[50:51]")
        a.label(lab)

    def rs_loads(kind):
        a(f"s_add_u32 s48, s47, {(kind-1)*64}")
        a("s_lshl_b32 s48, s48, 4")
        a("s_lshl_b32 s49, s20, 1")
        a("s_add_u32 s59, s48, s49")
        a("s_lshl_b32 s49, s59, 11")
        a("s_add_u32 s49, s49, 4096")
        a("v_lshlrev_b32 v16, 5, v1")
        for r in range(2):
            for h in range(2):
                d = 192 + 8 * r + 4 * h
                a.vmem(f"buffer_load_dwordx4 v[{d}:{d+3}], v16, s[8:11], s49 offen offset:{2048*r+16*h}", "duty")
        srd(a, 68, 72, 2048)
        for h in range(2):
            a.vmem(f"buffer_load_dwordx4 v[{216+4*h}:{219+4*h}], v16, s[68:71], 0 offen offset:{16*h}", "duty")
    def rs_ops():
        r = Rec(a)
        r.f(lambda: a.wait_vm("duty"))
        for i in range(6): r(f"v_mov_b32 v{208+i}, 0")
        for i in range(8):
            r(f"v_lshlrev_b32 v224, 16, v{216+i}")
            r(f"v_and_b32 v225, 0xffff0000, v{216+i}")
            for q in range(2):
                x = 192 + 8 * q + i
                r(f"v_lshlrev_b32 v{226+2*q}, 16, v{x}")
                r(f"v_and_b32 v{227+2*q}, 0xffff0000, v{x}")
            for q in range(2):
                for h in range(2):
                    r(f"v_add_f32 v{208+2*q}, v{208+2*q}, v{226+2*q+h}")
                    r(f"v_fma_f32 v{209+2*q}, v{226+2*q+h}, v{226+2*q+h}, v{209+2*q}")
                    r(f"v_mul_f32 v{226+2*q+h}, v{226+2*q+h}, v{224+h}")
            for q in range(2): r(f"v_cvt_pk_bf16_f32 v{226+2*q}, v{226+2*q}, v{227+2*q}")
            for q in range(2):
                r(f"v_lshlrev_b32 v{227+2*q}, 16, v{226+2*q}")
                r(f"v_and_b32 v{226+2*q}, 0xffff0000, v{226+2*q}")
                r(f"v_add_f32 v{212+q}, v{212+q}, v{227+2*q}")
                r(f"v_add_f32 v{212+q}, v{212+q}, v{226+2*q}")
        rec_wave_sum(r, [208, 209, 210, 211, 212, 213])
        for q in range(2):
            s_, q_ = 208 + 2 * q, 209 + 2 * q
            r(f"v_mul_f32 v{s_}, {f2u(1/1024)}, v{s_}")
            r(f"v_mul_f32 v{q_}, {f2u(1/1024)}, v{q_}")
            r(f"v_fma_f32 v{q_}, -v{s_}, v{s_}, v{q_}")
            r(f"v_max_f32 v{q_}, 0, v{q_}")
            r(f"v_add_f32 v{q_}, {f2u(1e-5)}, v{q_}")
            r(f"v_rsq_f32 v{q_}, v{q_}")
        r("v_cvt_pk_bf16_f32 v212, v212, v213")
        r("v_and_b32 v213, 0xffff0000, v212")
        r("v_lshlrev_b32 v212, 16, v212")
        for q in range(2): r(f"v_mul_f32 v{212+q}, {f2u(-math.log2(math.e))}, v{212+q}")
        for q in range(2): r(f"v_exp_f32 v{212+q}, v{212+q}")
        r("s_nop 0")
        for q in range(2): r(f"v_add_f32 v{212+q}, 1.0, v{212+q}")
        for q in range(2): r(f"v_rcp_f32 v{212+q}, v{212+q}")
        r("s_nop 0")
        r("v_cvt_pk_bf16_f32 v212, v212, v213")
        r("v_lshlrev_b32 v216, 16, v212")
        r("v_and_b32 v218, 0xffff0000, v212")
        r("v_sub_f32 v217, 1.0, v216")
        r("v_sub_f32 v219, 1.0, v218")
        r("v_cvt_pk_bf16_f32 v212, v217, v219")
        r("v_lshlrev_b32 v217, 16, v212")
        r("v_and_b32 v219, 0xffff0000, v212")
        r("s_lshl_b32 s49, s59, 3")
        r(f"s_add_u32 s54, s49, {WS_G}")
        r(f"s_add_u32 s49, s49, {WS_ST}")
        r("v_mov_b32 v16, 0")
        r("s_mov_b32 s52, 0")
        r("s_mov_b32 s53, 0x80000000")
        def st():
            a("s_mov_b64 exec, s[52:53]")
            a.vmem("buffer_store_dwordx4 v[208:211], v16, s[16:19], s49 offen sc1", "dst")
            a.vmem("buffer_store_dwordx4 v[216:219], v16, s[16:19], s54 offen sc1", "dst")
            a("s_mov_b64 exec, -1")
        r.f(st)
        return r
    def cs_loads():
        srd(a, 68, 36, 2 * MB)
        a("s_lshl_b32 s48, s42, 7")
        a("s_lshl_b32 s49, s20, 4")
        a("s_add_u32 s48, s48, s49")
        a("s_lshl_b32 s48, s48, 11")
        a("s_lshl_b32 s49, s44, 8")
        a("s_add_u32 s48, s48, s49")
        a("v_lshlrev_b32 v16, 11, v3")
        a("v_lshl_add_u32 v16, v2, 4, v16")
        for r in range(4):
            a.vmem(f"buffer_load_dwordx4 v[{192+4*r}:{195+4*r}], v16, s[68:71], s48 offen", "duty")
            if r < 3: a("s_add_u32 s48, s48, 8192")
    def cs_ops1():
        r = Rec(a)
        r.f(lambda: a.wait_vm("duty"))
        for q in range(4):
            for i in range(4):
                x = 192 + 4 * q + i
                if q == 0:
                    r(f"v_lshlrev_b32 v{208+2*i}, 16, v{x}")
                    r(f"v_and_b32 v{209+2*i}, 0xffff0000, v{x}")
                else:
                    r(f"v_lshlrev_b32 v216, 16, v{x}")
                    r(f"v_and_b32 v217, 0xffff0000, v{x}")
                    r(f"v_add_f32 v{208+2*i}, v{208+2*i}, v216")
                    r(f"v_add_f32 v{209+2*i}, v{209+2*i}, v217")
        r("s_lshl_b32 s48, s20, 11")
        r(f"s_add_u32 s48, s48, {LDS_X}")
        r("v_lshlrev_b32 v16, 9, v3")
        r("v_lshl_add_u32 v16, v2, 5, v16")
        r("v_add_u32 v16, s48, v16")
        r.f(lambda: a.ds("ds_write_b128 v16, v[208:211]", "csw"))
        r.f(lambda: a.ds("ds_write_b128 v16, v[212:215] offset:16", "csw"))
        return r.ops
    def cs_ops2():
        r = Rec(a)
        r("v_and_b32 v16, 127, v0")
        r("v_lshrrev_b32 v17, 7, v0")
        r("v_lshlrev_b32 v18, 12, v17")
        r("v_lshl_add_u32 v18, v16, 2, v18")
        r(f"v_add_u32 v19, {LDS_X}, v18")
        for q in range(8): r.f(lambda q=q: a.ds(f"ds_read_b32 v{192+q}, v19 offset:{512*q}", "csr"))
        r("s_lshl_b32 s48, s42, 14")
        r("s_lshl_b32 s49, s44, 9")
        r("s_add_u32 s48, s48, s49")
        r(f"s_add_u32 s48, s48, {WS_CS1}")
        for _ in range(4): r("s_nop 0")
        r.f(lambda: a.wait_lgkm("csr"))
        for q in range(1, 8): r(f"v_add_f32 v192, v192, v{192+q}")
        r.f(lambda: a.vmem("buffer_store_dword v192, v18, s[16:19], s48 offen sc1", "dst"))
        return r.ops

    for role in ("S",):
        if role == "P": a.label("L_k1_roleP")
        a.vm = []; a.lgkm = []
        Core16(a, "row", role=role).prologue_dma()
        vm0 = list(a.vm)
        srd(a, 16, 62, WS_SIZE)
        srd(a, 64, 60, 256)
        a("s_cmp_lg_u32 s20, 7")
        a("s_cbranch_scc1 L_k1_nozero")
        a("s_lshl_b32 s48, s2, 8")
        a(f"s_add_u32 s48, s48, {WS_FLAG}")
        a("v_lshlrev_b32 v16, 2, v1")
        a("v_mov_b32 v17, 0")
        a("buffer_store_dword v17, v16, s[16:19], s48 offen sc1")
        a.label("L_k1_nozero")
        for k in (1, 2, 3):
            a(f"s_cmp_eq_u32 s43, {k}")
            a(f"s_cbranch_scc1 L_k1_p{k}{role}")
        for kind in range(4):
            if kind: a.label(f"L_k1_p{kind}{role}")
            a.vm = list(vm0); a.lgkm = []
            core = Core16(a, "row", swap=(kind == 2), tag=f"k1{kind}", role=role)
            hk = dict(start=lambda: stamp(a, 3), after0=lambda: stamp(a, 4), pre_tail=lambda: stamp(a, 5))
            if kind == 0:
                cs_loads()
                hk.update(spread2=cs_ops1, spread3=cs_ops2, prebar5=["dst"], after5=signal)
                core.mainloop(hooks=hk, npeel=6)
            elif kind in (1, 2):
                rs_loads(kind)
                parts = rs_ops().split(4)
                for i in range(4): hk[f"spread{2+i}"] = (lambda i=i: parts[i])
                hk.update(prebar7=["dst"], after7=signal)
                core.mainloop(hooks=hk, npeel=8)
            else:
                def poll_issue():
                    stamp(a, 5)
                    a("v_mov_b32 v16, 0")
                    a.vmem("buffer_load_dword v27, v16, s[64:67], 0 offen sc1", "poll")
                def poll_check():
                    lab = a.newlabel("poll"); ok = a.newlabel("pollok")
                    a.wait_vm("poll")
                    a.label(lab)
                    a("v_readfirstlane_b32 s48, v27")
                    a("s_cmp_ge_u32 s48, 192")
                    a(f"s_cbranch_scc1 {ok}")
                    a("s_sleep 2")
                    a("buffer_load_dword v27, v16, s[64:67], 0 offen sc1")
                    a("s_waitcnt vmcnt(0)")
                    a(f"s_branch {lab}")
                    a.label(ok)
                def stat_loads():
                    a("s_lshl_b32 s48, s21, 6")
                    a("s_add_u32 s48, s48, s46")
                    a("s_lshl_b32 s48, s48, 3")
                    a(f"s_add_u32 s48, s48, {WS_ST}")
                    a("v_lshlrev_b32 v16, 3, v2")
                    for tt in range(4):
                        a.vmem(f"buffer_load_dwordx2 v[{208+2*tt}:{209+2*tt}], v16, s[16:19], s48 offen offset:{128*tt} sc1", "stat")
                    a("v_and_b32 v17, 127, v0")
                    a("v_lshrrev_b32 v18, 7, v0")
                    a("v_lshlrev_b32 v19, 15, v18")
                    a("v_lshl_add_u32 v19, v17, 2, v19")
                    a("s_lshl_b32 s48, s44, 9")
                    a(f"s_add_u32 s48, s48, {WS_CS1}")
                    for kb in range(8):
                        a.vmem(f"buffer_load_dword v{216+kb}, v19, s[16:19], s48 offen sc1", "csp")
                        if kb < 7: a("s_add_u32 s48, s48, 4096")
                def w2pf():
                    srd(a, 68, 38, 2 * MB)
                    a("s_lshl_b32 s48, s47, 3")
                    a("s_add_u32 s48, s48, s20")
                    a("s_lshl_b32 s48, s48, 12")
                    a("v_lshlrev_b32 v27, 6, v1")
                    a("buffer_load_dword v28, v27, s[68:71], s48 offen")
                hk.update(after1=w2pf, pre_tail=poll_issue, pre_last=poll_check, last_start=stat_loads)
                core.mainloop(hooks=hk)
            a(f"s_branch L_k1_ep{kind}")
    for kind in range(3):
        a.label(f"L_k1_ep{kind}")
        stamp(a, 6)
        hsh, tsh = (17, 11) if kind == 0 else (18, 12)
        base = WS_Q if kind == 0 else (WS_KV + (2048 if kind == 2 else 0))
        a("s_lshl_b32 s48, s44, 2")
        a("s_lshl_b32 s49, s22, 1")
        a("s_add_u32 s48, s48, s49")
        a(f"s_lshl_b32 s48, s48, {hsh}")
        a("s_lshl_b32 s49, s42, 3")
        a("s_lshl_b32 s50, s21, 1")
        a("s_add_u32 s49, s49, s50")
        a(f"s_lshl_b32 s49, s49, {tsh}")
        a("s_add_u32 s48, s48, s49")
        a(f"s_add_u32 s48, s48, {base}")
        a("v_lshrrev_b32 v16, 3, v2")
        a(f"v_lshlrev_b32 v16, {7 if kind == 0 else 8}, v16")
        a("v_and_b32 v17, 7, v2")
        a("v_lshl_add_u32 v16, v17, 4, v16")
        a("v_lshl_add_u32 v16, v3, 9, v16")
        if kind == 0:
            a(f"v_mov_b32 v18, {f2u(QSCALE)}"); a(f"v_mov_b32 v19, {f2u(QSCALE)}")
        n = 0
        for p in range(2):
            for o in range(4):
                t = 128 + 4 * n; n += 1
                if kind == 2:
                    c, pp = (n - 1) // 2, (n - 1) % 2
                    d0, d1 = acc(2 * pp, c), acc(2 * pp + 1, c)
                    soff = (c >> 1) * (1 << hsh) + pp * (1 << tsh); imm = (c & 1) * 128
                else:
                    d0, d1 = acc(o, 2 * p), acc(o, 2 * p + 1)
                    soff = (o >> 1) * (1 << tsh) + p * (1 << hsh); imm = (o & 1) * (256 if kind == 0 else 128)
                if kind == 0:
                    for d in (d0, d0 + 2, d1, d1 + 2):
                        a(f"v_pk_mul_f32 v[{d}:{d+1}], v[{d}:{d+1}], v[18:19]")
                a(f"v_cvt_pk_bf16_f32 v{t}, v{d0}, v{d0+1}")
                a(f"v_cvt_pk_bf16_f32 v{t+1}, v{d0+2}, v{d0+3}")
                a(f"v_cvt_pk_bf16_f32 v{t+2}, v{d1}, v{d1+1}")
                a(f"v_cvt_pk_bf16_f32 v{t+3}, v{d1+2}, v{d1+3}")
                a(f"s_add_u32 s49, s48, {soff}")
                a(f"buffer_store_dwordx4 v[{t}:{t+3}], v16, s[16:19], s49 offen offset:{imm} {ST_FLAG}")
        a("s_branch L_k1_fin")
    a.label("L_k1_ep3")
    a.vm = []; a.lgkm = []
    stamp(a, 6)
    a("s_lshr_b32 s48, s44, 1")
    a("s_lshr_b32 s49, s48, 1")
    a("s_add_u32 s49, s49, 1")
    a("s_sub_u32 s50, 0, s49")
    a("s_and_b32 s48, s48, 1")
    a("s_cmp_eq_u32 s48, 0")
    a("s_cselect_b32 s49, s49, s50")
    a("s_lshl_b32 s48, s21, 6")
    a("s_add_u32 s48, s48, s46")
    a("s_add_u32 s48, s48, s49")
    masks = []
    for tt in range(4):
        v = 28 + tt
        a(f"v_add_u32 v16, s48, v2")
        if tt: a(f"v_add_u32 v16, {16*tt}, v16")
        a(f"v_mov_b32 v18, 2048")
        a(f"v_cmp_lt_u32 s[{50+2*tt}:{51+2*tt}], v16, v18")
        masks.append(f"s[{50+2*tt}:{51+2*tt}]")
        a("v_and_b32 v16, 2047, v16")
        a("v_lshrrev_b32 v17, 5, v16")
        a("v_lshlrev_b32 v17, 16, v17")
        a("v_bfe_u32 v18, v16, 4, 1")
        a("v_lshl_add_u32 v17, v18, 11, v17")
        a("v_and_b32 v18, 15, v16")
        a("v_lshl_add_u32 v17, v18, 4, v17")
        a(f"v_lshl_add_u32 v{v}, v3, 8, v17")
    a("s_waitcnt vmcnt(0)")
    for kb in range(1, 8): a(f"v_add_f32 v216, v216, v{216+kb}")
    a("v_lshlrev_b32 v19, 2, v0")
    a(f"v_add_u32 v19, {LDS_X + 1024}, v19")
    a("ds_write_b32 v19, v216")
    a("s_lshl_b32 s49, s22, 8")
    a(f"s_add_u32 s49, s49, {LDS_X + 1024}")
    a("v_lshl_add_u32 v19, v1, 2, s49")
    a("s_waitcnt lgkmcnt(0)")
    a("s_barrier")
    for g in range(4): a(f"ds_read_b32 v{216+g}, v19 offset:{512*g}")
    a("s_lshl_b32 s48, s44, 1")
    a("s_add_u32 s48, s48, s22")
    a("s_lshl_b32 s48, s48, 12")
    a(f"s_add_u32 s48, s48, {WS_HS}")
    a("s_waitcnt lgkmcnt(0)")
    a("v_add_f32 v216, v216, v217")
    a("v_add_f32 v218, v218, v219")
    a("v_add_f32 v216, v216, v218")
    a(f"v_subrev_u32 v19, 1024, v19")
    a("ds_write_b32 v19, v216")
    a("s_waitcnt lgkmcnt(0)")
    ln_gelu_epilogue(a, 48, 1024, [28, 29, 30, 31], masks, [(208 + 2 * t, 209 + 2 * t) for t in range(4)], None)
    a.label("L_k1_fin")
    if gen2.STAMP: a("s_waitcnt vmcnt(0)")
    stamp(a, 7); stamp_dump(a, 8, 0)
    a.label("L_k1_end")
    a("s_endpgm")
    return name, a.text(), dict(grid=256, block=512, lds=163840, vgpr=232)
```

```python
from gen2 import *
import gen2
from k1gen import Rec

SLA = 32768
A_Q = 32; A_NEG = 48; A_S = 64; A_P = 96; A_O = 104; A_L = 136; A_SEL = 144; A_K = 148; A_V = 164
G_ACC = 180
G_F = 196
X_RES = 228
C3 = 196
PK = 212
NVA = 240
V_KVD = 4; V_XD = 5; V_WD = 6; V_KVD2 = 7
V_KVR = 8
V_XR = 10
V_WR = 12
V_LP = 14
V_L16 = 15
S_KVO = 24; S_XO = 25; S_WO = 26; S_CN = 29; S_MK = 30; S_MX = 31; S_MW = 34; S_MK2 = 27
XCH = 98304
F_X1 = 16
F_O = 32
F_CS = 48

class KA:
    def __init__(self, a): self.a = a
    def dma(self, stage):
        a = self.a; t = ("st", stage); sl = (stage % 4) * SLA
        if stage < 16:
            return [
                lambda: a(f"s_add_u32 m0, s{S_MK}, {sl}"),
                lambda: a.vmem(f"buffer_load_dwordx4 v{V_KVD}, s[16:19], s{S_KVO} offen lds", t),
                lambda: a(f"s_add_u32 m0, s{S_MX}, {sl}"),
                lambda: a.vmem(f"buffer_load_dwordx4 v{V_XD}, s[16:19], s{S_XO} offen lds", t),
                lambda: a.vmem(f"buffer_load_dwordx4 v{V_XD}, s[16:19], s{S_XO} offen offset:1024 lds", t),
                lambda: a(f"s_add_u32 m0, s{S_MW}, {sl}"),
                lambda: a.vmem(f"buffer_load_dwordx4 v{V_WD}, s[12:15], s{S_WO} offen lds", t),
                lambda: a(f"s_add_u32 s{S_KVO}, s{S_KVO}, 8192"),
                lambda: a(f"s_add_u32 s{S_XO}, s{S_XO}, 4096"),
                lambda: a(f"s_add_u32 s{S_WO}, s{S_WO}, {64*2048}"),
            ]
        ops = [lambda: a(f"s_add_u32 m0, s{S_MK2}, {sl}")]
        for j in range(4):
            ops.append(lambda j=j: a.vmem(f"buffer_load_dwordx4 v{V_KVD2}, s[16:19], s{S_KVO} offen offset:{1024*j} lds", t))
        ops.append(lambda: a(f"s_add_u32 s{S_KVO}, s{S_KVO}, 32768"))
        return ops
    def kvaddr(self, kt):
        if kt < 16:
            sl = kt % 4
            return V_KVR + (sl >> 1), (sl & 1) * SLA
        return V_KVR, ((kt - 16) % 4) * 4096
    def kreads(self, kt):
        a = self.a; k = A_K + 8 * (kt % 2); v, off = self.kvaddr(kt)
        return [lambda: a.ds(f"ds_read_b128 v[{k}:{k+3}], v{v} offset:{off}", ("k", kt, 0)),
                lambda: a.ds(f"ds_read_b128 v[{k+4}:{k+7}], v{v} offset:{off+1024}", ("k", kt, 1))]
    def vreads(self, kt):
        a = self.a; d = A_V + 8 * (kt % 2); v, off = self.kvaddr(kt)
        return [lambda: a.ds(f"ds_read_b128 v[{d}:{d+3}], v{v} offset:{off+2048}", ("v", kt, 0)),
                lambda: a.ds(f"ds_read_b128 v[{d+4}:{d+7}], v{v} offset:{off+3072}", ("v", kt, 1))]
    def greads(self, T):
        a = self.a; i = T % 4; sl = (T // 4) % 4; pr = sl >> 1; off = (sl & 1) * SLA
        gx = G_F + 8 * i; gw = gx + 4
        kg, s = i >> 1, i & 1
        return [lambda: a.ds(f"ds_read_b128 v[{gx}:{gx+3}], v{V_XR+pr} offset:{off+1024*kg+512*s}", ("gx", T)),
                lambda: a.ds(f"ds_read_b64_tr_b16 v[{gw}:{gw+1}], v{V_WR+pr} offset:{off+(32*kg+8*s)*128}", ("gw", T)),
                lambda: a.ds(f"ds_read_b64_tr_b16 v[{gw+2}:{gw+3}], v{V_WR+pr} offset:{off+(32*kg+8*s+16)*128}", ("gw", T))]
    def reads(self, t):
        T = t + 2
        if T > 63: return []
        kv = self.kreads(T // 2) if T % 2 == 0 else self.vreads(T // 2)
        g = (self.greads(2 * T) + self.greads(2 * T + 1)) if T < 32 else []
        return g[:3] + kv + g[3:]
    def qk(self, u, half):
        a = self.a
        kt, qs = u >> 1, u & 1
        k = A_K + 8 * (kt % 2) + 4 * half; S = A_S + 16 * (u % 2); q = A_Q + 8 * qs + 4 * half
        def f():
            a.wait_lgkm(("k", kt, half))
            c = f"v[{A_NEG}:{A_NEG+15}]" if half == 0 else f"v[{S}:{S+15}]"
            a(f"v_mfma_f32_32x32x16_bf16 v[{S}:{S+15}], v[{k}:{k+3}], v[{q}:{q+3}], {c}")
        return f
    def gm(self, T):
        a = self.a
        gx = G_F + 8 * (T % 4); gw = gx + 4
        def f():
            a.wait_lgkm(("gx", T), ("gw", T))
            c = "0" if T == 0 else f"v[{G_ACC}:{G_ACC+15}]"
            a(f"v_mfma_f32_32x32x16_bf16 v[{G_ACC}:{G_ACC+15}], v[{gw}:{gw+3}], v[{gx}:{gx+3}], {c}")
        return f
    def pv(self, u, half):
        a = self.a
        kt, qs = u >> 1, u & 1
        v = A_V + 8 * (kt % 2) + 4 * half; p = A_P + 4 * half; O = A_O + 16 * qs
        def f():
            a.wait_lgkm(("v", kt, half))
            a(f"v_mfma_f32_32x32x16_bf16 v[{O}:{O+15}], v[{v}:{v+3}], v[{p}:{p+3}], v[{O}:{O+15}]")
        return f
    def sm(self, u, half):
        a = self.a
        p = A_P + 4 * half; L = A_L + 4 * (u & 1)
        return lambda: a(f"v_mfma_f32_16x16x32_bf16 v[{L}:{L+3}], v[{A_SEL}:{A_SEL+3}], v[{p}:{p+3}], v[{L}:{L+3}]")
    def slot(self, t, misc=()):
        a = self.a
        S = A_S + 16 * (t % 2)
        e = lambda i: (lambda: a(f"v_exp_f32 v{S+i}, v{S+i}"))
        c = lambda i: (lambda: a(f"v_cvt_pk_bf16_f32 v{A_P+i}, v{S+2*i}, v{S+2*i+1}"))
        rd = self.reads(t)
        nxt = 0 <= t + 1 <= 63; prev = 0 <= t <= 64; cur = 0 <= t <= 63
        gg = 0 <= t + 1 < 32
        seq = []
        def M(f, cond):
            if cond: seq.append(f)
        def V(*fs):
            if cur: seq.extend(fs)
        M(self.qk(t + 1, 0), nxt)
        V(e(0), e(1), e(2))
        M(self.pv(t - 1, 1), prev)
        V(c(0), e(3), e(4), c(1))
        M(self.qk(t + 1, 1), nxt)
        V(e(5), e(6), c(2))
        M(self.sm(t - 1, 1), prev)
        V(e(7), e(8))
        M(self.gm(2 * (t + 1)), gg)
        V(c(3), e(9), e(10), c(4))
        M(self.pv(t, 0), cur)
        V(e(11), e(12), c(5))
        M(self.sm(t, 0), cur)
        V(e(13), e(14))
        M(self.gm(2 * (t + 1) + 1), gg)
        V(e(15), c(6), c(7))
        fill = list(rd) + list(misc)
        n = len(seq)
        out = []; j = 0
        for i, f in enumerate(seq):
            out.append(f)
            tgt = (len(fill) * (i + 1)) // max(1, (n - 6)) if n > 6 else len(fill)
            while j < min(tgt, len(fill)):
                out.append(fill[j]); j += 1
        out += fill[j:]
        for f in out: f()
    def bar(self, tags):
        a = self.a
        n = a._need(a.vm, tags)
        if n is None: a.wait_all(vm=False)
        else:
            a(f"s_waitcnt vmcnt({n}) lgkmcnt(0)")
            a.vm = a.vm[len(a.vm) - n:] if n else []
            a.lgkm = []
        a("s_barrier")
    def period1(self, s, tail=(), extra=None):
        d = self.dma(s + 3)
        h = (len(d) + 1) // 2
        self.a("s_setprio 1")
        self.slot(2 * s - 2, d[:h] + (extra or {}).get(0, []))
        self.a("s_setprio 0")
        self.slot(2 * s - 1, d[h:] + list(tail) + (extra or {}).get(1, []))
        self.bar([("st", s + 1)])
    def period2(self, s, extra=None, tail=(), bartags=None, barrier=True):
        a = self.a
        t0 = 30 + 8 * (s - 16)
        for i in range(8):
            if i % 2 == 0: a(f"s_setprio {3 - i//2}")
            m = list((extra or {}).get(i, []))
            if i == 7: m += [lambda: a(f"v_add_u32 v{V_KVR}, {SLA}, v{V_KVR}")] + list(tail)
            self.slot(t0 + i, m)
        if barrier: self.bar(bartags)

def flag_add(a, slot_sgpr_expr_lines, tag):
    lab = a.newlabel("nf" + tag)
    a("s_cmp_lg_u32 s20, 0")
    a(f"s_cbranch_scc1 {lab}")
    for l in slot_sgpr_expr_lines: a(l)
    a("v_mov_b32 v30, 0")
    a("v_mov_b32 v31, 1")
    a("s_mov_b64 exec, 1")
    a("buffer_atomic_add v31, v30, s[16:19], s48 offen")
    a("s_mov_b64 exec, -1")
    a.label(lab)

def phaseA(a, p3_early):
    from gen2 import stamp as _st
    stamp = (lambda a, i: None) if os.environ.get('ST3') else _st
    a("v_and_b32 v2, 31, v1")
    a("v_lshrrev_b32 v3, 5, v1")
    a("s_lshr_b32 s21, s20, 1")
    a("s_and_b32 s22, s20, 1")
    a("s_lshl_b32 s42, s40, 2")
    a("s_and_b32 s43, s41, 3")
    a("s_add_u32 s42, s42, s43")
    a("s_lshr_b32 s43, s41, 2")
    a("s_and_b32 s44, s40, 3")
    a("s_lshl_b32 s44, s44, 2")
    a("s_and_b32 s45, s41, 3")
    a("s_add_u32 s44, s44, s45")
    a("s_lshr_b32 s45, s40, 2")
    a("s_lshl_b32 s45, s45, 3")
    a("s_add_u32 s45, s45, s43")
    a(f"v_lshlrev_b32 v{V_L16}, 4, v1")
    a("s_lshl_b32 s46, s42, 18")
    a(f"s_add_u32 s46, s46, {WS_KV}")
    a("s_lshl_b32 s47, s20, 10")
    a("s_add_u32 s47, s47, s46")
    a(f"v_add_u32 v{V_KVD}, s47, v{V_L16}")
    a("s_lshl_b32 s47, s20, 12")
    a("s_add_u32 s47, s47, s46")
    a(f"v_add_u32 v{V_KVD2}, s47, v{V_L16}")
    a("s_lshl_b32 s46, s44, 2")
    a("s_add_u32 s46, s46, s21")
    a("s_lshl_b32 s46, s46, 16")
    a("s_lshl_b32 s47, s22, 11")
    a("s_add_u32 s46, s46, s47")
    a(f"s_add_u32 s46, s46, {WS_HS}")
    a(f"v_add_u32 v{V_XD}, s46, v{V_L16}")
    a("v_lshrrev_b32 v17, 3, v1")
    a("s_lshl_b32 s46, s20, 3")
    a("v_add_u32 v17, s46, v17")
    a("v_lshlrev_b32 v17, 11, v17")
    a("v_and_b32 v18, 7, v1")
    a("v_bfe_u32 v19, v1, 4, 1")
    a("v_lshlrev_b32 v19, 2, v19")
    a("v_xor_b32 v18, v18, v19")
    a("v_lshl_add_u32 v17, v18, 4, v17")
    a("s_lshl_b32 s46, s45, 7")
    a(f"v_add_u32 v{V_WD}, s46, v17")
    a(f"s_lshl_b32 s{S_MK}, s20, 10")
    a(f"s_lshl_b32 s{S_MX}, s20, 11")
    a(f"s_add_u32 s{S_MX}, s{S_MX}, 8192")
    a(f"s_add_u32 s{S_MW}, s{S_MK}, 24576")
    a(f"s_lshl_b32 s{S_MK2}, s20, 12")
    a("s_lshl_b32 s46, s22, 12")
    a(f"v_add_u32 v{V_KVR}, s46, v{V_L16}")
    a(f"v_add_u32 v{V_KVR+1}, {2*SLA}, v{V_KVR}")
    a("v_lshrrev_b32 v17, 4, v2")
    a("v_lshlrev_b32 v17, 11, v17")
    a("v_lshl_add_u32 v17, v3, 8, v17")
    a("v_and_b32 v18, 15, v2")
    a(f"v_lshl_add_u32 v{V_LP}, v18, 4, v17")
    a("s_lshl_b32 s46, s21, 12")
    a("s_add_u32 s46, s46, 8192")
    a(f"v_add_u32 v{V_XR}, s46, v{V_LP}")
    a(f"v_add_u32 v{V_XR+1}, {2*SLA}, v{V_XR}")
    a("v_bfe_u32 v17, v1, 2, 2")
    a("v_lshl_add_u32 v18, v3, 2, v17")
    a("v_bfe_u32 v19, v1, 1, 1")
    a("v_bfe_u32 v20, v1, 4, 1")
    a("v_lshl_add_u32 v19, v19, 1, v20")
    a("s_lshl_b32 s46, s22, 2")
    a("v_add_u32 v19, s46, v19")
    a("v_lshrrev_b32 v17, 1, v17")
    a("v_lshlrev_b32 v17, 2, v17")
    a("v_xor_b32 v19, v19, v17")
    a("v_lshlrev_b32 v18, 7, v18")
    a("v_lshl_add_u32 v18, v19, 4, v18")
    a("v_and_b32 v20, 1, v1")
    a("v_lshl_add_u32 v18, v20, 3, v18")
    a(f"v_add_u32 v{V_WR}, 24576, v18")
    a(f"v_add_u32 v{V_WR+1}, {2*SLA}, v{V_WR}")
    a("v_bfe_u32 v17, v1, 2, 1")
    a("v_bfe_u32 v18, v1, 4, 1")
    a("v_cmp_eq_u32 vcc, v17, v18")
    a("v_mov_b32 v19, 0x3f803f80")
    a("s_nop 0")
    for i in range(4): a(f"v_cndmask_b32 v{A_SEL+i}, 0, v19, vcc")
    for r in (S_KVO, S_XO, S_WO): a(f"s_mov_b32 s{r}, 0")
    a("s_lshl_b32 s46, s42, 17")
    a("s_lshl_b32 s47, s43, 3")
    a("s_add_u32 s47, s47, s20")
    a("s_andn2_b32 s48, s47, 1")
    a("s_lshl_b32 s48, s48, 11")
    a("s_add_u32 s46, s46, s48")
    a(f"s_add_u32 s46, s46, {WS_Q}")
    a("s_waitcnt lgkmcnt(0)")
    stamp(a, 1)
    srd(a, 16, 62, WS_SIZE)
    srd(a, 12, 6, 2 * MB)
    K = KA(a)
    for i in range(4):
        a.vmem(f"buffer_load_dwordx4 v[{A_Q+4*i}:{A_Q+4*i+3}], v{V_L16}, s[16:19], s46 offen offset:{1024*i}", "q")
    for st in range(3):
        for f in K.dma(st): f()
    srd(a, 8, 4, 4 * MB)
    for i in range(40): a(f"v_mov_b32 v{A_O+i}, 0")
    for i in range(8): a(f"v_mov_b32 v{A_P+i}, 0")
    for i in range(16): a(f"v_mov_b32 v{A_V+i}, 0")
    a.wait_vm(("st", 0))
    a("s_barrier")
    k1b = A_K + 8
    a.ds(f"ds_read_b128 v[{k1b}:{k1b+3}], v{V_L16}", "k0")
    a.ds(f"ds_read_b128 v[{k1b+4}:{k1b+7}], v{V_L16} offset:1024", "k0")
    for f in K.reads(-2): f()
    for f in K.dma(3): f()
    a.wait_lgkm("k0")
    for qs in range(2):
        S = A_S + 16 * qs
        a(f"v_mfma_f32_32x32x16_bf16 v[{S}:{S+15}], v[{k1b}:{k1b+3}], v[{A_Q+8*qs}:{A_Q+8*qs+3}], 0")
        a(f"v_mfma_f32_32x32x16_bf16 v[{S}:{S+15}], v[{k1b+4}:{k1b+7}], v[{A_Q+8*qs+4}:{A_Q+8*qs+7}], v[{S}:{S+15}]")
    for f in K.reads(-1): f()
    K.gm(0)(); K.gm(1)()
    a("s_nop 7"); a("s_nop 3")
    S = A_S
    a(f"v_max3_f32 v17, v{S}, v{S+1}, v{S+2}")
    a(f"v_max3_f32 v18, v{S+3}, v{S+4}, v{S+5}")
    for i in range(6, 32, 4):
        a(f"v_max3_f32 v17, v17, v{S+i}, v{S+i+1}")
        if i + 3 < 32: a(f"v_max3_f32 v18, v18, v{S+i+2}, v{S+i+3}")
    a("v_max_f32 v17, v17, v18")
    a("v_mov_b32 v18, v17")
    a("s_nop 1")
    a("v_permlane32_swap_b32 v17, v18")
    a("s_nop 1")
    a("v_max_f32 v17, v17, v18")
    for i in range(16): a(f"v_sub_f32 v{A_NEG+i}, 0, v17")
    a("s_nop 1")
    K.qk(0, 0)(); K.qk(0, 1)()
    a("s_nop 7")
    K.bar([("st", 1)])
    stamp(a, 2)
    a(f"s_mov_b32 s{S_CN}, 3")
    vm_top = list(a.vm)
    a.lines.append(".p2align 6")
    a.label("L_pa_loop1")
    lt = [lambda: a(f"s_sub_u32 s{S_CN}, s{S_CN}, 1"), lambda: a(f"s_cmp_lg_u32 s{S_CN}, 0")]
    for s in range(1, 5): K.period1(s, tail=(lt if s == 4 else ()))
    assert [(t[0], t[1] - 4) for t in a.vm] == vm_top, (a.vm, vm_top)
    a("s_cbranch_scc1 L_pa_loop1")
    a.vm = [("st", 14)] * 4 + [("st", 15)] * 4
    def xres():
        a("s_lshl_b32 s46, s44, 7")
        a("s_lshl_b32 s48, s21, 5")
        a("s_add_u32 s46, s46, s48")
        a("s_lshl_b32 s48, s46, 11")
        a("s_lshl_b32 s49, s45, 7")
        a("s_add_u32 s48, s48, s49")
        a("s_lshl_b32 s49, s22, 6")
        a("s_add_u32 s48, s48, s49")
        a("v_lshlrev_b32 v17, 11, v2")
        a("v_lshl_add_u32 v17, v3, 3, v17")
        for s in range(2):
            for b in range(2):
                d = X_RES + 4 * s + 2 * b
                a.vmem(f"buffer_load_dwordx2 v[{d}:{d+1}], v17, s[8:11], s48 offen offset:{32*b+16*s}", "xres")
        a("s_lshl_b32 s48, s47, 8")
        a(f"s_add_u32 s48, s48, {WS_G}")
        a("v_lshlrev_b32 v17, 3, v2")
        a.vmem("buffer_load_dword v25, v17, s[16:19], s48 offen", "xres")
    K.period1(13, extra={1: [xres]})
    K.period1(14)
    K.period1(15, tail=[lambda: a("s_lshl_b32 s48, s22, 14"), lambda: a(f"v_add_u32 v{V_KVR}, s48, v{V_L16}")])
    stamp(a, 3)
    r = Rec(a)
    r.f(lambda: a.wait_vm("xres"))
    for s in range(2):
        for b in range(2):
            for w in range(2):
                src = X_RES + 4 * s + 2 * b + w
                d = G_ACC + 8 * s + 4 * b + 2 * w
                r(f"v_lshlrev_b32 v17, 16, v{src}")
                r(f"v_and_b32 v18, 0xffff0000, v{src}")
                r(f"v_add_f32 v{d}, v{d}, v17")
                r(f"v_add_f32 v{d+1}, v{d+1}, v18")
    for i in range(8): r(f"v_cvt_pk_bf16_f32 v{PK+i}, v{G_ACC+2*i}, v{G_ACC+2*i+1}")
    r("s_lshl_b32 s48, s44, 2", "s_add_u32 s48, s48, s21", "s_lshl_b32 s48, s48, 16", "s_lshl_b32 s49, s45, 12", "s_add_u32 s48, s48, s49",
      "s_lshl_b32 s49, s22, 10", "s_add_u32 s48, s48, s49", f"s_add_u32 s48, s48, {WS_X1}")
    r.f(lambda: a.vmem(f"buffer_store_dwordx4 v[{PK}:{PK+3}], v{V_LP}, s[16:19], s48 offen sc1", "x1st"))
    r.f(lambda: a.vmem(f"buffer_store_dwordx4 v[{PK+4}:{PK+7}], v{V_LP}, s[16:19], s48 offen offset:512 sc1", "x1st"))
    r("v_mov_b32 v20, 0"); r("v_mov_b32 v21, 0")
    for i in range(8):
        r(f"v_lshlrev_b32 v17, 16, v{PK+i}")
        r(f"v_and_b32 v18, 0xffff0000, v{PK+i}")
        r("v_add_f32 v20, v20, v17")
        r("v_fma_f32 v21, v17, v17, v21")
        r("v_add_f32 v20, v20, v18")
        r("v_fma_f32 v21, v18, v18, v21")
    r("v_mov_b32 v22, v20", "v_mov_b32 v23, v21", "s_nop 1", "v_permlane32_swap_b32 v20, v22", "v_permlane32_swap_b32 v21, v23", "s_nop 1",
      "v_add_f32 v20, v20, v22", "v_add_f32 v21, v21, v23")
    r("s_lshl_b32 s48, s20, 9", "s_add_u32 s48, s48, 131072", "v_lshl_add_u32 v22, v1, 3, s48")
    r.f(lambda: a.ds("ds_write_b64 v22, v[20:21]", "stw"))
    parts = r.split(6)
    ex = {0: list(K.dma(19))}
    for i in range(6): ex[2 + i] = parts[i]
    K.period2(16, extra=ex, bartags=[("st", 17)])
    r = Rec(a)
    r("v_xor_b32 v22, 512, v22")
    r.f(lambda: a.ds("ds_read_b64 v[22:23], v22", "str"))
    r("v_lshlrev_b32 v24, 3, v2")
    r("s_lshl_b32 s48, s46, 3", "s_lshl_b32 s49, s45, 14", "s_add_u32 s48, s48, s49", f"s_add_u32 s48, s48, {WS_P1}")
    r("s_nop 0"); r("s_nop 0"); r("s_nop 0")
    r.f(lambda: a.wait_lgkm("str"))
    r("v_add_f32 v20, v20, v22"); r("v_add_f32 v21, v21, v23")
    r.f(lambda: a.vmem("buffer_store_dwordx2 v[20:21], v24, s[16:19], s48 offen sc1", "x1st"))
    K.period2(17, extra={0: r.ops}, bartags=[("st", 18), "x1st"] + [("st", 19)])
    flag_add(a, ["s_lshr_b32 s48, s44, 1", f"s_add_u32 s48, s48, {F_X1}", "s_lshl_b32 s48, s48, 8", f"s_add_u32 s48, s48, {WS_FLAG}"], "x1")
    r = Rec(a)
    r("s_mov_b32 s96, s68", "s_mov_b32 s97, s69", f"s_mov_b32 s98, {7*MB}", "s_mov_b32 s99, 0x00020000")
    r("s_lshl_b32 s48, s2, 3", "s_add_u32 s48, s48, s20", "s_lshl_b32 s48, s48, 12")
    r("v_lshlrev_b32 v26, 6, v1")
    r.f(lambda: a.vmem("buffer_load_dword v27, v26, s[96:99], s48 offen", "pf"))
    K.period2(18, extra={0: r.ops}, bartags=[])
    def poll0():
        lab = a.newlabel("np")
        a("s_and_b32 s38, s60, 7")
        a(f"s_add_u32 s38, s38, {F_X1}")
        a("s_lshl_b32 s38, s38, 8")
        a(f"s_add_u32 s38, s38, {WS_FLAG}")
        a("v_mov_b32 v30, 0")
        a("s_cmp_lg_u32 s20, 0")
        a(f"s_cbranch_scc1 {lab}")
        a("buffer_load_dword v31, v30, s[16:19], s38 offen sc1")
        a.label(lab)
    def chk0():
        from mega import spin_wait
        lab = a.newlabel("nc")
        a("s_cmp_lg_u32 s20, 0")
        a(f"s_cbranch_scc1 {lab}")
        a("s_waitcnt vmcnt(0)")
        spin_wait(a, 31, 30, 38, 32, "x1")
        a.label(lab)
    K.period2(19, extra={3: [poll0]}, tail=[chk0], bartags=[])
    stamp(a, 4)
    a("s_mov_b32 s35, s47")
    a("s_mov_b32 s36, s42")
    a("s_mov_b32 s37, s43")
    p3_early()
    K.slot(62); K.slot(63)
    a("s_nop 1")
    K.slot(64)
    a("s_lshl_b32 s48, s20, 12")
    a(f"s_add_u32 s48, s48, {XCH}")
    a(f"v_add_u32 v22, s48, v{V_L16}")
    a("v_xor_b32 v23, 4096, v22")
    a("s_lshl_b32 s48, s20, 8")
    a("s_add_u32 s48, s48, 131072")
    a("v_lshl_add_u32 v20, v1, 2, s48")
    a("v_xor_b32 v21, 256, v20")
    a("s_cmp_eq_u32 s22, 0")
    a("s_cbranch_scc0 L_pa_x1")
    for i in range(4): a(f"ds_write_b128 v22, v[{A_O+16+4*i}:{A_O+19+4*i}] offset:{1024*i}")
    a(f"ds_write_b32 v20, v{A_L+4}")
    a("s_branch L_pa_x2")
    a.label("L_pa_x1")
    for i in range(4): a(f"ds_write_b128 v22, v[{A_O+4*i}:{A_O+3+4*i}] offset:{1024*i}")
    a(f"ds_write_b32 v20, v{A_L}")
    a("s_waitcnt lgkmcnt(0)")
    for i in range(16): a(f"v_mov_b32 v{A_O+i}, v{A_O+16+i}")
    a(f"v_mov_b32 v{A_L}, v{A_L+4}")
    for i in range(8): a(f"v_mov_b32 v{A_Q+i}, v{A_Q+8+i}")
    a.label("L_pa_x2")
    a("s_waitcnt lgkmcnt(0)")
    a("s_barrier")
    for i in range(4): a(f"ds_read_b128 v[{A_O+16+4*i}:{A_O+19+4*i}], v23 offset:{1024*i}")
    a(f"ds_read_b32 v{A_L+4}, v21")
    a("s_waitcnt lgkmcnt(0)")
    for i in range(16): a(f"v_add_f32 v{A_O+i}, v{A_O+i}, v{A_O+16+i}")
    a(f"v_add_f32 v{A_L}, v{A_L}, v{A_L+4}")
    a(f"v_max3_f32 v18, abs(v{A_O}), abs(v{A_O+1}), abs(v{A_O+2})")
    for i in range(3, 15, 2): a(f"v_max3_f32 v18, v18, abs(v{A_O+i}), abs(v{A_O+i+1})")
    a(f"v_max3_f32 v18, v18, abs(v{A_O+15}), abs(v{A_O+15})")
    a(f"v_mov_b32 v19, {f2u(2.0**60)}")
    a(f"v_cmp_nlt_f32 vcc, v{A_L}, v19")
    a(f"v_mov_b32 v19, {f2u(2.0**120)}")
    a(f"v_cmp_nlt_f32 s[50:51], v18, v19")
    a(f"v_mov_b32 v19, {f2u(2.0**-60)}")
    a(f"v_cmp_ngt_f32 s[52:53], v{A_L}, v19")
    a("s_nop 1")
    a("s_or_b64 vcc, vcc, s[50:51]")
    a("s_or_b64 vcc, vcc, s[52:53]")
    if os.environ.get("FORCE_FB"): a("s_mov_b64 vcc, -1")
    a("s_cbranch_vccnz L_pa_fallback")
    a.label("L_pa_fin")
    a(f"v_rcp_f32 v18, v{A_L}")
    a("s_nop 0")
    a("v_mul_f32 v18, v18, v25")
    for i in range(16): a(f"v_mul_f32 v{A_O+i}, v{A_O+i}, v18")
    for i in range(8): a(f"v_cvt_pk_bf16_f32 v{X_RES+i}, v{A_O+2*i}, v{A_O+2*i+1}")
    a("s_lshl_b32 s48, s35, 16")
    a("s_lshr_b32 s49, s36, 1")
    a("s_lshl_b32 s49, s49, 12")
    a("s_add_u32 s48, s48, s49")
    a("s_and_b32 s49, s36, 1")
    a("s_lshl_b32 s49, s49, 10")
    a("s_add_u32 s48, s48, s49")
    a(f"s_add_u32 s48, s48, {WS_O}")
    a.vmem(f"buffer_store_dwordx4 v[{X_RES}:{X_RES+3}], v{V_LP}, s[16:19], s48 offen sc1", "ost")
    a.vmem(f"buffer_store_dwordx4 v[{X_RES+4}:{X_RES+7}], v{V_LP}, s[16:19], s48 offen offset:512 sc1", "ost")

def phaseA_fallback(a):
    a.label("L_pa_fallback")
    a("s_lshl_b32 s52, s36, 18")
    a(f"s_add_u32 s52, s52, {WS_KV}")
    a("s_mov_b32 s53, s52")
    a("s_mov_b32 s54, 64")
    a("v_mov_b32 v18, 0xff800000")
    S = A_S
    L16 = V_L16
    a.label("L_pa_fb1")
    a(f"buffer_load_dwordx4 v[{A_K}:{A_K+3}], v{L16}, s[16:19], s53 offen")
    a(f"buffer_load_dwordx4 v[{A_K+4}:{A_K+7}], v{L16}, s[16:19], s53 offen offset:1024")
    a("s_waitcnt vmcnt(0)")
    a(f"v_mfma_f32_32x32x16_bf16 v[{S}:{S+15}], v[{A_K}:{A_K+3}], v[{A_Q}:{A_Q+3}], 0")
    a(f"v_mfma_f32_32x32x16_bf16 v[{S}:{S+15}], v[{A_K+4}:{A_K+7}], v[{A_Q+4}:{A_Q+7}], v[{S}:{S+15}]")
    a("s_nop 7"); a("s_nop 7")
    for i in range(0, 16, 2): a(f"v_max3_f32 v18, v18, v{S+i}, v{S+i+1}")
    a("s_add_u32 s53, s53, 4096")
    a("s_sub_u32 s54, s54, 1")
    a("s_cmp_lg_u32 s54, 0")
    a("s_cbranch_scc1 L_pa_fb1")
    a("v_mov_b32 v19, v18")
    a("s_nop 1")
    a("v_permlane32_swap_b32 v18, v19")
    a("s_nop 1")
    a("v_max_f32 v18, v18, v19")
    for i in range(16): a(f"v_sub_f32 v{A_NEG+i}, 0, v18")
    for i in range(16): a(f"v_mov_b32 v{A_O+i}, 0")
    for i in range(4): a(f"v_mov_b32 v{A_L+i}, 0")
    a("s_mov_b32 s53, s52")
    a("s_mov_b32 s54, 64")
    a.label("L_pa_fb2")
    for i in range(2):
        a(f"buffer_load_dwordx4 v[{A_K+4*i}:{A_K+4*i+3}], v{L16}, s[16:19], s53 offen offset:{1024*i}")
        a(f"buffer_load_dwordx4 v[{A_V+4*i}:{A_V+4*i+3}], v{L16}, s[16:19], s53 offen offset:{2048+1024*i}")
    a("s_waitcnt vmcnt(0)")
    a(f"v_mfma_f32_32x32x16_bf16 v[{S}:{S+15}], v[{A_K}:{A_K+3}], v[{A_Q}:{A_Q+3}], v[{A_NEG}:{A_NEG+15}]")
    a(f"v_mfma_f32_32x32x16_bf16 v[{S}:{S+15}], v[{A_K+4}:{A_K+7}], v[{A_Q+4}:{A_Q+7}], v[{S}:{S+15}]")
    a("s_nop 7"); a("s_nop 7")
    for i in range(16): a(f"v_exp_f32 v{S+i}, v{S+i}")
    a("s_nop 0")
    for i in range(8): a(f"v_cvt_pk_bf16_f32 v{A_P+i}, v{S+2*i}, v{S+2*i+1}")
    a("s_nop 1")
    for h in range(2):
        a(f"v_mfma_f32_32x32x16_bf16 v[{A_O}:{A_O+15}], v[{A_V+4*h}:{A_V+4*h+3}], v[{A_P+4*h}:{A_P+4*h+3}], v[{A_O}:{A_O+15}]")
        a(f"v_mfma_f32_16x16x32_bf16 v[{A_L}:{A_L+3}], v[{A_SEL}:{A_SEL+3}], v[{A_P+4*h}:{A_P+4*h+3}], v[{A_L}:{A_L+3}]")
    a("s_add_u32 s53, s53, 4096")
    a("s_sub_u32 s54, s54, 1")
    a("s_cmp_lg_u32 s54, 0")
    a("s_cbranch_scc1 L_pa_fb2")
    a("s_nop 7"); a("s_nop 7")
    a("s_branch L_pa_fin")
```

```python
from gen2 import *
import gen2
from k1gen import Rec
from k34gen import CoreK, SK, K_XD, K_WD, K_XR, K_WR, K_XF, K_WF, K_ACC
HF = os.environ.get('HF', 'sc1 ')
D_H3 = 32
SPIN_MAX = 1 << 22

def spin_wait(a, vdst, vzero, soff_sgpr, target, tag, issued=True):
    lab = a.newlabel("sp" + tag); ok = a.newlabel("spok" + tag)
    a("s_mov_b32 s91, 0")
    a.label(lab)
    a(f"v_readfirstlane_b32 s90, v{vdst}")
    a(f"s_cmp_ge_u32 s90, {target}")
    a(f"s_cbranch_scc1 {ok}")
    a("s_add_u32 s91, s91, 1")
    a(f"s_cmp_ge_u32 s91, {SPIN_MAX}")
    a(f"s_cbranch_scc1 {ok}")
    a("s_sleep 4")
    a(f"buffer_load_dword v{vdst}, v{vzero}, s[16:19], s{soff_sgpr} offen sc1")
    a("s_waitcnt vmcnt(0)")
    a(f"s_branch {lab}")
    a.label(ok)

class CoreK2(CoreK):
    def __init__(self, a): self.a = a; self.xf = ""
    def dma(self, stage):
        a = self.a; t = ("st", stage); sl = (stage % 4) * SK
        return [
            lambda: a(f"s_add_u32 m0, s29, {sl}"),
            lambda: a.vmem(f"buffer_load_dwordx4 v{K_XD}, s[16:19], s24 offen {HF}lds", t),
            lambda: a.vmem(f"buffer_load_dwordx4 v{K_XD}, s[16:19], s24 offen offset:1024 {HF}lds", t),
            lambda: a(f"s_add_u32 m0, s29, {sl + 16384}"),
            lambda: a.vmem(f"buffer_load_dwordx4 v{K_WD}, s[12:15], s25 offen lds", t),
            lambda: a.vmem(f"buffer_load_dwordx4 v{K_WD+1}, s[12:15], s25 offen offset:1024 lds", t),
            lambda: a("s_add_u32 s24, s24, 4096"),
            lambda: a(f"s_add_u32 s25, s25, {64*2048}"),
        ]

def p4_early(a):
    R = Rec(a)
    R("s_and_b32 s43, s40, 1")
    R("s_lshr_b32 s42, s40, 1")
    R("s_lshl_b32 s42, s42, 2")
    R("s_and_b32 s44, s41, 3")
    R("s_add_u32 s42, s42, s44")
    R("s_lshr_b32 s44, s41, 2")
    R("s_lshl_b32 s47, s42, 3")
    R("s_add_u32 s47, s47, s44")
    R("v_lshlrev_b32 v224, 4, v1")
    R("s_lshl_b32 s55, s42, 2")
    R("s_lshr_b32 s56, s20, 1")
    R("s_add_u32 s55, s55, s56")
    R("s_lshl_b32 s57, s22, 11")
    R("s_mul_i32 s56, s55, 229376")
    R("s_add_u32 s56, s56, s57")
    R(f"s_add_u32 s56, s56, {WS_H3}")
    R("v_add_u32 v7, s56, v224")
    R("s_lshl_b32 s56, s55, 16")
    R("s_add_u32 s56, s56, s57")
    R(f"s_add_u32 s56, s56, {WS_O}")
    R(f"v_add_u32 v{K_XD}, s56, v224")
    R("v_lshlrev_b32 v225, 1, v3")
    R("v_xor_b32 v225, v2, v225")
    R("v_xor_b32 v226, 8, v225")
    R("s_lshl_b32 s55, s20, 3")
    R("v_add_u32 v227, s55, v3")
    R("v_lshlrev_b32 v227, 11, v227")
    R("s_lshl_b32 s55, s44, 8")
    R("v_add_u32 v227, s55, v227")
    R(f"v_lshl_add_u32 v{K_WD}, v225, 4, v227")
    R("v_lshl_add_u32 v226, v226, 4, v227")
    R(f"v_add_u32 v{K_WD+1}, {4*2048-1024}, v226")
    R("s_lshl_b32 s29, s20, 11")
    R(f"s_mul_i32 s24, s43, {8*4096}")
    R(f"s_mul_i32 s25, s43, {8*64*2048}")
    R("s_mov_b32 s12, s70", "s_mov_b32 s13, s71", f"s_mov_b32 s14, {2*MB}", "s_mov_b32 s15, 0x00020000")
    return R.ops

def p3_early_emit(a, remap=None):
    a("s_and_b32 s42, s60, 7")
    a("s_mov_b32 s39, s42")
    a("s_lshr_b32 s43, s40, 1")
    a("s_mul_i32 s43, s43, 7")
    a("s_lshr_b32 s44, s60, 3")
    a("s_add_u32 s44, s44, s43")
    a("s_movk_i32 s23, 7168")
    a("s_lshl_b32 s45, s44, 8")
    a("s_lshl_b32 s46, s42, 3")
    if remap:
        a(f"v_and_b32 v{remap[2]}, 15, v1")
        a(f"v_lshrrev_b32 v{remap[3]}, 4, v1")
    sym_setup16(a, "frag", 23, 45, 46, 1024, remap=remap)
    a(f"s_add_u32 s8, s62, {WS_X1}")
    a("s_addc_u32 s9, s63, 0")
    a(f"s_mov_b32 s10, {4*MB}")
    a("s_mov_b32 s11, 0x00020000")
    srd(a, 12, 68, 7 * MB)
    a(f"s_mov_b32 s{S_SLOT}, 0")
    Core16(a, "frag", role="S", xflag=HF).prologue_dma()

def phase3(a, C4, merged=False):
    from k2m import flag_add, F_O, F_CS
    a("v_and_b32 v2, 15, v1")
    a("v_lshrrev_b32 v3, 4, v1")
    a("s_lshr_b32 s21, s20, 1")
    a(f"s_mov_b32 s49, s{S_SLOT}")
    read_addr_setup16(a, "frag")
    a(f"s_mov_b32 s{S_SLOT}, s49")
    def addr_ops():
        r = Rec(a)
        r("s_lshl_b32 s48, s21, 1")
        r("s_add_u32 s48, s48, s46")
        r("s_mul_i32 s48, s48, 229376")
        r("s_lshl_b32 s49, s44, 1")
        r("s_add_u32 s49, s49, s22")
        r("s_lshl_b32 s49, s49, 12")
        r("s_add_u32 s48, s48, s49")
        r(f"s_add_u32 s48, s48, {WS_H3}")
        r("v_lshlrev_b32 v28, 4, v1")
        r("v_add_u32 v29, 2048, v28")
        r("v_add_u32 v30, 229376, v28")
        r("v_add_u32 v31, 229376, v29")
        r("s_lshl_b32 s51, s42, 8", "s_lshl_b32 s52, s21, 6", "s_add_u32 s51, s51, s52", "s_lshl_b32 s51, s51, 3", f"s_add_u32 s53, s51, {WS_ST1}", f"s_add_u32 s51, s51, {WS_G + 4}")
        r("v_lshlrev_b32 v19, 3, v2")
        for tt in range(4):
            r.f(lambda tt=tt: a.vmem(f"buffer_load_dword v{220+tt}, v19, s[16:19], s51 offen offset:{128*tt}", "aux"))
        r("s_lshl_b32 s54, s44, 9", "s_lshl_b32 s52, s22, 8", "s_add_u32 s54, s54, s52", f"s_add_u32 s54, s54, {WS_CSF}")
        r("v_lshlrev_b32 v18, 4, v3")
        return r.ops
    def late_loads():
        r = Rec(a)
        for tt in range(4):
            r.f(lambda tt=tt: a.vmem(f"buffer_load_dwordx2 v[{208+2*tt}:{209+2*tt}], v19, s[16:19], s53 offen offset:{128*tt} sc1", "late"))
        for c in range(4):
            r.f(lambda c=c: a.vmem(f"buffer_load_dwordx4 v[{192+4*c}:{195+4*c}], v18, s[16:19], s54 offen offset:{64*c} sc1", "late"))
        return r.ops
    core = Core16(a, "frag", tag="k3", role="S", xflag=HF)
    def sigs():
        flag_add(a, [f"s_add_u32 s48, s37, {F_O}", "s_lshl_b32 s48, s48, 8", f"s_add_u32 s48, s48, {WS_FLAG}"], "o")
    def polls():
        lab = a.newlabel("np3")
        a("s_lshr_b32 s38, s40, 1")
        a("s_lshl_b32 s38, s38, 1")
        a("s_bfe_u32 s50, s41, 0x10001")
        a("s_add_u32 s38, s38, s50")
        a(f"s_add_u32 s38, s38, {F_O}")
        a("s_lshl_b32 s38, s38, 8")
        a(f"s_add_u32 s38, s38, {WS_FLAG}")
        a(f"s_mov_b32 s34, {WS_FLAG + F_CS*256}")
        a("v_mov_b32 v24, 0")
        a("s_cmp_lg_u32 s20, 0")
        a(f"s_cbranch_scc1 {lab}")
        a("buffer_load_dword v25, v24, s[16:19], s38 offen sc1")
        a("buffer_load_dword v26, v24, s[16:19], s34 offen sc1")
        a.label(lab)
    def chks():
        lab = a.newlabel("nc3")
        a("s_cmp_lg_u32 s20, 0")
        a(f"s_cbranch_scc1 {lab}")
        a("s_waitcnt vmcnt(6)")
        spin_wait(a, 25, 24, 38, 32, "o")
        spin_wait(a, 26, 24, 34, 32, "cs")
        a.label(lab)
    hk = dict(prebar3=["ost"], after3=sigs, spread12=addr_ops, end12=polls, end13=chks,
              spreadN2=late_loads, spreadN1=lambda: p4_early(a))
    def final_hook():
        a.wait_all(vm=False)
        a("s_barrier")
        ops = []
        for st in range(3): ops += C4.dma(st)
        return ops
    hk["final"] = final_hook
    if os.environ.get("ST3"):
        stamp(a, 1)
        hk.update(start=lambda: stamp(a, 2), after3=lambda: (sigs(), stamp(a, 3)), pre_tail=lambda: stamp(a, 4))
    core.mainloop(hooks=hk, npeel=4, ntail=2)
    a.wait_vm("late")
    stamp(a, 5)
    ln_gelu_epilogue(a, 48, 3584, [28, 29, 30, 31], None, [(208 + 2 * t, 209 + 2 * t) for t in range(4)], "regs", scale=[220, 221, 222, 223], tag="h3st")

def service(a):
    from k2m import flag_add, F_X1, F_CS
    a("s_lshr_b32 s50, s40, 1")
    a("s_lshl_b32 s50, s50, 3")
    a("s_add_u32 s50, s50, s60")
    a("s_sub_u32 s50, s50, 56")
    a("s_mov_b32 s96, s68"); a("s_mov_b32 s97, s69"); a(f"s_mov_b32 s98, {7*MB}"); a("s_mov_b32 s99, 0x00020000")
    a("v_mul_u32_u24 v16, 147, v1")
    a("v_lshrrev_b32 v16, 11, v16")
    a("v_mul_u32_u24 v17, 14, v16")
    a("v_sub_u32 v17, v1, v17")
    a("v_mul_u32_u24 v18, 7168, v16")
    a("v_lshl_add_u32 v18, v17, 4, v18")
    a("v_cmp_le_u32 vcc, 56, v1")
    a("v_mov_b32 v19, 0x7fffffff")
    a("s_mul_i32 s51, s20, {}".format(128 * 7168))
    a("v_cndmask_b32 v18, v18, v19, vcc")
    a("s_mul_i32 s52, s50, 224")
    a("s_add_u32 s51, s51, s52")
    a("v_mov_b32 v28, 0x00003f80")
    a("v_mov_b32 v29, 0x3f800000")
    for i in range(8): a(f"v_mov_b32 v{32+i}, 0")
    for i in range(32):
        a(f"buffer_load_dwordx4 v[{64+4*i}:{67+4*i}], v18, s[96:99], s51 offen")
        a(f"s_add_u32 s51, s51, {4*7168}")
    for i in range(32):
        if i % 4 == 0: a(f"s_waitcnt vmcnt({28-i})")
        for q in range(4):
            a(f"v_dot2_f32_bf16 v{32+2*q}, v{64+4*i+q}, v28, v{32+2*q}")
            a(f"v_dot2_f32_bf16 v{33+2*q}, v{64+4*i+q}, v29, v{33+2*q}")
    a("v_mul_u32_u24 v19, 448, v16")
    a("v_lshl_add_u32 v19, v17, 5, v19")
    a("s_mul_i32 s51, s20, 1792")
    a("v_add_u32 v19, s51, v19")
    a("v_lshlrev_b32 v20, 5, v1")
    a("v_add_u32 v20, 32768, v20")
    a("v_cndmask_b32 v19, v19, v20, vcc")
    a("ds_write_b128 v19, v[32:35]")
    a("ds_write_b128 v19, v[36:39] offset:16")
    a("s_lshr_b32 s38, s50, 2")
    a(f"s_add_u32 s38, s38, {F_X1}")
    a("s_lshl_b32 s38, s38, 8")
    a(f"s_add_u32 s38, s38, {WS_FLAG}")
    a("s_cmp_lg_u32 s20, 0")
    a("s_cbranch_scc1 L_sv_w")
    a("v_mov_b32 v24, 0")
    a("v_mov_b32 v25, 0")
    a("s_nop 0")
    spin_wait(a, 25, 24, 38, 32, "svx")
    a.label("L_sv_w")
    a("s_waitcnt lgkmcnt(0)")
    a("s_barrier")
    a("s_lshl_b32 s51, s50, 9")
    a("s_lshl_b32 s52, s20, 15")
    a("s_add_u32 s51, s51, s52")
    a(f"s_add_u32 s51, s51, {WS_P1}")
    a("s_add_u32 s52, s51, 16384")
    a("v_lshlrev_b32 v21, 3, v1")
    a("buffer_load_dwordx2 v[40:41], v21, s[16:19], s51 offen sc1")
    a("buffer_load_dwordx2 v[42:43], v21, s[16:19], s52 offen sc1")
    a("v_and_b32 v22, 127, v0")
    a("v_lshlrev_b32 v22, 2, v22")
    for q in range(32): a(f"ds_read_b32 v{64+q}, v22 offset:{448*q}")
    a("s_waitcnt lgkmcnt(0)")
    for w in (16, 8, 4, 2, 1):
        for q in range(w): a(f"v_add_f32 v{64+q}, v{64+q}, v{64+w+q}")
    a("v_mov_b32 v23, 112")
    a("v_cmp_lt_u32 vcc, v0, v23")
    a("v_mov_b32 v23, 0x7fffffff")
    a("s_mul_i32 s51, s50, 448")
    a(f"s_add_u32 s51, s51, {WS_CSF}")
    a("v_cndmask_b32 v22, v23, v22, vcc")
    a("s_waitcnt vmcnt(0)")
    a("buffer_store_dword v64, v22, s[16:19], s51 offen sc1")
    a("v_add_f32 v40, v40, v42")
    a("v_add_f32 v41, v41, v43")
    a("s_lshl_b32 s51, s20, 9")
    a("s_add_u32 s51, s51, 65536")
    a("v_add_u32 v23, s51, v21")
    a("ds_write_b64 v23, v[40:41]")
    a("s_waitcnt lgkmcnt(0)")
    a("s_barrier")
    a("v_add_u32 v23, 65536, v21")
    for q in range(8): a(f"ds_read_b64 v[{64+2*q}:{65+2*q}], v23 offset:{512*q}")
    a("s_waitcnt lgkmcnt(0)")
    for q in range(1, 8):
        a(f"v_add_f32 v64, v64, v{64+2*q}")
        a(f"v_add_f32 v65, v65, v{65+2*q}")
    a(f"v_mul_f32 v64, {f2u(1/1024)}, v64")
    a(f"v_mul_f32 v65, {f2u(1/1024)}, v65")
    a("v_fma_f32 v65, -v64, v64, v65")
    a("v_max_f32 v65, 0, v65")
    a(f"v_add_f32 v65, {f2u(1e-5)}, v65")
    a("v_rsq_f32 v65, v65")
    a("s_lshl_b32 s51, s50, 9")
    a(f"s_add_u32 s51, s51, {WS_ST1}")
    a("s_cmp_lg_u32 s20, 0")
    a("s_cbranch_scc1 L_sv_ns")
    a("buffer_store_dwordx2 v[64:65], v21, s[16:19], s51 offen sc1")
    a.label("L_sv_ns")
    a("s_waitcnt vmcnt(0)")
    a("s_barrier")
    flag_add(a, [f"s_mov_b32 s48, {WS_FLAG + F_CS*256}"], "cs")
    a("s_lshl_b32 s51, s50, 3")
    a("s_add_u32 s51, s51, s20")
    a("v_lshlrev_b32 v26, 6, v1")
    a("s_mov_b32 s96, s70"); a("s_mov_b32 s97, s71"); a(f"s_mov_b32 s98, {2*MB}")
    a("s_lshl_b32 s52, s51, 13")
    for i in range(2):
        a("buffer_load_dword v27, v26, s[96:99], s52 offen")
        a("s_add_u32 s52, s52, 4096")
    a("s_mov_b32 s96, s72"); a("s_mov_b32 s97, s73"); a(f"s_mov_b32 s98, {7*MB}")
    a("s_lshl_b32 s52, s51, 12")
    for i in range(7):
        a("buffer_load_dword v27, v26, s[96:99], s52 offen")
        a(f"s_add_u32 s52, s52, {MB}")

def phase4(a, C, had3, st=(4, 5, 6)):
    a("s_lshr_b32 s23, s20, 2")
    a("s_bfe_u32 s21, s20, 0x10001")
    a("v_lshlrev_b32 v20, 4, v1")
    a("s_lshl_b32 s48, s21, 13")
    a("s_lshl_b32 s49, s23, 10")
    a("s_add_u32 s48, s48, s49")
    a(f"v_add_u32 v{K_XR}, s48, v20")
    a(f"v_add_u32 v{K_XR+1}, {2*SK}, v{K_XR}")
    a("v_bfe_u32 v18, v1, 2, 2")
    a("v_lshl_add_u32 v18, v3, 2, v18")
    a("v_and_b32 v19, 7, v18")
    a("s_lshl_b32 s48, s22, 2")
    a("v_xor_b32 v19, s48, v19")
    a("v_lshlrev_b32 v18, 8, v18")
    a("v_lshl_add_u32 v18, v19, 5, v18")
    a("v_and_b32 v19, 3, v1")
    a("v_lshl_add_u32 v18, v19, 3, v18")
    a("s_lshl_b32 s48, s23, 13")
    a("s_add_u32 s48, s48, 16384")
    a(f"v_add_u32 v{K_WR}, s48, v18")
    for c in range(1, 4): a(f"v_xor_b32 v{K_WR+c}, {c<<5}, v{K_WR}")
    for c in range(4): a(f"v_add_u32 v{K_WR+4+c}, {2*SK}, v{K_WR+c}")
    a("s_cmp_eq_u32 s43, 0")
    a("s_cselect_b32 s28, 8, 6")
    srd(a, 8, 74, 4 * MB) if False else None
    a("s_lshl_b32 s48, s42, 7")
    a("s_lshl_b32 s49, s21, 6")
    a("s_add_u32 s46, s48, s49")
    a("s_lshl_b32 s50, s42, 2")
    a("s_lshl_b32 s51, s21, 1")
    a("s_add_u32 s50, s50, s51")
    a("s_lshl_b32 s50, s50, 16")
    a("s_lshl_b32 s51, s44, 1")
    a("s_add_u32 s51, s51, s22")
    a("s_lshl_b32 s51, s51, 12")
    a("s_add_u32 s50, s50, s51")
    a("s_lshl_b32 s51, s23, 10")
    a("s_add_u32 s50, s50, s51")
    a(f"s_add_u32 s36, s50, {WS_X1}")
    a("s_add_u32 s37, s36, 65536")
    a("s_nop 1")
    for i in range(64): a(f"v_mov_b32 v{K_ACC+i}, 0")
    a("v_mov_b32 v18, 0")
    a("s_lshr_b32 s38, s42, 1")
    a("s_lshl_b32 s38, s38, 8")
    a(f"s_add_u32 s38, s38, {WS_FLAG}")
    a.wait_vm(("st", 0))
    a("s_barrier")
    if st[0] is not None: stamp(a, st[0])
    def signal():
        lab = a.newlabel("nosig3")
        a("s_cmp_ge_u32 s60, 56")
        a(f"s_cbranch_scc1 {lab}")
        a("s_cmp_lg_u32 s20, 0")
        a(f"s_cbranch_scc1 {lab}")
        a("s_lshl_b32 s48, s39, 8")
        a(f"s_add_u32 s48, s48, {WS_FLAG}")
        a("v_mov_b32 v19, 1")
        a("s_mov_b64 exec, 1")
        a("buffer_atomic_add v19, v18, s[16:19], s48 offen")
        a("s_mov_b64 exec, -1")
        a.label(lab)
    C.period(0, dma=True)
    C.period(1, dma=True, extra={16: [lambda: a.wait_all(lgkm=False)]})
    signal()
    C.period(2, dma=True)
    def poll0():
        lab = a.newlabel("nopoll")
        a("s_cmp_lg_u32 s20, 0")
        a(f"s_cbranch_scc1 {lab}")
        a("buffer_load_dword v19, v18, s[16:19], s38 offen sc1")
        a.label(lab)
    def chk0():
        lab = a.newlabel("nochk")
        a("s_cmp_lg_u32 s20, 0")
        a(f"s_cbranch_scc1 {lab}")
        a("s_waitcnt vmcnt(4)")
        spin_wait(a, 19, 18, 38, 28, "h3")
        a.label(lab)
    C.period(3, dma=True, extra={16: [poll0]})
    C.period(4, dma=True, extra={16: [chk0]})
    a(f"v_mov_b32 v{K_XD}, v7")
    a("s_mov_b32 s12, s72")
    a("s_mov_b32 s13, s73")
    a(f"s_mov_b32 s14, {7*MB}")
    a("s_cmp_eq_u32 s43, 0")
    a(f"s_cselect_b32 s24, {24*4096}, 0")
    a(f"s_cselect_b32 s25, {24*64*2048}, 0")
    if st[1] is not None: stamp(a, st[1])
    a.vm = [("st", 6)] * 4 + [("st", 7)] * 4
    vm_top = list(a.vm)
    a.lines.append(".p2align 6")
    a.label("L_p4_loop")
    lt = [lambda: a("s_sub_u32 s28, s28, 1"), lambda: a("s_cmp_lg_u32 s28, 0")]
    for s in range(5, 9): C.period(s, dma=True, extra=({15: lt} if s == 8 else None))
    assert [(t[0], t[1] - 4) for t in a.vm] == vm_top, (a.vm, vm_top)
    a("s_cbranch_scc1 L_p4_loop")
    a.vm = [("st", 38)] * 4 + [("st", 39)] * 4
    a("s_lshl_b32 s56, s47, 15")
    a("s_lshl_b32 s49, s20, 12")
    a("s_add_u32 s56, s56, s49")
    a(f"s_add_u32 s56, s56, {WS_PART}")
    a("s_mov_b32 s52, 0")
    a("s_lshl_b32 s53, s47, 8")
    a(f"s_add_u32 s53, s53, {WS_FLAG + 128*256}")
    a("s_mov_b32 s55, 0")
    def poll_issue():
        a.vmem("buffer_load_dword v19, v18, s[16:19], s53 offen sc1", "poll")
    def early():
        a("s_cmp_eq_u32 s43, 0")
        a("s_cbranch_scc0 L_p4_noearly")
        for tt in range(4):
            a(f"buffer_load_dwordx4 v[{176+4*tt}:{179+4*tt}], v20, s[16:19], s{36 + (tt>>1)} offen offset:{2048*(tt&1)} {HF}")
        a("s_lshl_b32 s48, s46, 3")
        a(f"s_add_u32 s48, s48, {WS_G + 4}")
        a("v_lshlrev_b32 v21, 3, v2")
        for tt in range(4):
            a(f"buffer_load_dword v{24+tt}, v21, s[16:19], s48 offen offset:{128*tt}")
        a("v_readfirstlane_b32 s54, v19")
        a("s_lshr_b32 s54, s54, s52")
        a("s_and_b32 s55, s54, 1")
        a("s_cbranch_scc0 L_p4_noearly")
        for i in range(4):
            a(f"buffer_load_dwordx4 v[{160+4*i}:{163+4*i}], v20, s[16:19], s56 offen offset:{1024*i} sc1")
        a.label("L_p4_noearly")
    C.period(37, dma=False, extra={8: [poll_issue]})
    C.period(38, dma=False, extra={16: [lambda: a.wait_vm("poll")]})
    C.period(39, dma=False, last=True, extra={0: [early]})
    for f in C.mfmas(39): f()
    if st[2] is not None: stamp(a, st[2])
    a("s_barrier")
    a("s_nop 3")
    a("s_lshl_b32 s48, s20, 13")
    a("v_add_u32 v21, s48, v20")
    a("s_xor_b32 s48, s20, 4")
    a("s_lshl_b32 s48, s48, 13")
    a("v_add_u32 v22, s48, v20")
    a("s_cmp_eq_u32 s23, 0")
    a("s_cbranch_scc0 L_p4_x1")
    for i in range(8): a(f"ds_write_b128 v21, v[{K_ACC+32+4*i}:{K_ACC+35+4*i}] offset:{1024*i}")
    a("s_branch L_p4_x2")
    a.label("L_p4_x1")
    for i in range(8): a(f"ds_write_b128 v21, v[{K_ACC+4*i}:{K_ACC+3+4*i}] offset:{1024*i}")
    a("s_waitcnt lgkmcnt(0)")
    for i in range(32): a(f"v_mov_b32 v{K_ACC+i}, v{K_ACC+32+i}")
    a.label("L_p4_x2")
    a("s_waitcnt lgkmcnt(0)")
    a("s_barrier")
    for i in range(8): a(f"ds_read_b128 v[{K_ACC+32+4*i}:{K_ACC+35+4*i}], v22 offset:{1024*i}")
    a("s_cmp_eq_u32 s43, 0")
    a("s_cbranch_scc1 L_p4_main_ep")
    a("s_waitcnt lgkmcnt(0)")
    for tt in range(4):
        t = 32 + 4 * tt
        d0, d1 = K_ACC + 4 * tt, K_ACC + 4 * (4 + tt)
        for d in (d0, d1):
            for i in range(4): a(f"v_add_f32 v{d+i}, v{d+i}, v{d+32+i}")
        a(f"v_cvt_pk_bf16_f32 v{t}, v{d0}, v{d0+1}")
        a(f"v_cvt_pk_bf16_f32 v{t+1}, v{d0+2}, v{d0+3}")
        a(f"v_cvt_pk_bf16_f32 v{t+2}, v{d1}, v{d1+1}")
        a(f"v_cvt_pk_bf16_f32 v{t+3}, v{d1+2}, v{d1+3}")
        a(f"buffer_store_dwordx4 v[{t}:{t+3}], v20, s[16:19], s56 offen offset:{1024*tt} sc1")
    a("s_waitcnt vmcnt(0)")
    a("s_barrier")
    a("s_cmp_lg_u32 s20, 0")
    a("s_cbranch_scc1 L_p4_fin")
    a("s_lshl_b32 s48, 1, s52")
    a("v_mov_b32 v19, s48")
    a("s_mov_b64 exec, 1")
    a("buffer_atomic_or v19, v18, s[16:19], s53 offen")
    a("s_branch L_p4_fin")
    a.label("L_p4_main_ep")
    a("s_cmp_eq_u32 s55, 1")
    a("s_cbranch_scc1 L_p4_have")
    a("buffer_load_dword v19, v18, s[16:19], s53 offen sc1")
    a("s_waitcnt vmcnt(1) lgkmcnt(0)")
    a.label("L_p4_have")
    a("s_waitcnt vmcnt(4) lgkmcnt(0)")
    for i in range(32): a(f"v_add_f32 v{K_ACC+i}, v{K_ACC+i}, v{K_ACC+32+i}")
    for tt in range(4):
        for cl in range(2):
            for w in range(2):
                src = 176 + 4 * tt + 2 * cl + w
                d = K_ACC + 4 * (4 * cl + tt) + 2 * w
                a(f"v_lshlrev_b32 v48, 16, v{src}")
                a(f"v_and_b32 v49, 0xffff0000, v{src}")
                a(f"v_fma_f32 v{d}, v48, v{24+tt}, v{d}")
                a(f"v_fma_f32 v{d+1}, v49, v{24+tt}, v{d+1}")
    a("s_cmp_eq_u32 s55, 1")
    a("s_cbranch_scc1 L_p4_have3")
    a("s_mov_b32 s91, 0")
    a.label("L_p4_poll")
    a("s_waitcnt vmcnt(0)")
    a("v_readfirstlane_b32 s54, v19")
    a("s_lshr_b32 s54, s54, s52")
    a("s_and_b32 s54, s54, 1")
    a("s_cbranch_scc1 L_p4_pollok")
    a("s_add_u32 s91, s91, 1")
    a(f"s_cmp_ge_u32 s91, {SPIN_MAX}")
    a("s_cbranch_scc1 L_p4_pollok")
    a("s_sleep 1")
    a("buffer_load_dword v19, v18, s[16:19], s53 offen sc1")
    a("s_branch L_p4_poll")
    a.label("L_p4_pollok")
    for i in range(4):
        a(f"buffer_load_dwordx4 v[{160+4*i}:{163+4*i}], v20, s[16:19], s56 offen offset:{1024*i} sc1")
    a.label("L_p4_have3")
    srd(a, 8, 58, 4 * MB)
    a("v_lshrrev_b32 v48, 1, v3")
    a("v_and_b32 v49, 1, v3")
    a("v_lshl_add_u32 v48, v49, 1, v48")
    a("v_lshlrev_b32 v48, 4, v48")
    a("v_lshl_add_u32 v48, v2, 11, v48")
    a("s_lshl_b32 s50, s46, 11")
    a("s_lshl_b32 s51, s44, 8")
    a("s_add_u32 s50, s50, s51")
    a("s_lshl_b32 s51, s22, 7")
    a("s_add_u32 s50, s50, s51")
    a("s_lshl_b32 s51, s23, 6")
    a("s_add_u32 s50, s50, s51")
    a("s_waitcnt vmcnt(0)")
    for tt in range(4):
        for cl in range(2):
            for w in range(2):
                src = 160 + 4 * tt + 2 * cl + w
                d = K_ACC + 4 * (4 * cl + tt) + 2 * w
                a(f"v_lshlrev_b32 v50, 16, v{src}")
                a(f"v_and_b32 v51, 0xffff0000, v{src}")
                a(f"v_add_f32 v{d}, v{d}, v50")
                a(f"v_add_f32 v{d+1}, v{d+1}, v51")
        t = 32 + 4 * tt
        d0, d1 = K_ACC + 4 * tt, K_ACC + 4 * (4 + tt)
        a(f"v_cvt_pk_bf16_f32 v{t}, v{d0}, v{d0+1}")
        a(f"v_cvt_pk_bf16_f32 v{t+1}, v{d0+2}, v{d0+3}")
        a(f"v_cvt_pk_bf16_f32 v{t+2}, v{d1}, v{d1+1}")
        a(f"v_cvt_pk_bf16_f32 v{t+3}, v{d1+2}, v{d1+3}")
        a("s_nop 1")
        a(f"v_permlane16_swap_b32 v{t}, v{t+2}")
        a(f"v_permlane16_swap_b32 v{t+1}, v{t+3}")
        a("s_nop 1")
        a(f"buffer_store_dwordx4 v[{t}:{t+3}], v48, s[8:11], s50 offen")
        a("s_add_u32 s50, s50, 32768")
    a.label("L_p4_fin")

def k34():
    a = Asm(); a.uid = 5000
    name = "k34_kernel"
    a("s_cmp_ge_u32 s2, 256")
    a("s_cbranch_scc1 L_k34_end")
    a("s_load_dwordx2 s[68:69], s[0:1], 48")
    a("s_load_dwordx2 s[70:71], s[0:1], 16")
    a("s_load_dwordx2 s[72:73], s[0:1], 56")
    a("s_load_dwordx2 s[58:59], s[0:1], 72")
    a("s_load_dwordx4 s[60:63], s[0:1], 80")
    code_prefetch(a, name, 1, vd=27, va=26)
    stamp(a, 0)
    lane_setup(a)
    a("s_and_b32 s40, s2, 7")
    a("s_lshr_b32 s41, s2, 3")
    a("s_waitcnt lgkmcnt(0)")
    srd(a, 16, 62, WS_SIZE)
    srd(a, 64, 60, 256)
    C4 = CoreK2(a)
    a("s_cmp_ge_u32 s41, 28")
    a("s_cbranch_scc1 L_k34_skip3")
    a.vm = []
    p3_early_emit(a)
    phase3(a, C4)
    vm3 = list(a.vm)
    a("s_branch L_k34_p4")
    a.label("L_k34_skip3")
    a("s_mov_b32 s39, 0")
    for i in range(1, 4): stamp(a, i)
    for f in p4_early(a): f()
    a.vm = []
    for st in range(3):
        for f in C4.dma(st): f()
    a("s_waitcnt vmcnt(0)")
    a.label("L_k34_p4")
    a.vm = vm3; a.lgkm = []
    phase4(a, C4, True)
    if gen2.STAMP: a("s_mov_b64 exec, -1"); a("s_waitcnt vmcnt(0)")
    stamp(a, 7); stamp_dump(a, 8, 2)
    a.label("L_k34_end")
    a("s_endpgm")
    return name, a.text(), dict(grid=256, block=512, lds=163840, vgpr=240)

def k234():
    from k2m import phaseA, phaseA_fallback, flag_add, F_O, F_CS, A_K
    a = Asm(); a.uid = 6000
    name = "k234_kernel"
    a("s_cmp_ge_u32 s2, 256")
    a("s_cbranch_scc1 L_k234_end")
    a("s_load_dwordx2 s[4:5], s[0:1], 0")
    a("s_load_dwordx2 s[6:7], s[0:1], 40")
    a("s_load_dwordx2 s[68:69], s[0:1], 48")
    a("s_load_dwordx2 s[70:71], s[0:1], 16")
    a("s_load_dwordx2 s[72:73], s[0:1], 56")
    a("s_load_dwordx2 s[58:59], s[0:1], 72")
    a("s_load_dwordx2 s[62:63], s[0:1], 88")
    code_prefetch(a, name, 2, vd=27, va=26)
    stamp(a, 0)
    a("v_and_b32 v1, 63, v0")
    a("v_lshrrev_b32 v2, 6, v0")
    a("s_and_b32 s40, s2, 7")
    a("v_readfirstlane_b32 s20, v2")
    a("s_lshr_b32 s41, s2, 3")
    a("s_and_b32 s60, s40, 1")
    a("s_lshl_b32 s60, s60, 5")
    a("s_add_u32 s60, s60, s41")
    C4 = CoreK2(a)
    def p3e():
        a("s_cmp_ge_u32 s60, 56")
        a("s_cbranch_scc1 L_k234_noe")
        vm = list(a.vm)
        p3_early_emit(a, remap={2: 236, 3: 237, 16: 238, 17: 239, 18: 235})
        a.label("L_k234_noe")
    phaseA(a, p3e)
    a("s_setprio 0")
    a("s_cmp_ge_u32 s60, 56")
    a("s_cbranch_scc1 L_k234_skip3")
    phase3(a, C4, merged=True)
    vm3 = list(a.vm)
    a("s_branch L_k234_p4")
    a.label("L_k234_skip3")
    a("s_mov_b32 s39, 0")
    a("v_and_b32 v2, 15, v1")
    a("v_lshrrev_b32 v3, 4, v1")
    a("s_waitcnt vmcnt(0) lgkmcnt(0)")
    a("s_barrier")
    flag_add(a, [f"s_add_u32 s48, s37, {F_O}", "s_lshl_b32 s48, s48, 8", f"s_add_u32 s48, s48, {WS_FLAG}"], "o2")
    service(a)
    for f in p4_early(a): f()
    a("s_lshr_b32 s38, s42, 1")
    a(f"s_add_u32 s38, s38, {F_O}")
    a("s_lshl_b32 s38, s38, 8")
    a(f"s_add_u32 s38, s38, {WS_FLAG}")
    a("s_cmp_lg_u32 s20, 0")
    a("s_cbranch_scc1 L_k234_w")
    a("v_mov_b32 v24, 0")
    a("v_mov_b32 v25, 0")
    a("s_nop 0")
    spin_wait(a, 25, 24, 38, 32, "o3")
    a.label("L_k234_w")
    a("s_barrier")
    stamp(a, 5)
    a.vm = []
    for st in range(3):
        for f in C4.dma(st): f()
    a("s_waitcnt vmcnt(0)")
    a.label("L_k234_p4")
    a.vm = vm3; a.lgkm = []
    phase4(a, C4, True, st=((6, None, None) if os.environ.get('ST3') else (None, 6, None)))
    if gen2.STAMP: a("s_mov_b64 exec, -1"); a("s_waitcnt vmcnt(0)")
    stamp(a, 7); stamp_dump(a, 8, 1)
    a.label("L_k234_end")
    a("s_endpgm")
    phaseA_fallback(a)
    return name, a.text(), dict(grid=256, block=512, lds=163840, vgpr=240)
```

```python
import sys, math, os, struct
from asmlib import *
from gemm16 import *

MB = 1 << 20
COMPACT = os.environ.get("COMPACT", "0") == "1"
if COMPACT:
    WS_KV = 0; WS_HS = 8 * MB; WS_H3 = 0; WS_Q = 14 * MB; WS_X1 = 18 * MB; WS_O = 22 * MB; WS_ST = 26 * MB; WS_PART = 28 * MB
else:
    WS_Q = 0; WS_KV = 4 * MB; WS_HS = 12 * MB; WS_X1 = 16 * MB; WS_O = 20 * MB; WS_H3 = 24 * MB; WS_ST = 40 * MB; WS_PART = 44 * MB
WS_CS1 = WS_ST + 720896
WS_CS3 = WS_ST + 131072
WS_G = WS_ST + 393216
WS_P1 = WS_ST + 458752
WS_CSF = WS_ST + 65536
WS_ST1 = WS_ST + 98304
WS_STAMP = WS_ST + MB
WS_FLAG = WS_ST + 917504
WS_SIZE = 56 * MB
WS_PA = 48 * MB
ST_FLAG = os.environ.get("STFLAG", "sc1")

def f2u(x): return struct.unpack("<I", struct.pack("<f", x))[0]
QSCALE = math.log2(math.e) / math.sqrt(32.0)
GC1 = -2.0 * math.log2(math.e) * math.sqrt(2.0 / math.pi)
GC2 = GC1 * 0.044715
STAMP = False

def srd(a, d, base, nbytes):
    a(f"s_mov_b32 s{d}, s{base}")
    a(f"s_mov_b32 s{d+1}, s{base+1}")
    a(f"s_mov_b32 s{d+2}, {nbytes}")
    a(f"s_mov_b32 s{d+3}, 0x00020000")

def stamp(a, idx, rt=False):
    if not STAMP or rt: return
    a(f"s_memtime s[90:91]")
    a(f"s_memrealtime s[92:93]")
    a("s_waitcnt lgkmcnt(0)")
    a(f"s_mov_b32 s{74+idx}, s90")
    a(f"s_mov_b32 s{82+idx}, s92")
    a.lgkm = []

def stamp_dump(a, n, kidx=0):
    if not STAMP: return
    lab = a.newlabel("nodump")
    a("s_cmp_lg_u32 s20, 0")
    a(f"s_cbranch_scc1 {lab}")
    a("s_lshl_b32 s92, s2, 6")
    a(f"s_add_u32 s92, s92, {WS_STAMP + kidx*65536}")
    a("v_mov_b32 v16, 0")
    for i in range(16):
        a(f"v_mov_b32 v17, s{74+i}")
        a(f"buffer_store_dword v17, v16, s[16:19], s92 offen offset:{4*i}")
    a.label(lab)

CODEPF = os.environ.get("CODEPF", "1")
def code_prefetch(a, kname, nloads, allcode=False, vd=8, va=9):
    if CODEPF == "0": return
    a("s_getpc_b64 s[92:93]")
    a.label(f"L_pc_{kname}")
    end = "L_code_end" if allcode else f"L_end_{kname}"
    a(f"s_mov_b32 s94, {end}-L_pc_{kname}")
    a("s_mov_b32 s95, 0x00020000")
    a(f"v_lshlrev_b32 v{va}, 6, v0")
    if os.environ.get("CPF1", "1") == "1" and nloads > 1:
        a("s_bfe_u32 s91, s2, 0x20003")
        a("s_lshl_b32 s91, s91, 15")
        a.vmem(f"buffer_load_dword v{vd}, v{va}, s[92:95], s91 offen", "cpf")
        return
    for i in range(nloads):
        a.vmem(f"buffer_load_dword v{vd}, v{va}, s[92:95], 0 offen", "cpf")
        if i < nloads - 1: a(f"v_add_u32 v{va}, 32768, v{va}")

def lane_setup(a):
    a("v_and_b32 v1, 63, v0")
    a("v_lshrrev_b32 v2, 6, v0")
    a("s_nop 0")
    a("v_readfirstlane_b32 s20, v2")
    a("v_and_b32 v2, 15, v1")
    a("v_lshrrev_b32 v3, 4, v1")
    a("s_lshr_b32 s21, s20, 1")
    a("s_and_b32 s22, s20, 1")

def wave_sum(a, regs):
    pad = max(0, 3 - len(regs))
    steps = ["row_shr:1 row_mask:0xf bank_mask:0xf bound_ctrl:0", "row_shr:2 row_mask:0xf bank_mask:0xf bound_ctrl:0",
             "row_shr:4 row_mask:0xf bank_mask:0xf bound_ctrl:0", "row_shr:8 row_mask:0xf bank_mask:0xf bound_ctrl:0",
             "row_bcast:15 row_mask:0xa bank_mask:0xf", "row_bcast:31 row_mask:0xc bank_mask:0xf"]
    a("s_nop 1")
    for st in steps:
        for r in regs:
            a(f"v_add_f32_dpp v{r}, v{r}, v{r} {st}")
        if pad: a(f"s_nop {pad-1}")

def gelu_block(a, regs, c1, c2, dd, tmp, scale=None):
    n = len(regs)
    P = lambda r: f"v[{r}:{r+1}]"
    for i in range(0, n, 2): a(f"v_pk_mul_f32 {P(tmp[i])}, {P(regs[i])}, {P(regs[i])}")
    for i in range(0, n, 2): a(f"v_pk_fma_f32 {P(tmp[i])}, {P(tmp[i])}, {P(c2)}, {P(c1)}")
    for i in range(0, n, 2): a(f"v_pk_mul_f32 {P(tmp[i])}, {P(tmp[i])}, {P(regs[i])}")
    for i in range(n): a(f"v_exp_f32 v{tmp[i]}, v{tmp[i]}")
    if scale is not None:
        for i in range(0, n, 2): a(f"v_pk_mul_f32 {P(regs[i])}, {P(regs[i])}, {P(scale)}")
    a("s_nop 0")
    for i in range(0, n, 2): a(f"v_pk_fma_f32 {P(tmp[i])}, {P(tmp[i])}, {P(dd)}, {P(dd)}")
    for i in range(n): a(f"v_rcp_f32 v{tmp[i]}, v{tmp[i]}")
    a("s_nop 0")
    for i in range(0, n, 2): a(f"v_pk_mul_f32 {P(regs[i])}, {P(regs[i])}, {P(tmp[i])}")

LDS_X = 3 * SLOT

def ln_gelu_epilogue(a, s_dst_base, kd, v_voff, v_mask, stats_regs, cs_lds, scale=None, tag=None):
    if cs_lds is None:
        a("s_lshl_b32 s33, s22, 8")
        a(f"s_add_u32 s33, s33, {LDS_X}")
        a(f"v_lshl_add_u32 v16, v3, 4, s33")
    elif cs_lds != "regs":
        a(f"v_lshl_add_u32 v16, v3, 4, s{cs_lds}")
    for c in range(4 if cs_lds != "regs" else 0):
        a.ds(f"ds_read_b128 v[{192+4*c}:{195+4*c}], v16 offset:{64*c}", "cs")
    for tt in range(4):
        m, r = stats_regs[tt]
        a(f"v_mul_f32 v224, {f2u(GC1)}, v{r}")
        a(f"v_mul_f32 v226, v{r}, v{r}")
        a(f"v_rcp_f32 v228, v{r}")
        a(f"v_mul_f32 v226, v226, v224")
        a(f"v_mul_f32 v226, {f2u(0.044715)}, v226")
        a(f"v_sub_f32 v230, 0, v{m}")
        a("v_mov_b32 v225, v224")
        a("v_mov_b32 v227, v226")
        a("v_mov_b32 v229, v228")
        a("v_mov_b32 v231, v230")
        if scale:
            a(f"v_mov_b32 v232, v{scale[tt]}")
            a(f"v_mov_b32 v233, v{scale[tt]}")
        a.wait_lgkm("cs")
        regs = []
        for c in range(4):
            d = acc(tt, c)
            for i in range(0, 4, 2):
                a(f"v_pk_fma_f32 v[{d+i}:{d+i+1}], v[230:231], v[{192+4*c+i}:{192+4*c+i+1}], v[{d+i}:{d+i+1}]")
            regs += [d, d + 1, d + 2, d + 3]
        gelu_block(a, regs, 224, 226, 228, list(range(32, 48)), scale=(232 if scale else None))
        t = 48 + 8 * (tt % 2)
        for i in range(8):
            a(f"v_cvt_pk_bf16_f32 v{t+i}, v{regs[2*i]}, v{regs[2*i+1]}")
        if v_mask:
            for i in range(8):
                a(f"v_cndmask_b32 v{t+i}, 0, v{t+i}, {v_mask[tt]}")
        for p in range(2):
            a.vmem(f"buffer_store_dwordx4 v[{t+4*p}:{t+4*p+3}], v{v_voff[tt]}, s[16:19], s{s_dst_base} offen offset:{1024*p} {ST_FLAG}", tag)

def build(kernels, path):
    head = ""
    body = '.amdgcn_target "amdgcn-amd-amdhsa--gfx950"\n.text\n'
    desc = '.section .rodata,"a"\n'
    for name, text, cfg in kernels:
        head += f"; @launch kernel={name} grid=({cfg['grid']},1,1) block=({cfg['block']},1,1) lds={cfg['lds']}\n"
        body += kernel_header(name) + text + f"L_end_{name}:\n"
        desc += kernel_desc(name, cfg['vgpr'])
    body += "L_code_end:\n"
    open(path, "w").write(head + body + desc)

if __name__ == "__main__":
    if "--stamp" in sys.argv: STAMP = True
    pass
```

```python
from gen2 import *
import gen2

class Rec:
    def __init__(self, a): self.a = a; self.ops = []
    def __call__(self, *lines):
        self.ops.append(lambda: [self.a(l) for l in lines])
    def f(self, fn): self.ops.append(fn)
    def split(self, n):
        k = (len(self.ops) + n - 1) // n
        return [self.ops[i*k:(i+1)*k] for i in range(n)]

def rec_wave_sum(r, regs):
    steps = ["row_shr:1 row_mask:0xf bank_mask:0xf bound_ctrl:0", "row_shr:2 row_mask:0xf bank_mask:0xf bound_ctrl:0",
             "row_shr:4 row_mask:0xf bank_mask:0xf bound_ctrl:0", "row_shr:8 row_mask:0xf bank_mask:0xf bound_ctrl:0",
             "row_bcast:15 row_mask:0xa bank_mask:0xf", "row_bcast:31 row_mask:0xc bank_mask:0xf"]
    r("s_nop 1")
    for st in steps:
        for x in regs: r(f"v_add_f32_dpp v{x}, v{x}, v{x} {st}")

def k1():
    a = Asm(); a.uid = 1000
    name = "k1_kernel"
    a("s_cmp_ge_u32 s2, 256")
    a("s_cbranch_scc1 L_k1_end")
    a("s_load_dwordx4 s[4:7], s[0:1], 0")
    a("s_load_dwordx4 s[36:39], s[0:1], 32")
    a("s_load_dwordx4 s[60:63], s[0:1], 80")
    a("s_load_dwordx2 s[72:73], s[0:1], 64")
    code_prefetch(a, name, 3, allcode=True, vd=29, va=30)
    stamp(a, 0)
    lane_setup(a)
    a("s_and_b32 s40, s2, 7")
    a("s_lshr_b32 s41, s2, 3")
    a("s_and_b32 s42, s40, 1")
    a("s_lshl_b32 s42, s42, 2")
    a("s_and_b32 s43, s41, 3")
    a("s_add_u32 s42, s42, s43")
    a("s_lshr_b32 s43, s40, 1")
    a("s_lshr_b32 s44, s41, 2")
    a("s_cmp_eq_u32 s43, 3")
    a("s_movk_i32 s23, 6144")
    a("s_cselect_b32 s23, 2048, s23")
    a("s_cselect_b32 s45, 0, s43")
    a("s_lshl_b32 s58, s45, 11")
    a("s_lshl_b32 s45, s44, 8")
    a("s_add_u32 s45, s45, s58")
    a("s_lshl_b32 s46, s42, 8")
    a("s_lshl_b32 s47, s42, 3")
    a("s_add_u32 s47, s47, s44")
    def pf_setup():
        a(f"s_mov_b32 s{S_LOFF}, 0")
        a("s_sub_u32 s33, s20, 6")
        a("s_lshl_b32 s33, s33, 6")
        a("s_cmp_ge_u32 s41, 16")
        a("s_cbranch_scc1 L_k1_pfw")
        a("s_mov_b32 s34, 0")
        a("s_and_b32 s48, s40, 1")
        a("s_lshl_b32 s48, s48, 10")
        a("s_lshl_b32 s49, s41, 6")
        a("s_add_u32 s48, s48, s49")
        a("v_add_u32 v16, s48, v1")
        a("v_lshlrev_b32 v16, 11, v16")
        a("s_add_u32 s33, s33, 4096")
        a(f"v_add_u32 v{V_LD}, s33, v16")
        a(f"s_movk_i32 s{S_LSTEP}, 128")
        a("s_branch L_ldE_k1")
        a.label("L_k1_pfw")
        a("s_mov_b32 s34, 1")
        a("s_sub_u32 s48, s41, 16")
        a("s_lshl_b32 s48, s48, 2")
        a("v_add_u32 v16, s48, v3")
        a("v_mul_lo_u32 v16, v16, s23")
        a("v_lshl_add_u32 v16, v2, 7, v16")
        a("s_add_u32 s33, s33, s58")
        a(f"v_add_u32 v{V_LD}, s33, v16")
        a(f"s_lshl_b32 s{S_LSTEP}, s23, 6")
    sym_setup16(a, "row", 23, 45, 46, 1024)
    read_addr_setup16(a, "row")
    a("s_waitcnt lgkmcnt(0)")
    stamp(a, 1)
    a("s_sub_u32 s8, s4, 4096")
    a("s_subb_u32 s9, s5, 0")
    a(f"s_mov_b32 s10, {4*MB + 4096}")
    a("s_mov_b32 s11, 0x00020000")
    a("s_cmp_eq_u32 s43, 3")
    a("s_cselect_b32 s12, s36, s6")
    a("s_cselect_b32 s13, s37, s7")
    a(f"s_mov_b32 s14, {6*MB}")
    a(f"s_cselect_b32 s14, {2*MB}, s14")
    a("s_mov_b32 s15, 0x00020000")
    stamp(a, 2)

    def signal():
        lab = a.newlabel("nosig")
        a("s_cmp_lg_u32 s20, 0")
        a(f"s_cbranch_scc1 {lab}")
        a("v_mov_b32 v16, 0")
        a("v_mov_b32 v17, 1")
        a("s_mov_b64 s[50:51], exec")
        a("s_mov_b64 exec, 1")
        a("buffer_atomic_add v17, v16, s[64:67], 0 offen")
        a("s_mov_b64 exec, s[50:51]")
        a.label(lab)

    def rs_loads(kind):
        a(f"s_add_u32 s48, s47, {(kind-1)*64}")
        a("s_lshl_b32 s48, s48, 4")
        a("s_lshl_b32 s49, s20, 1")
        a("s_add_u32 s59, s48, s49")
        a("s_lshl_b32 s49, s59, 11")
        a("s_add_u32 s49, s49, 4096")
        a("v_lshlrev_b32 v16, 5, v1")
        for r in range(2):
            for h in range(2):
                d = 192 + 8 * r + 4 * h
                a.vmem(f"buffer_load_dwordx4 v[{d}:{d+3}], v16, s[8:11], s49 offen offset:{2048*r+16*h}", "duty")
        srd(a, 68, 72, 2048)
        for h in range(2):
            a.vmem(f"buffer_load_dwordx4 v[{216+4*h}:{219+4*h}], v16, s[68:71], 0 offen offset:{16*h}", "duty")
    def rs_ops():
        r = Rec(a)
        r.f(lambda: a.wait_vm("duty"))
        for i in range(6): r(f"v_mov_b32 v{208+i}, 0")
        for i in range(8):
            r(f"v_lshlrev_b32 v224, 16, v{216+i}")
            r(f"v_and_b32 v225, 0xffff0000, v{216+i}")
            for q in range(2):
                x = 192 + 8 * q + i
                r(f"v_lshlrev_b32 v{226+2*q}, 16, v{x}")
                r(f"v_and_b32 v{227+2*q}, 0xffff0000, v{x}")
            for q in range(2):
                for h in range(2):
                    r(f"v_add_f32 v{208+2*q}, v{208+2*q}, v{226+2*q+h}")
                    r(f"v_fma_f32 v{209+2*q}, v{226+2*q+h}, v{226+2*q+h}, v{209+2*q}")
                    r(f"v_mul_f32 v{226+2*q+h}, v{226+2*q+h}, v{224+h}")
            for q in range(2): r(f"v_cvt_pk_bf16_f32 v{226+2*q}, v{226+2*q}, v{227+2*q}")
            for q in range(2):
                r(f"v_lshlrev_b32 v{227+2*q}, 16, v{226+2*q}")
                r(f"v_and_b32 v{226+2*q}, 0xffff0000, v{226+2*q}")
                r(f"v_add_f32 v{212+q}, v{212+q}, v{227+2*q}")
                r(f"v_add_f32 v{212+q}, v{212+q}, v{226+2*q}")
        rec_wave_sum(r, [208, 209, 210, 211, 212, 213])
        for q in range(2):
            s_, q_ = 208 + 2 * q, 209 + 2 * q
            r(f"v_mul_f32 v{s_}, {f2u(1/1024)}, v{s_}")
            r(f"v_mul_f32 v{q_}, {f2u(1/1024)}, v{q_}")
            r(f"v_fma_f32 v{q_}, -v{s_}, v{s_}, v{q_}")
            r(f"v_max_f32 v{q_}, 0, v{q_}")
            r(f"v_add_f32 v{q_}, {f2u(1e-5)}, v{q_}")
            r(f"v_rsq_f32 v{q_}, v{q_}")
        r("v_cvt_pk_bf16_f32 v212, v212, v213")
        r("v_and_b32 v213, 0xffff0000, v212")
        r("v_lshlrev_b32 v212, 16, v212")
        for q in range(2): r(f"v_mul_f32 v{212+q}, {f2u(-math.log2(math.e))}, v{212+q}")
        for q in range(2): r(f"v_exp_f32 v{212+q}, v{212+q}")
        r("s_nop 0")
        for q in range(2): r(f"v_add_f32 v{212+q}, 1.0, v{212+q}")
        for q in range(2): r(f"v_rcp_f32 v{212+q}, v{212+q}")
        r("s_nop 0")
        r("v_cvt_pk_bf16_f32 v212, v212, v213")
        r("v_lshlrev_b32 v216, 16, v212")
        r("v_and_b32 v218, 0xffff0000, v212")
        r("v_sub_f32 v217, 1.0, v216")
        r("v_sub_f32 v219, 1.0, v218")
        r("v_cvt_pk_bf16_f32 v212, v217, v219")
        r("v_lshlrev_b32 v217, 16, v212")
        r("v_and_b32 v219, 0xffff0000, v212")
        r("s_lshl_b32 s49, s59, 3")
        r(f"s_add_u32 s54, s49, {WS_G}")
        r(f"s_add_u32 s49, s49, {WS_ST}")
        r("v_mov_b32 v16, 0")
        r("s_mov_b32 s52, 0")
        r("s_mov_b32 s53, 0x80000000")
        def st():
            a("s_mov_b64 exec, s[52:53]")
            a.vmem("buffer_store_dwordx4 v[208:211], v16, s[16:19], s49 offen sc1", "dst")
            a.vmem("buffer_store_dwordx4 v[216:219], v16, s[16:19], s54 offen sc1", "dst")
            a("s_mov_b64 exec, -1")
        r.f(st)
        return r
    def cs_loads():
        srd(a, 68, 36, 2 * MB)
        a("s_lshl_b32 s48, s42, 7")
        a("s_lshl_b32 s49, s20, 4")
        a("s_add_u32 s48, s48, s49")
        a("s_lshl_b32 s48, s48, 11")
        a("s_lshl_b32 s49, s44, 8")
        a("s_add_u32 s48, s48, s49")
        a("v_lshlrev_b32 v16, 11, v3")
        a("v_lshl_add_u32 v16, v2, 4, v16")
        for r in range(4):
            a.vmem(f"buffer_load_dwordx4 v[{192+4*r}:{195+4*r}], v16, s[68:71], s48 offen", "duty")
            if r < 3: a("s_add_u32 s48, s48, 8192")
    def cs_ops1():
        r = Rec(a)
        r.f(lambda: a.wait_vm("duty"))
        for q in range(4):
            for i in range(4):
                x = 192 + 4 * q + i
                if q == 0:
                    r(f"v_lshlrev_b32 v{208+2*i}, 16, v{x}")
                    r(f"v_and_b32 v{209+2*i}, 0xffff0000, v{x}")
                else:
                    r(f"v_lshlrev_b32 v216, 16, v{x}")
                    r(f"v_and_b32 v217, 0xffff0000, v{x}")
                    r(f"v_add_f32 v{208+2*i}, v{208+2*i}, v216")
                    r(f"v_add_f32 v{209+2*i}, v{209+2*i}, v217")
        r("s_lshl_b32 s48, s20, 11")
        r(f"s_add_u32 s48, s48, {LDS_X}")
        r("v_lshlrev_b32 v16, 9, v3")
        r("v_lshl_add_u32 v16, v2, 5, v16")
        r("v_add_u32 v16, s48, v16")
        r.f(lambda: a.ds("ds_write_b128 v16, v[208:211]", "csw"))
        r.f(lambda: a.ds("ds_write_b128 v16, v[212:215] offset:16", "csw"))
        return r.ops
    def cs_ops2():
        r = Rec(a)
        r("v_and_b32 v16, 127, v0")
        r("v_lshrrev_b32 v17, 7, v0")
        r("v_lshlrev_b32 v18, 12, v17")
        r("v_lshl_add_u32 v18, v16, 2, v18")
        r(f"v_add_u32 v19, {LDS_X}, v18")
        for q in range(8): r.f(lambda q=q: a.ds(f"ds_read_b32 v{192+q}, v19 offset:{512*q}", "csr"))
        r("s_lshl_b32 s48, s42, 14")
        r("s_lshl_b32 s49, s44, 9")
        r("s_add_u32 s48, s48, s49")
        r(f"s_add_u32 s48, s48, {WS_CS1}")
        for _ in range(4): r("s_nop 0")
        r.f(lambda: a.wait_lgkm("csr"))
        for q in range(1, 8): r(f"v_add_f32 v192, v192, v{192+q}")
        r.f(lambda: a.vmem("buffer_store_dword v192, v18, s[16:19], s48 offen sc1", "dst"))
        return r.ops

    PFW = os.environ.get("PFW", "after0")
    PFR = int(os.environ.get("PFR", "256"))
    def wq_pf(kind):
        a(f"s_add_u32 s94, s47, {kind*64}")
        a("s_lshl_b32 s94, s94, 3")
        a("s_add_u32 s94, s94, s20")
        a("s_lshl_b32 s94, s94, 12")
        a(f"s_add_u32 s94, s94, {PFR*6144}")
        a("v_lshlrev_b32 v27, 6, v1")
        a.vmem("buffer_load_dword v28, v27, s[12:15], s94 offen", "pf")
    for role in ("S",):
        if role == "P": a.label("L_k1_roleP")
        a.vm = []; a.lgkm = []
        Core16(a, "row", role=role).prologue_dma()
        vm0 = list(a.vm)
        srd(a, 16, 62, WS_SIZE)
        srd(a, 64, 60, 256)
        a("s_cmp_lg_u32 s20, 7")
        a("s_cbranch_scc1 L_k1_nozero")
        a("s_lshl_b32 s48, s2, 8")
        a(f"s_add_u32 s48, s48, {WS_FLAG}")
        a("v_lshlrev_b32 v16, 2, v1")
        a("v_mov_b32 v17, 0")
        a("buffer_store_dword v17, v16, s[16:19], s48 offen sc1")
        a.label("L_k1_nozero")
        for k in (1, 2, 3):
            a(f"s_cmp_eq_u32 s43, {k}")
            a(f"s_cbranch_scc1 L_k1_p{k}{role}")
        for kind in range(4):
            if kind: a.label(f"L_k1_p{kind}{role}")
            a.vm = list(vm0); a.lgkm = []
            core = Core16(a, "row", swap=(kind == 2), tag=f"k1{kind}", role=role)
            hk = dict(start=lambda: stamp(a, 3), after0=lambda: stamp(a, 4), pre_tail=lambda: stamp(a, 5))
            if kind < 3 and PFW != "none":
                prev = hk[PFW]
                hk[PFW] = (lambda prev=prev, kind=kind: (prev(), wq_pf(kind)))
            if kind == 0:
                cs_loads()
                hk.update(spread2=cs_ops1, spread3=cs_ops2, prebar5=["dst"], after5=signal)
                core.mainloop(hooks=hk, npeel=6)
            elif kind in (1, 2):
                rs_loads(kind)
                parts = rs_ops().split(4)
                for i in range(4): hk[f"spread{2+i}"] = (lambda i=i: parts[i])
                hk.update(prebar7=["dst"], after7=signal)
                core.mainloop(hooks=hk, npeel=8)
            else:
                def poll_issue():
                    lab = a.newlabel("np1")
                    a("v_mov_b32 v16, 0")
                    a("s_cmp_lg_u32 s20, 0")
                    a(f"s_cbranch_scc1 {lab}")
                    a("buffer_load_dword v27, v16, s[64:67], 0 offen sc1")
                    a.label(lab)
                def poll_check():
                    lab = a.newlabel("poll"); ok = a.newlabel("pollok")
                    a("s_cmp_lg_u32 s20, 0")
                    a(f"s_cbranch_scc1 {ok}")
                    a("s_waitcnt vmcnt(6)")
                    a("s_mov_b32 s49, 0")
                    a.label(lab)
                    a("v_readfirstlane_b32 s48, v27")
                    a("s_cmp_ge_u32 s48, 192")
                    a(f"s_cbranch_scc1 {ok}")
                    a("s_add_u32 s49, s49, 1")
                    a(f"s_cmp_ge_u32 s49, {1 << 22}")
                    a(f"s_cbranch_scc1 {ok}")
                    a("s_sleep 4")
                    a("buffer_load_dword v27, v16, s[64:67], 0 offen sc1")
                    a("s_waitcnt vmcnt(0)")
                    a(f"s_branch {lab}")
                    a.label(ok)
                def stat_loads():
                    r = Rec(a)
                    r("s_lshl_b32 s48, s21, 6", "s_add_u32 s48, s48, s46", "s_lshl_b32 s48, s48, 3", f"s_add_u32 s48, s48, {WS_ST}")
                    r("v_lshlrev_b32 v16, 3, v2")
                    for tt in range(4):
                        r.f(lambda tt=tt: a.vmem(f"buffer_load_dwordx2 v[{208+2*tt}:{209+2*tt}], v16, s[16:19], s48 offen offset:{128*tt} sc1", "stat"))
                    r("v_and_b32 v17, 127, v0")
                    r("v_lshrrev_b32 v18, 7, v0")
                    r("v_lshlrev_b32 v19, 15, v18")
                    r("v_lshl_add_u32 v19, v17, 2, v19")
                    r("s_lshl_b32 s49, s44, 9", f"s_add_u32 s49, s49, {WS_CS1}")
                    for kb in range(8):
                        r.f(lambda kb=kb: (a.vmem(f"buffer_load_dword v{216+kb}, v19, s[16:19], s49 offen sc1", "csp"), a("s_add_u32 s49, s49, 4096")))
                    return r.ops
                def red1():
                    r = Rec(a)
                    r("s_lshr_b32 s48, s44, 1", "s_lshr_b32 s49, s48, 1", "s_add_u32 s49, s49, 1", "s_sub_u32 s50, 0, s49", "s_and_b32 s48, s48, 1",
                      "s_cmp_eq_u32 s48, 0", "s_cselect_b32 s49, s49, s50", "s_lshl_b32 s48, s21, 6", "s_add_u32 s48, s48, s46", "s_add_u32 s48, s48, s49")
                    for tt in range(4):
                        v = 28 + tt
                        r(f"v_add_u32 v16, s48, v2")
                        if tt: r(f"v_add_u32 v16, {16*tt}, v16")
                        r(f"v_mov_b32 v18, 2048")
                        r(f"v_cmp_lt_u32 s[{50+2*tt}:{51+2*tt}], v16, v18")
                        r("v_and_b32 v16, 2047, v16")
                        r("v_lshrrev_b32 v17, 5, v16")
                        r("v_lshlrev_b32 v17, 16, v17")
                        r("v_bfe_u32 v18, v16, 4, 1")
                        r("v_lshl_add_u32 v17, v18, 11, v17")
                        r("v_and_b32 v18, 15, v16")
                        r("v_lshl_add_u32 v17, v18, 4, v17")
                        r(f"v_lshl_add_u32 v{v}, v3, 8, v17")
                    r.f(lambda: a.wait_vm("csp"))
                    for kb in range(1, 8): r(f"v_add_f32 v216, v216, v{216+kb}")
                    r("v_lshlrev_b32 v19, 2, v0")
                    r(f"v_add_u32 v19, {LDS_X + 1024}, v19")
                    r.f(lambda: a.ds("ds_write_b32 v19, v216", "rw"))
                    return r.ops
                def red2():
                    r = Rec(a)
                    r("s_lshl_b32 s49, s22, 8", f"s_add_u32 s49, s49, {LDS_X + 1024}")
                    r("v_lshl_add_u32 v19, v1, 2, s49")
                    for g in range(4): r.f(lambda g=g: a.ds(f"ds_read_b32 v{216+g}, v19 offset:{512*g}", "rr"))
                    r("s_lshl_b32 s48, s44, 1", "s_add_u32 s48, s48, s22", "s_lshl_b32 s48, s48, 12", f"s_add_u32 s48, s48, {WS_HS}")
                    for _ in range(4): r("s_nop 0")
                    r.f(lambda: a.wait_lgkm("rr"))
                    r("v_add_f32 v216, v216, v217")
                    r("v_add_f32 v218, v218, v219")
                    r("v_add_f32 v216, v216, v218")
                    r("v_subrev_u32 v19, 1024, v19")
                    r.f(lambda: a.ds("ds_write_b32 v19, v216", "rw2"))
                    for _ in range(4): r("s_nop 0")
                    r.f(lambda: a.wait_lgkm("rw2"))
                    r("s_lshl_b32 s49, s22, 8", f"s_add_u32 s49, s49, {LDS_X}")
                    r("v_lshl_add_u32 v16, v3, 4, s49")
                    for c in range(4): r.f(lambda c=c: a.ds(f"ds_read_b128 v[{192+4*c}:{195+4*c}], v16 offset:{64*c}", "cs"))
                    return r.ops
                def w2pf():
                    srd(a, 68, 38, 2 * MB)
                    a("s_lshl_b32 s48, s47, 3")
                    a("s_add_u32 s48, s48, s20")
                    a("s_lshl_b32 s48, s48, 12")
                    a("v_lshlrev_b32 v27, 6, v1")
                    a("buffer_load_dword v28, v27, s[68:71], s48 offen")
                hk.update(after1=w2pf, end10=poll_issue, end11=poll_check, spread12=stat_loads, spreadN2=red1, spreadN1=red2)
                core.mainloop(hooks=hk, ntail=4)
            a(f"s_branch L_k1_ep{kind}")
    for kind in range(3):
        a.label(f"L_k1_ep{kind}")
        stamp(a, 6)
        hsh, tsh = (17, 11) if kind == 0 else (18, 12)
        base = WS_Q if kind == 0 else (WS_KV + (2048 if kind == 2 else 0))
        a("s_lshl_b32 s48, s44, 2")
        a("s_lshl_b32 s49, s22, 1")
        a("s_add_u32 s48, s48, s49")
        a(f"s_lshl_b32 s48, s48, {hsh}")
        a("s_lshl_b32 s49, s42, 3")
        a("s_lshl_b32 s50, s21, 1")
        a("s_add_u32 s49, s49, s50")
        a(f"s_lshl_b32 s49, s49, {tsh}")
        a("s_add_u32 s48, s48, s49")
        a(f"s_add_u32 s48, s48, {base}")
        a("v_lshrrev_b32 v16, 3, v2")
        a(f"v_lshlrev_b32 v16, {7 if kind == 0 else 8}, v16")
        a("v_and_b32 v17, 7, v2")
        a("v_lshl_add_u32 v16, v17, 4, v16")
        a("v_lshl_add_u32 v16, v3, 9, v16")
        if kind == 0:
            a(f"v_mov_b32 v18, {f2u(QSCALE)}"); a(f"v_mov_b32 v19, {f2u(QSCALE)}")
        n = 0
        for p in range(2):
            for o in range(4):
                t = 128 + 4 * n; n += 1
                if kind == 2:
                    c, pp = (n - 1) // 2, (n - 1) % 2
                    d0, d1 = acc(2 * pp, c), acc(2 * pp + 1, c)
                    soff = (c >> 1) * (1 << hsh) + pp * (1 << tsh); imm = (c & 1) * 128
                else:
                    d0, d1 = acc(o, 2 * p), acc(o, 2 * p + 1)
                    soff = (o >> 1) * (1 << tsh) + p * (1 << hsh); imm = (o & 1) * (256 if kind == 0 else 128)
                if kind == 0:
                    for d in (d0, d0 + 2, d1, d1 + 2):
                        a(f"v_pk_mul_f32 v[{d}:{d+1}], v[{d}:{d+1}], v[18:19]")
                a(f"v_cvt_pk_bf16_f32 v{t}, v{d0}, v{d0+1}")
                a(f"v_cvt_pk_bf16_f32 v{t+1}, v{d0+2}, v{d0+3}")
                a(f"v_cvt_pk_bf16_f32 v{t+2}, v{d1}, v{d1+1}")
                a(f"v_cvt_pk_bf16_f32 v{t+3}, v{d1+2}, v{d1+3}")
                a(f"s_add_u32 s49, s48, {soff}")
                a(f"buffer_store_dwordx4 v[{t}:{t+3}], v16, s[16:19], s49 offen offset:{imm} {ST_FLAG}")
        a("s_branch L_k1_fin")
    a.label("L_k1_ep3")
    a.vm = []; a.lgkm = []
    stamp(a, 6)
    masks = [f"s[{50+2*tt}:{51+2*tt}]" for tt in range(4)]
    a("s_waitcnt vmcnt(0) lgkmcnt(0)")
    ln_gelu_epilogue(a, 48, 1024, [28, 29, 30, 31], masks, [(208 + 2 * t, 209 + 2 * t) for t in range(4)], "regs")
    a.label("L_k1_fin")
    if gen2.STAMP: a("s_waitcnt vmcnt(0)")
    stamp(a, 7); stamp_dump(a, 8, 0)
    a.label("L_k1_end")
    a("s_endpgm")
    return name, a.text(), dict(grid=256, block=512, lds=163840, vgpr=232)
```

```python
from gen2 import *
import gen2
from k1gen import Rec

SLA = 32768
A_Q = 32; A_NEG = 48; A_S = 64; A_P = 96; A_O = 104; A_L = 136; A_SEL = 144; A_K = 148; A_V = 164
G_ACC = 180
G_F = 196
X_RES = 228
C3 = 196
PK = 212
NVA = 240
V_KVD = 4; V_XD = 5; V_WD = 6; V_KVD2 = 7
V_KVR = 8
V_XR = 10
V_WR = 12
V_LP = 14
V_L16 = 15
S_KVO = 24; S_XO = 25; S_WO = 26; S_CN = 29; S_MK = 30; S_MX = 31; S_MW = 34; S_MK2 = 27
XCH = 98304
F_X1 = 16
F_O = 32
F_CS = 48

class KA:
    def __init__(self, a): self.a = a
    def dma(self, stage):
        a = self.a; t = ("st", stage); sl = (stage % 4) * SLA
        if stage < 16:
            return [
                lambda: a(f"s_add_u32 m0, s{S_MK}, {sl}"),
                lambda: a.vmem(f"buffer_load_dwordx4 v{V_KVD}, s[16:19], s{S_KVO} offen lds", t),
                lambda: a(f"s_add_u32 m0, s{S_MX}, {sl}"),
                lambda: a.vmem(f"buffer_load_dwordx4 v{V_XD}, s[16:19], s{S_XO} offen lds", t),
                lambda: a.vmem(f"buffer_load_dwordx4 v{V_XD}, s[16:19], s{S_XO} offen offset:1024 lds", t),
                lambda: a(f"s_add_u32 m0, s{S_MW}, {sl}"),
                lambda: a.vmem(f"buffer_load_dwordx4 v{V_WD}, s[12:15], s{S_WO} offen lds", t),
                lambda: a(f"s_add_u32 s{S_KVO}, s{S_KVO}, 8192"),
                lambda: a(f"s_add_u32 s{S_XO}, s{S_XO}, 4096"),
                lambda: a(f"s_add_u32 s{S_WO}, s{S_WO}, {64*2048}"),
            ]
        ops = [lambda: a(f"s_add_u32 m0, s{S_MK2}, {sl}")]
        for j in range(4):
            ops.append(lambda j=j: a.vmem(f"buffer_load_dwordx4 v{V_KVD2}, s[16:19], s{S_KVO} offen offset:{1024*j} lds", t))
        ops.append(lambda: a(f"s_add_u32 s{S_KVO}, s{S_KVO}, 32768"))
        return ops
    def kvaddr(self, kt):
        if kt < 16:
            sl = kt % 4
            return V_KVR + (sl >> 1), (sl & 1) * SLA
        return V_KVR, ((kt - 16) % 4) * 4096
    def kreads(self, kt):
        a = self.a; k = A_K + 8 * (kt % 2); v, off = self.kvaddr(kt)
        return [lambda: a.ds(f"ds_read_b128 v[{k}:{k+3}], v{v} offset:{off}", ("k", kt, 0)),
                lambda: a.ds(f"ds_read_b128 v[{k+4}:{k+7}], v{v} offset:{off+1024}", ("k", kt, 1))]
    def vreads(self, kt):
        a = self.a; d = A_V + 8 * (kt % 2); v, off = self.kvaddr(kt)
        return [lambda: a.ds(f"ds_read_b128 v[{d}:{d+3}], v{v} offset:{off+2048}", ("v", kt, 0)),
                lambda: a.ds(f"ds_read_b128 v[{d+4}:{d+7}], v{v} offset:{off+3072}", ("v", kt, 1))]
    def greads(self, T):
        a = self.a; i = T % 4; sl = (T // 4) % 4; pr = sl >> 1; off = (sl & 1) * SLA
        gx = G_F + 8 * i; gw = gx + 4
        kg, s = i >> 1, i & 1
        return [lambda: a.ds(f"ds_read_b128 v[{gx}:{gx+3}], v{V_XR+pr} offset:{off+1024*kg+512*s}", ("gx", T)),
                lambda: a.ds(f"ds_read_b64_tr_b16 v[{gw}:{gw+1}], v{V_WR+pr} offset:{off+(32*kg+8*s)*128}", ("gw", T)),
                lambda: a.ds(f"ds_read_b64_tr_b16 v[{gw+2}:{gw+3}], v{V_WR+pr} offset:{off+(32*kg+8*s+16)*128}", ("gw", T))]
    def reads(self, t):
        T = t + 2
        if T > 63: return []
        kv = self.kreads(T // 2) if T % 2 == 0 else self.vreads(T // 2)
        g = (self.greads(2 * T) + self.greads(2 * T + 1)) if T < 32 else []
        return g[:3] + kv + g[3:]
    def qk(self, u, half):
        a = self.a
        kt, qs = u >> 1, u & 1
        k = A_K + 8 * (kt % 2) + 4 * half; S = A_S + 16 * (u % 2); q = A_Q + 8 * qs + 4 * half
        def f():
            a.wait_lgkm(("k", kt, half))
            c = f"v[{A_NEG}:{A_NEG+15}]" if half == 0 else f"v[{S}:{S+15}]"
            a(f"v_mfma_f32_32x32x16_bf16 v[{S}:{S+15}], v[{k}:{k+3}], v[{q}:{q+3}], {c}")
        return f
    def gm(self, T):
        a = self.a
        gx = G_F + 8 * (T % 4); gw = gx + 4
        def f():
            a.wait_lgkm(("gx", T), ("gw", T))
            c = "0" if T == 0 else f"v[{G_ACC}:{G_ACC+15}]"
            a(f"v_mfma_f32_32x32x16_bf16 v[{G_ACC}:{G_ACC+15}], v[{gw}:{gw+3}], v[{gx}:{gx+3}], {c}")
        return f
    def pv(self, u, half):
        a = self.a
        kt, qs = u >> 1, u & 1
        v = A_V + 8 * (kt % 2) + 4 * half; p = A_P + 4 * half; O = A_O + 16 * qs
        def f():
            a.wait_lgkm(("v", kt, half))
            a(f"v_mfma_f32_32x32x16_bf16 v[{O}:{O+15}], v[{v}:{v+3}], v[{p}:{p+3}], v[{O}:{O+15}]")
        return f
    def sm(self, u, half):
        a = self.a
        p = A_P + 4 * half; L = A_L + 4 * (u & 1)
        return lambda: a(f"v_mfma_f32_16x16x32_bf16 v[{L}:{L+3}], v[{A_SEL}:{A_SEL+3}], v[{p}:{p+3}], v[{L}:{L+3}]")
    def slot(self, t, misc=()):
        a = self.a
        S = A_S + 16 * (t % 2)
        e = lambda i: (lambda: a(f"v_exp_f32 v{S+i}, v{S+i}"))
        c = lambda i: (lambda: a(f"v_cvt_pk_bf16_f32 v{A_P+i}, v{S+2*i}, v{S+2*i+1}"))
        rd = self.reads(t)
        nxt = 0 <= t + 1 <= 63; prev = 0 <= t <= 64; cur = 0 <= t <= 63
        gg = 0 <= t + 1 < 32
        seq = []
        def M(f, cond):
            if cond: seq.append(f)
        def V(*fs):
            if cur: seq.extend(fs)
        M(self.qk(t + 1, 0), nxt)
        V(e(0), e(1), e(2))
        M(self.pv(t - 1, 1), prev)
        V(c(0), e(3), e(4), c(1))
        M(self.qk(t + 1, 1), nxt)
        V(e(5), e(6), c(2))
        M(self.sm(t - 1, 1), prev)
        V(e(7), e(8))
        M(self.gm(2 * (t + 1)), gg)
        V(c(3), e(9), e(10), c(4))
        M(self.pv(t, 0), cur)
        V(e(11), e(12), c(5))
        M(self.sm(t, 0), cur)
        V(e(13), e(14))
        M(self.gm(2 * (t + 1) + 1), gg)
        V(e(15), c(6), c(7))
        fill = list(rd) + list(misc)
        n = len(seq)
        out = []; j = 0
        for i, f in enumerate(seq):
            out.append(f)
            tgt = (len(fill) * (i + 1)) // max(1, (n - 6)) if n > 6 else len(fill)
            while j < min(tgt, len(fill)):
                out.append(fill[j]); j += 1
        out += fill[j:]
        for f in out: f()
    def bar(self, tags):
        a = self.a
        n = a._need(a.vm, tags)
        if n is None: a.wait_all(vm=False)
        else:
            a(f"s_waitcnt vmcnt({n}) lgkmcnt(0)")
            a.vm = a.vm[len(a.vm) - n:] if n else []
            a.lgkm = []
        a("s_barrier")
    def period1(self, s, tail=(), extra=None):
        d = self.dma(s + 3)
        h = (len(d) + 1) // 2
        self.a("s_setprio 1")
        self.slot(2 * s - 2, d[:h] + (extra or {}).get(0, []))
        self.a("s_setprio 0")
        self.slot(2 * s - 1, d[h:] + list(tail) + (extra or {}).get(1, []))
        self.bar([("st", s + 1)])
    def period2(self, s, extra=None, tail=(), bartags=None, barrier=True):
        a = self.a
        t0 = 30 + 8 * (s - 16)
        for i in range(8):
            if i % 2 == 0: a(f"s_setprio {3 - i//2}")
            m = list((extra or {}).get(i, []))
            if i == 7: m += [lambda: a(f"v_add_u32 v{V_KVR}, {SLA}, v{V_KVR}")] + list(tail)
            self.slot(t0 + i, m)
        if barrier: self.bar(bartags)

def flag_add(a, slot_sgpr_expr_lines, tag):
    lab = a.newlabel("nf" + tag)
    a("s_cmp_lg_u32 s20, 0")
    a(f"s_cbranch_scc1 {lab}")
    for l in slot_sgpr_expr_lines: a(l)
    a("v_mov_b32 v30, 0")
    a("v_mov_b32 v31, 1")
    a("s_mov_b64 exec, 1")
    a("buffer_atomic_add v31, v30, s[16:19], s48 offen")
    a("s_mov_b64 exec, -1")
    a.label(lab)

def phaseA(a, p3_early):
    from gen2 import stamp as _st
    stamp = (lambda a, i: None) if (os.environ.get('ST3') or os.environ.get('ST4')) else _st
    a("v_and_b32 v2, 31, v1")
    a("v_lshrrev_b32 v3, 5, v1")
    a("s_lshr_b32 s21, s20, 1")
    a("s_and_b32 s22, s20, 1")
    a("s_lshl_b32 s42, s40, 2")
    a("s_and_b32 s43, s41, 3")
    a("s_add_u32 s42, s42, s43")
    a("s_lshr_b32 s43, s41, 2")
    a("s_and_b32 s44, s40, 3")
    a("s_lshl_b32 s44, s44, 2")
    a("s_and_b32 s45, s41, 3")
    a("s_add_u32 s44, s44, s45")
    a("s_lshr_b32 s45, s40, 2")
    a("s_lshl_b32 s45, s45, 3")
    a("s_add_u32 s45, s45, s43")
    a(f"v_lshlrev_b32 v{V_L16}, 4, v1")
    a("s_lshl_b32 s46, s42, 18")
    a(f"s_add_u32 s46, s46, {WS_KV}")
    a("s_lshl_b32 s47, s20, 10")
    a("s_add_u32 s47, s47, s46")
    a(f"v_add_u32 v{V_KVD}, s47, v{V_L16}")
    a("s_lshl_b32 s47, s20, 12")
    a("s_add_u32 s47, s47, s46")
    a(f"v_add_u32 v{V_KVD2}, s47, v{V_L16}")
    a("s_lshl_b32 s46, s44, 2")
    a("s_add_u32 s46, s46, s21")
    a("s_lshl_b32 s46, s46, 16")
    a("s_lshl_b32 s47, s22, 11")
    a("s_add_u32 s46, s46, s47")
    a(f"s_add_u32 s46, s46, {WS_HS}")
    a(f"v_add_u32 v{V_XD}, s46, v{V_L16}")
    a("v_lshrrev_b32 v17, 3, v1")
    a("s_lshl_b32 s46, s20, 3")
    a("v_add_u32 v17, s46, v17")
    a("v_lshlrev_b32 v17, 11, v17")
    a("v_and_b32 v18, 7, v1")
    a("v_bfe_u32 v19, v1, 4, 1")
    a("v_lshlrev_b32 v19, 2, v19")
    a("v_xor_b32 v18, v18, v19")
    a("v_lshl_add_u32 v17, v18, 4, v17")
    a("s_lshl_b32 s46, s45, 7")
    a(f"v_add_u32 v{V_WD}, s46, v17")
    a(f"s_lshl_b32 s{S_MK}, s20, 10")
    a(f"s_lshl_b32 s{S_MX}, s20, 11")
    a(f"s_add_u32 s{S_MX}, s{S_MX}, 8192")
    a(f"s_add_u32 s{S_MW}, s{S_MK}, 24576")
    a(f"s_lshl_b32 s{S_MK2}, s20, 12")
    a("s_lshl_b32 s46, s22, 12")
    a(f"v_add_u32 v{V_KVR}, s46, v{V_L16}")
    a(f"v_add_u32 v{V_KVR+1}, {2*SLA}, v{V_KVR}")
    a("v_lshrrev_b32 v17, 4, v2")
    a("v_lshlrev_b32 v17, 11, v17")
    a("v_lshl_add_u32 v17, v3, 8, v17")
    a("v_and_b32 v18, 15, v2")
    a(f"v_lshl_add_u32 v{V_LP}, v18, 4, v17")
    a("s_lshl_b32 s46, s21, 12")
    a("s_add_u32 s46, s46, 8192")
    a(f"v_add_u32 v{V_XR}, s46, v{V_LP}")
    a(f"v_add_u32 v{V_XR+1}, {2*SLA}, v{V_XR}")
    a("v_bfe_u32 v17, v1, 2, 2")
    a("v_lshl_add_u32 v18, v3, 2, v17")
    a("v_bfe_u32 v19, v1, 1, 1")
    a("v_bfe_u32 v20, v1, 4, 1")
    a("v_lshl_add_u32 v19, v19, 1, v20")
    a("s_lshl_b32 s46, s22, 2")
    a("v_add_u32 v19, s46, v19")
    a("v_lshrrev_b32 v17, 1, v17")
    a("v_lshlrev_b32 v17, 2, v17")
    a("v_xor_b32 v19, v19, v17")
    a("v_lshlrev_b32 v18, 7, v18")
    a("v_lshl_add_u32 v18, v19, 4, v18")
    a("v_and_b32 v20, 1, v1")
    a("v_lshl_add_u32 v18, v20, 3, v18")
    a(f"v_add_u32 v{V_WR}, 24576, v18")
    a(f"v_add_u32 v{V_WR+1}, {2*SLA}, v{V_WR}")
    a("v_bfe_u32 v17, v1, 2, 1")
    a("v_bfe_u32 v18, v1, 4, 1")
    a("v_cmp_eq_u32 vcc, v17, v18")
    a("v_mov_b32 v19, 0x3f803f80")
    a("s_nop 0")
    for i in range(4): a(f"v_cndmask_b32 v{A_SEL+i}, 0, v19, vcc")
    for r in (S_KVO, S_XO, S_WO): a(f"s_mov_b32 s{r}, 0")
    a("s_lshl_b32 s46, s42, 17")
    a("s_lshl_b32 s47, s43, 3")
    a("s_add_u32 s47, s47, s20")
    a("s_andn2_b32 s48, s47, 1")
    a("s_lshl_b32 s48, s48, 11")
    a("s_add_u32 s46, s46, s48")
    a(f"s_add_u32 s46, s46, {WS_Q}")
    a("s_waitcnt lgkmcnt(0)")
    stamp(a, 1)
    srd(a, 16, 62, WS_SIZE)
    srd(a, 12, 6, 2 * MB)
    K = KA(a)
    for i in range(4):
        a.vmem(f"buffer_load_dwordx4 v[{A_Q+4*i}:{A_Q+4*i+3}], v{V_L16}, s[16:19], s46 offen offset:{1024*i}", "q")
    for st in range(3):
        for f in K.dma(st): f()
    srd(a, 8, 4, 4 * MB)
    for i in range(40): a(f"v_mov_b32 v{A_O+i}, 0")
    for i in range(8): a(f"v_mov_b32 v{A_P+i}, 0")
    for i in range(16): a(f"v_mov_b32 v{A_V+i}, 0")
    a.wait_vm(("st", 0))
    a("s_barrier")
    k1b = A_K + 8
    a.ds(f"ds_read_b128 v[{k1b}:{k1b+3}], v{V_L16}", "k0")
    a.ds(f"ds_read_b128 v[{k1b+4}:{k1b+7}], v{V_L16} offset:1024", "k0")
    for f in K.reads(-2): f()
    for f in K.dma(3): f()
    a.wait_lgkm("k0")
    for qs in range(2):
        S = A_S + 16 * qs
        a(f"v_mfma_f32_32x32x16_bf16 v[{S}:{S+15}], v[{k1b}:{k1b+3}], v[{A_Q+8*qs}:{A_Q+8*qs+3}], 0")
        a(f"v_mfma_f32_32x32x16_bf16 v[{S}:{S+15}], v[{k1b+4}:{k1b+7}], v[{A_Q+8*qs+4}:{A_Q+8*qs+7}], v[{S}:{S+15}]")
    for f in K.reads(-1): f()
    K.gm(0)(); K.gm(1)()
    a("s_nop 7"); a("s_nop 3")
    S = A_S
    a(f"v_max3_f32 v17, v{S}, v{S+1}, v{S+2}")
    a(f"v_max3_f32 v18, v{S+3}, v{S+4}, v{S+5}")
    for i in range(6, 32, 4):
        a(f"v_max3_f32 v17, v17, v{S+i}, v{S+i+1}")
        if i + 3 < 32: a(f"v_max3_f32 v18, v18, v{S+i+2}, v{S+i+3}")
    a("v_max_f32 v17, v17, v18")
    a("v_mov_b32 v18, v17")
    a("s_nop 1")
    a("v_permlane32_swap_b32 v17, v18")
    a("s_nop 1")
    a("v_max_f32 v17, v17, v18")
    for i in range(16): a(f"v_sub_f32 v{A_NEG+i}, 0, v17")
    a("s_nop 1")
    K.qk(0, 0)(); K.qk(0, 1)()
    a("s_nop 7")
    K.bar([("st", 1)])
    stamp(a, 2)
    a(f"s_mov_b32 s{S_CN}, 3")
    vm_top = list(a.vm)
    a.lines.append(".p2align 6")
    a.label("L_pa_loop1")
    lt = [lambda: a(f"s_sub_u32 s{S_CN}, s{S_CN}, 1"), lambda: a(f"s_cmp_lg_u32 s{S_CN}, 0")]
    for s in range(1, 5): K.period1(s, tail=(lt if s == 4 else ()))
    assert [(t[0], t[1] - 4) for t in a.vm] == vm_top, (a.vm, vm_top)
    a("s_cbranch_scc1 L_pa_loop1")
    a.vm = [("st", 14)] * 4 + [("st", 15)] * 4
    def xres():
        a("s_lshl_b32 s46, s44, 7")
        a("s_lshl_b32 s48, s21, 5")
        a("s_add_u32 s46, s46, s48")
        a("s_lshl_b32 s48, s46, 11")
        a("s_lshl_b32 s49, s45, 7")
        a("s_add_u32 s48, s48, s49")
        a("s_lshl_b32 s49, s22, 6")
        a("s_add_u32 s48, s48, s49")
        a("v_lshlrev_b32 v17, 11, v2")
        a("v_lshl_add_u32 v17, v3, 3, v17")
        for s in range(2):
            for b in range(2):
                d = X_RES + 4 * s + 2 * b
                a.vmem(f"buffer_load_dwordx2 v[{d}:{d+1}], v17, s[8:11], s48 offen offset:{32*b+16*s}", "xres")
        a("s_lshl_b32 s48, s47, 8")
        a(f"s_add_u32 s48, s48, {WS_G}")
        a("v_lshlrev_b32 v17, 3, v2")
        a.vmem("buffer_load_dword v25, v17, s[16:19], s48 offen", "xres")
    K.period1(13, extra={1: [xres]})
    K.period1(14)
    K.period1(15, tail=[lambda: a("s_lshl_b32 s48, s22, 14"), lambda: a(f"v_add_u32 v{V_KVR}, s48, v{V_L16}")])
    stamp(a, 3)
    r = Rec(a)
    r.f(lambda: a.wait_vm("xres"))
    for s in range(2):
        for b in range(2):
            for w in range(2):
                src = X_RES + 4 * s + 2 * b + w
                d = G_ACC + 8 * s + 4 * b + 2 * w
                r(f"v_lshlrev_b32 v17, 16, v{src}")
                r(f"v_and_b32 v18, 0xffff0000, v{src}")
                r(f"v_add_f32 v{d}, v{d}, v17")
                r(f"v_add_f32 v{d+1}, v{d+1}, v18")
    for i in range(8): r(f"v_cvt_pk_bf16_f32 v{PK+i}, v{G_ACC+2*i}, v{G_ACC+2*i+1}")
    r("s_lshl_b32 s48, s44, 2", "s_add_u32 s48, s48, s21", "s_lshl_b32 s48, s48, 16", "s_lshl_b32 s49, s45, 12", "s_add_u32 s48, s48, s49",
      "s_lshl_b32 s49, s22, 10", "s_add_u32 s48, s48, s49", f"s_add_u32 s48, s48, {WS_X1}")
    r.f(lambda: a.vmem(f"buffer_store_dwordx4 v[{PK}:{PK+3}], v{V_LP}, s[16:19], s48 offen sc1", "x1st"))
    r.f(lambda: a.vmem(f"buffer_store_dwordx4 v[{PK+4}:{PK+7}], v{V_LP}, s[16:19], s48 offen offset:512 sc1", "x1st"))
    r("v_mov_b32 v20, 0"); r("v_mov_b32 v21, 0")
    for i in range(8):
        r(f"v_lshlrev_b32 v17, 16, v{PK+i}")
        r(f"v_and_b32 v18, 0xffff0000, v{PK+i}")
        r("v_add_f32 v20, v20, v17")
        r("v_fma_f32 v21, v17, v17, v21")
        r("v_add_f32 v20, v20, v18")
        r("v_fma_f32 v21, v18, v18, v21")
    r("v_mov_b32 v22, v20", "v_mov_b32 v23, v21", "s_nop 1", "v_permlane32_swap_b32 v20, v22", "v_permlane32_swap_b32 v21, v23", "s_nop 1",
      "v_add_f32 v20, v20, v22", "v_add_f32 v21, v21, v23")
    r("s_lshl_b32 s48, s20, 9", "s_add_u32 s48, s48, 131072", "v_lshl_add_u32 v22, v1, 3, s48")
    r.f(lambda: a.ds("ds_write_b64 v22, v[20:21]", "stw"))
    parts = r.split(6)
    ex = {0: list(K.dma(19))}
    for i in range(6): ex[2 + i] = parts[i]
    K.period2(16, extra=ex, bartags=[("st", 17)])
    r = Rec(a)
    r("v_xor_b32 v22, 512, v22")
    r.f(lambda: a.ds("ds_read_b64 v[22:23], v22", "str"))
    r("v_lshlrev_b32 v24, 3, v2")
    r("s_lshl_b32 s48, s46, 3", "s_lshl_b32 s49, s45, 14", "s_add_u32 s48, s48, s49", f"s_add_u32 s48, s48, {WS_P1}")
    r("s_nop 0"); r("s_nop 0"); r("s_nop 0")
    r.f(lambda: a.wait_lgkm("str"))
    r("v_add_f32 v20, v20, v22"); r("v_add_f32 v21, v21, v23")
    r.f(lambda: a.vmem("buffer_store_dwordx2 v[20:21], v24, s[16:19], s48 offen sc1", "x1st"))
    K.period2(17, extra={0: r.ops}, bartags=[("st", 18), "x1st"] + [("st", 19)])
    flag_add(a, ["s_lshr_b32 s48, s44, 1", f"s_add_u32 s48, s48, {F_X1}", "s_lshl_b32 s48, s48, 8", f"s_add_u32 s48, s48, {WS_FLAG}"], "x1")
    r = Rec(a)
    r("s_mov_b32 s96, s68", "s_mov_b32 s97, s69", f"s_mov_b32 s98, {7*MB}", "s_mov_b32 s99, 0x00020000")
    r("s_mul_i32 s48, s2, 7", "s_add_u32 s48, s48, s20", "s_sub_u32 s48, s48, 1", "s_lshl_b32 s48, s48, 12", "s_cmp_eq_u32 s20, 0", "s_cselect_b32 s48, 0x7f000000, s48")
    r("v_lshlrev_b32 v26, 6, v1")
    r.f(lambda: a.vmem("buffer_load_dword v27, v26, s[96:99], s48 offen", "pf"))
    r2 = Rec(a)
    r2("s_mov_b32 s96, s70", "s_mov_b32 s97, s71", f"s_mov_b32 s98, {2*MB}", f"s_sub_u32 s49, s48, {5*MB}")
    r2.f(lambda: a.vmem("buffer_load_dword v27, v26, s[96:99], s49 offen", "pf"))
    r3 = Rec(a)
    r3("s_mov_b32 s96, s72", "s_mov_b32 s97, s73", f"s_mov_b32 s98, {7*MB}")
    r3.f(lambda: a.vmem("buffer_load_dword v27, v26, s[96:99], s48 offen", "pf"))
    K.period2(18, extra={0: r.ops, 4: r2.ops}, bartags=[])
    def poll0():
        lab = a.newlabel("np")
        a("s_and_b32 s38, s60, 7")
        a(f"s_add_u32 s38, s38, {F_X1}")
        a("s_lshl_b32 s38, s38, 8")
        a(f"s_add_u32 s38, s38, {WS_FLAG}")
        a("v_mov_b32 v30, 0")
        a("s_cmp_lg_u32 s20, 0")
        a(f"s_cbranch_scc1 {lab}")
        a("buffer_load_dword v31, v30, s[16:19], s38 offen sc1")
        a.label(lab)
    def chk0():
        from mega import spin_wait
        lab = a.newlabel("nc")
        a("s_cmp_lg_u32 s20, 0")
        a(f"s_cbranch_scc1 {lab}")
        a("s_waitcnt vmcnt(0)")
        spin_wait(a, 31, 30, 38, 32, "x1")
        a.label(lab)
    K.period2(19, extra={3: [poll0]}, tail=[chk0], bartags=[])
    stamp(a, 4)
    a("s_mov_b32 s35, s47")
    a("s_mov_b32 s36, s42")
    a("s_mov_b32 s37, s43")
    p3_early()
    K.slot(62); K.slot(63)
    a("s_nop 1")
    K.slot(64)
    a("s_lshl_b32 s48, s20, 12")
    a(f"s_add_u32 s48, s48, {XCH}")
    a(f"v_add_u32 v22, s48, v{V_L16}")
    a("v_xor_b32 v23, 4096, v22")
    a("s_lshl_b32 s48, s20, 8")
    a("s_add_u32 s48, s48, 131072")
    a("v_lshl_add_u32 v20, v1, 2, s48")
    a("v_xor_b32 v21, 256, v20")
    a("s_cmp_eq_u32 s22, 0")
    a("s_cbranch_scc0 L_pa_x1")
    for i in range(4): a(f"ds_write_b128 v22, v[{A_O+16+4*i}:{A_O+19+4*i}] offset:{1024*i}")
    a(f"ds_write_b32 v20, v{A_L+4}")
    a("s_branch L_pa_x2")
    a.label("L_pa_x1")
    for i in range(4): a(f"ds_write_b128 v22, v[{A_O+4*i}:{A_O+3+4*i}] offset:{1024*i}")
    a(f"ds_write_b32 v20, v{A_L}")
    a("s_waitcnt lgkmcnt(0)")
    for i in range(16): a(f"v_mov_b32 v{A_O+i}, v{A_O+16+i}")
    a(f"v_mov_b32 v{A_L}, v{A_L+4}")
    for i in range(8): a(f"v_mov_b32 v{A_Q+i}, v{A_Q+8+i}")
    a.label("L_pa_x2")
    a("s_waitcnt lgkmcnt(0)")
    a("s_barrier")
    for i in range(4): a(f"ds_read_b128 v[{A_O+16+4*i}:{A_O+19+4*i}], v23 offset:{1024*i}")
    a(f"ds_read_b32 v{A_L+4}, v21")
    a("s_waitcnt lgkmcnt(0)")
    for i in range(16): a(f"v_add_f32 v{A_O+i}, v{A_O+i}, v{A_O+16+i}")
    a(f"v_add_f32 v{A_L}, v{A_L}, v{A_L+4}")
    a(f"v_max3_f32 v18, abs(v{A_O}), abs(v{A_O+1}), abs(v{A_O+2})")
    for i in range(3, 15, 2): a(f"v_max3_f32 v18, v18, abs(v{A_O+i}), abs(v{A_O+i+1})")
    a(f"v_max3_f32 v18, v18, abs(v{A_O+15}), abs(v{A_O+15})")
    a(f"v_mov_b32 v19, {f2u(2.0**60)}")
    a(f"v_cmp_nlt_f32 vcc, v{A_L}, v19")
    a(f"v_mov_b32 v19, {f2u(2.0**120)}")
    a(f"v_cmp_nlt_f32 s[50:51], v18, v19")
    a(f"v_mov_b32 v19, {f2u(2.0**-60)}")
    a(f"v_cmp_ngt_f32 s[52:53], v{A_L}, v19")
    a("s_nop 1")
    a("s_or_b64 vcc, vcc, s[50:51]")
    a("s_or_b64 vcc, vcc, s[52:53]")
    if os.environ.get("FORCE_FB"): a("s_mov_b64 vcc, -1")
    a("s_cbranch_vccnz L_pa_fallback")
    a.label("L_pa_fin")
    a(f"v_rcp_f32 v18, v{A_L}")
    a("s_nop 0")
    a("v_mul_f32 v18, v18, v25")
    for i in range(16): a(f"v_mul_f32 v{A_O+i}, v{A_O+i}, v18")
    for i in range(8): a(f"v_cvt_pk_bf16_f32 v{X_RES+i}, v{A_O+2*i}, v{A_O+2*i+1}")
    a("s_lshl_b32 s48, s35, 16")
    a("s_lshr_b32 s49, s36, 1")
    a("s_lshl_b32 s49, s49, 12")
    a("s_add_u32 s48, s48, s49")
    a("s_and_b32 s49, s36, 1")
    a("s_lshl_b32 s49, s49, 10")
    a("s_add_u32 s48, s48, s49")
    a(f"s_add_u32 s48, s48, {WS_O}")
    a.vmem(f"buffer_store_dwordx4 v[{X_RES}:{X_RES+3}], v{V_LP}, s[16:19], s48 offen sc1", "ost")
    a.vmem(f"buffer_store_dwordx4 v[{X_RES+4}:{X_RES+7}], v{V_LP}, s[16:19], s48 offen offset:512 sc1", "ost")

def phaseA_fallback(a):
    a.label("L_pa_fallback")
    a("s_lshl_b32 s52, s36, 18")
    a(f"s_add_u32 s52, s52, {WS_KV}")
    a("s_mov_b32 s53, s52")
    a("s_mov_b32 s54, 64")
    a("v_mov_b32 v18, 0xff800000")
    S = A_S
    L16 = V_L16
    a.label("L_pa_fb1")
    a(f"buffer_load_dwordx4 v[{A_K}:{A_K+3}], v{L16}, s[16:19], s53 offen")
    a(f"buffer_load_dwordx4 v[{A_K+4}:{A_K+7}], v{L16}, s[16:19], s53 offen offset:1024")
    a("s_waitcnt vmcnt(0)")
    a(f"v_mfma_f32_32x32x16_bf16 v[{S}:{S+15}], v[{A_K}:{A_K+3}], v[{A_Q}:{A_Q+3}], 0")
    a(f"v_mfma_f32_32x32x16_bf16 v[{S}:{S+15}], v[{A_K+4}:{A_K+7}], v[{A_Q+4}:{A_Q+7}], v[{S}:{S+15}]")
    a("s_nop 7"); a("s_nop 7")
    for i in range(0, 16, 2): a(f"v_max3_f32 v18, v18, v{S+i}, v{S+i+1}")
    a("s_add_u32 s53, s53, 4096")
    a("s_sub_u32 s54, s54, 1")
    a("s_cmp_lg_u32 s54, 0")
    a("s_cbranch_scc1 L_pa_fb1")
    a("v_mov_b32 v19, v18")
    a("s_nop 1")
    a("v_permlane32_swap_b32 v18, v19")
    a("s_nop 1")
    a("v_max_f32 v18, v18, v19")
    for i in range(16): a(f"v_sub_f32 v{A_NEG+i}, 0, v18")
    for i in range(16): a(f"v_mov_b32 v{A_O+i}, 0")
    for i in range(4): a(f"v_mov_b32 v{A_L+i}, 0")
    a("s_mov_b32 s53, s52")
    a("s_mov_b32 s54, 64")
    a.label("L_pa_fb2")
    for i in range(2):
        a(f"buffer_load_dwordx4 v[{A_K+4*i}:{A_K+4*i+3}], v{L16}, s[16:19], s53 offen offset:{1024*i}")
        a(f"buffer_load_dwordx4 v[{A_V+4*i}:{A_V+4*i+3}], v{L16}, s[16:19], s53 offen offset:{2048+1024*i}")
    a("s_waitcnt vmcnt(0)")
    a(f"v_mfma_f32_32x32x16_bf16 v[{S}:{S+15}], v[{A_K}:{A_K+3}], v[{A_Q}:{A_Q+3}], v[{A_NEG}:{A_NEG+15}]")
    a(f"v_mfma_f32_32x32x16_bf16 v[{S}:{S+15}], v[{A_K+4}:{A_K+7}], v[{A_Q+4}:{A_Q+7}], v[{S}:{S+15}]")
    a("s_nop 7"); a("s_nop 7")
    for i in range(16): a(f"v_exp_f32 v{S+i}, v{S+i}")
    a("s_nop 0")
    for i in range(8): a(f"v_cvt_pk_bf16_f32 v{A_P+i}, v{S+2*i}, v{S+2*i+1}")
    a("s_nop 1")
    for h in range(2):
        a(f"v_mfma_f32_32x32x16_bf16 v[{A_O}:{A_O+15}], v[{A_V+4*h}:{A_V+4*h+3}], v[{A_P+4*h}:{A_P+4*h+3}], v[{A_O}:{A_O+15}]")
        a(f"v_mfma_f32_16x16x32_bf16 v[{A_L}:{A_L+3}], v[{A_SEL}:{A_SEL+3}], v[{A_P+4*h}:{A_P+4*h+3}], v[{A_L}:{A_L+3}]")
    a("s_add_u32 s53, s53, 4096")
    a("s_sub_u32 s54, s54, 1")
    a("s_cmp_lg_u32 s54, 0")
    a("s_cbranch_scc1 L_pa_fb2")
    a("s_nop 7"); a("s_nop 7")
    a("s_branch L_pa_fin")
```

```python
from gen2 import *
import gen2
from k1gen import Rec
from k34gen import CoreK, SK, K_XD, K_WD, K_XR, K_WR, K_XF, K_WF, K_ACC
HF = os.environ.get('HF', 'sc1 ')
D_H3 = 32
SPIN_MAX = 1 << 22

def spin_wait(a, vdst, vzero, soff_sgpr, target, tag, issued=True):
    lab = a.newlabel("sp" + tag); ok = a.newlabel("spok" + tag)
    a("s_mov_b32 s91, 0")
    a.label(lab)
    a(f"v_readfirstlane_b32 s90, v{vdst}")
    a(f"s_cmp_ge_u32 s90, {target}")
    a(f"s_cbranch_scc1 {ok}")
    a("s_add_u32 s91, s91, 1")
    a(f"s_cmp_ge_u32 s91, {SPIN_MAX}")
    a(f"s_cbranch_scc1 {ok}")
    a("s_sleep 4")
    a(f"buffer_load_dword v{vdst}, v{vzero}, s[16:19], s{soff_sgpr} offen sc1")
    a("s_waitcnt vmcnt(0)")
    a(f"s_branch {lab}")
    a.label(ok)

class CoreK2(CoreK):
    def __init__(self, a): self.a = a; self.xf = ""
    def mfmas(self, s):
        a = self.a; buf = s % 2
        o = []
        for c in range(4):
            for tt in range(4):
                def f(c=c, tt=tt):
                    a.wait_lgkm(("x", s, tt), ("w", s, c))
                    A = K_WF + 16 * buf + 4 * c; B = K_XF + 16 * buf + 4 * tt; d = K_ACC + 4 * (4 * c + tt)
                    cc = "0" if s == 0 else f"v[{d}:{d+3}]"
                    a(f"v_mfma_f32_16x16x32_bf16 v[{d}:{d+3}], v[{A}:{A+3}], v[{B}:{B+3}], {cc}")
                o.append(f)
        return o
    def dma(self, stage):
        a = self.a; t = ("st", stage); sl = (stage % 4) * SK
        return [
            lambda: a(f"s_add_u32 m0, s29, {sl}"),
            lambda: a.vmem(f"buffer_load_dwordx4 v{K_XD}, s[16:19], s24 offen {HF}lds", t),
            lambda: a.vmem(f"buffer_load_dwordx4 v{K_XD}, s[16:19], s24 offen offset:1024 {HF}lds", t),
            lambda: a(f"s_add_u32 m0, s29, {sl + 16384}"),
            lambda: a.vmem(f"buffer_load_dwordx4 v{K_WD}, s[12:15], s25 offen lds", t),
            lambda: a.vmem(f"buffer_load_dwordx4 v{K_WD+1}, s[12:15], s25 offen offset:1024 lds", t),
            lambda: a("s_add_u32 s24, s24, 4096"),
            lambda: a(f"s_add_u32 s25, s25, {64*2048}"),
        ]

def p4_early(a):
    R = Rec(a)
    R("s_and_b32 s43, s40, 1")
    R("s_lshr_b32 s42, s40, 1")
    R("s_lshl_b32 s42, s42, 2")
    R("s_and_b32 s44, s41, 3")
    R("s_add_u32 s42, s42, s44")
    R("s_lshr_b32 s44, s41, 2")
    R("s_lshl_b32 s47, s42, 3")
    R("s_add_u32 s47, s47, s44")
    R("v_lshlrev_b32 v224, 4, v1")
    R("s_lshl_b32 s55, s42, 2")
    R("s_lshr_b32 s56, s20, 1")
    R("s_add_u32 s55, s55, s56")
    R("s_lshl_b32 s57, s22, 11")
    R("s_mul_i32 s56, s55, 229376")
    R("s_add_u32 s56, s56, s57")
    R(f"s_add_u32 s56, s56, {WS_H3}")
    R("v_add_u32 v7, s56, v224")
    R("s_lshl_b32 s56, s55, 16")
    R("s_add_u32 s56, s56, s57")
    R(f"s_add_u32 s56, s56, {WS_O}")
    R(f"v_add_u32 v{K_XD}, s56, v224")
    R("v_lshlrev_b32 v225, 1, v3")
    R("v_xor_b32 v225, v2, v225")
    R("v_xor_b32 v226, 8, v225")
    R("s_lshl_b32 s55, s20, 3")
    R("v_add_u32 v227, s55, v3")
    R("v_lshlrev_b32 v227, 11, v227")
    PAIR = int(os.environ.get("PAIR", "4"))
    if PAIR >= 0:
        R(f"s_add_u32 s56, s44, {PAIR}", "s_and_b32 s56, s56, 7", "s_add_u32 s56, s56, 8")
        R("s_mov_b32 s55, s44")
    else:
        R("s_lshl_b32 s55, s44, 1", "s_add_u32 s56, s55, 1")
    R("s_cmp_eq_u32 s22, 0", "s_cselect_b32 s45, s55, s56")
    R("s_lshl_b32 s55, s55, 7", "s_lshl_b32 s56, s56, 7")
    R("v_and_b32 v228, 7, v225")
    R("v_lshl_add_u32 v227, v228, 4, v227")
    R("v_mov_b32 v228, s55")
    R("v_mov_b32 v229, s56")
    R("v_cmp_gt_u32 vcc, 8, v225", "s_nop 1", "v_cndmask_b32 v230, v229, v228, vcc", "v_cndmask_b32 v231, v228, v229, vcc")
    R(f"v_add_u32 v{K_WD}, v227, v230")
    R("v_add_u32 v231, v227, v231")
    R(f"v_add_u32 v{K_WD+1}, {4*2048-1024}, v231")
    R("s_lshl_b32 s29, s20, 11")
    R(f"s_mul_i32 s24, s43, {8*4096}")
    R(f"s_mul_i32 s25, s43, {8*64*2048}")
    R("s_mov_b32 s12, s70", "s_mov_b32 s13, s71", f"s_mov_b32 s14, {2*MB}", "s_mov_b32 s15, 0x00020000")
    return R.ops

def p4_setup(a0):
    a = Rec(a0)
    a("s_lshr_b32 s23, s20, 2")
    a("s_bfe_u32 s21, s20, 0x10001")
    a("v_lshlrev_b32 v20, 4, v1")
    a("s_lshl_b32 s49, s21, 13")
    a("s_lshl_b32 s57, s23, 10")
    a("s_add_u32 s49, s49, s57")
    a(f"v_add_u32 v{K_XR}, s49, v20")
    a(f"v_add_u32 v{K_XR+1}, {2*SK}, v{K_XR}")
    a("v_bfe_u32 v22, v1, 2, 2")
    a("v_lshl_add_u32 v22, v3, 2, v22")
    a("v_and_b32 v23, 7, v22")
    a("s_lshl_b32 s49, s22, 2")
    a("v_xor_b32 v23, s49, v23")
    a("v_lshlrev_b32 v22, 8, v22")
    a("v_lshl_add_u32 v22, v23, 5, v22")
    a("v_and_b32 v23, 3, v1")
    a("v_lshl_add_u32 v22, v23, 3, v22")
    a("s_lshl_b32 s49, s23, 13")
    a("s_add_u32 s49, s49, 16384")
    a(f"v_add_u32 v{K_WR}, s49, v22")
    for c in range(1, 4): a(f"v_xor_b32 v{K_WR+c}, {c<<5}, v{K_WR}")
    for c in range(4): a(f"v_add_u32 v{K_WR+4+c}, {2*SK}, v{K_WR+c}")
    a("s_cmp_eq_u32 s43, 0", "s_cselect_b32 s28, 8, 6")
    a("s_lshl_b32 s49, s42, 7")
    a("s_lshl_b32 s57, s21, 6")
    a("s_add_u32 s46, s49, s57")
    a("s_lshl_b32 s50, s42, 2")
    a("s_lshl_b32 s51, s21, 1")
    a("s_add_u32 s50, s50, s51")
    a("s_lshl_b32 s50, s50, 16")
    a("s_lshl_b32 s51, s45, 12")
    a("s_add_u32 s50, s50, s51")
    a("s_lshl_b32 s51, s23, 10")
    a("s_add_u32 s50, s50, s51")
    a(f"s_add_u32 s36, s50, {WS_X1}")
    a("s_add_u32 s37, s36, 65536")
    a("s_lshr_b32 s38, s42, 1")
    a("s_lshl_b32 s38, s38, 8")
    a(f"s_add_u32 s38, s38, {WS_FLAG}")
    return a.ops

def p3_early_emit(a, remap=None):
    a("s_and_b32 s42, s60, 7")
    a("s_mov_b32 s39, s42")
    a("s_lshr_b32 s43, s40, 1")
    a("s_mul_i32 s43, s43, 7")
    a("s_lshr_b32 s44, s60, 3")
    a("s_add_u32 s44, s44, s43")
    a("s_movk_i32 s23, 7168")
    a("s_lshl_b32 s45, s44, 8")
    a("s_lshl_b32 s46, s42, 3")
    if remap:
        a(f"v_and_b32 v{remap[2]}, 15, v1")
        a(f"v_lshrrev_b32 v{remap[3]}, 4, v1")
    sym_setup16(a, "frag", 23, 45, 46, 1024, remap=remap)
    a(f"s_add_u32 s8, s62, {WS_X1}")
    a("s_addc_u32 s9, s63, 0")
    a(f"s_mov_b32 s10, {4*MB}")
    a("s_mov_b32 s11, 0x00020000")
    srd(a, 12, 68, 7 * MB)
    a(f"s_mov_b32 s{S_SLOT}, 0")
    Core16(a, "frag", role="S", xflag=HF).prologue_dma()

def phase3(a, C4, merged=False):
    from k2m import flag_add, F_O, F_CS
    a("v_and_b32 v2, 15, v1")
    a("v_lshrrev_b32 v3, 4, v1")
    a("s_lshr_b32 s21, s20, 1")
    a(f"s_mov_b32 s49, s{S_SLOT}")
    read_addr_setup16(a, "frag")
    a(f"s_mov_b32 s{S_SLOT}, s49")
    def addr_ops():
        r = Rec(a)
        r("s_lshl_b32 s48, s21, 1")
        r("s_add_u32 s48, s48, s46")
        r("s_mul_i32 s48, s48, 229376")
        r("s_lshl_b32 s49, s44, 1")
        r("s_add_u32 s49, s49, s22")
        r("s_lshl_b32 s49, s49, 12")
        r("s_add_u32 s48, s48, s49")
        r(f"s_add_u32 s48, s48, {WS_H3}")
        r("v_lshlrev_b32 v28, 4, v1")
        r("v_add_u32 v29, 2048, v28")
        r("v_add_u32 v30, 229376, v28")
        r("v_add_u32 v31, 229376, v29")
        r("s_lshl_b32 s51, s42, 8", "s_lshl_b32 s52, s21, 6", "s_add_u32 s51, s51, s52", "s_lshl_b32 s51, s51, 3", f"s_add_u32 s53, s51, {WS_ST1}", f"s_add_u32 s51, s51, {WS_G + 4}")
        r("v_lshlrev_b32 v19, 3, v2")
        for tt in range(4):
            r.f(lambda tt=tt: a.vmem(f"buffer_load_dword v{220+tt}, v19, s[16:19], s51 offen offset:{128*tt}", "aux"))
        r("s_lshl_b32 s54, s44, 9", "s_lshl_b32 s52, s22, 8", "s_add_u32 s54, s54, s52", f"s_add_u32 s54, s54, {WS_CSF}")
        r("v_lshlrev_b32 v18, 4, v3")
        return r.ops
    def late_loads():
        r = Rec(a)
        for tt in range(4):
            r.f(lambda tt=tt: a.vmem(f"buffer_load_dwordx2 v[{208+2*tt}:{209+2*tt}], v19, s[16:19], s53 offen offset:{128*tt} sc1", "late"))
        for c in range(4):
            r.f(lambda c=c: a.vmem(f"buffer_load_dwordx4 v[{192+4*c}:{195+4*c}], v18, s[16:19], s54 offen offset:{64*c} sc1", "late"))
        return r.ops
    core = Core16(a, "frag", tag="k3", role="S", xflag=HF)
    def sigs():
        flag_add(a, [f"s_add_u32 s48, s37, {F_O}", "s_lshl_b32 s48, s48, 8", f"s_add_u32 s48, s48, {WS_FLAG}"], "o")
    def polls():
        lab = a.newlabel("np3")
        a("s_lshr_b32 s38, s40, 1")
        a("s_lshl_b32 s38, s38, 1")
        a("s_bfe_u32 s50, s41, 0x10001")
        a("s_add_u32 s38, s38, s50")
        a(f"s_add_u32 s38, s38, {F_O}")
        a("s_lshl_b32 s38, s38, 8")
        a(f"s_add_u32 s38, s38, {WS_FLAG}")
        a(f"s_mov_b32 s34, {WS_FLAG + F_CS*256}")
        a("v_mov_b32 v24, 0")
        a("s_cmp_lg_u32 s20, 0")
        a(f"s_cbranch_scc1 {lab}")
        a("buffer_load_dword v25, v24, s[16:19], s38 offen sc1")
        a("buffer_load_dword v26, v24, s[16:19], s34 offen sc1")
        a.label(lab)
    def chks():
        lab = a.newlabel("nc3")
        a("s_cmp_lg_u32 s20, 0")
        a(f"s_cbranch_scc1 {lab}")
        a("s_waitcnt vmcnt(6)")
        spin_wait(a, 25, 24, 38, 32, "o")
        spin_wait(a, 26, 24, 34, 32, "cs")
        a.label(lab)
    hk = dict(prebar3=["ost"], after3=sigs, spread12=addr_ops, end12=polls, end13=chks,
              spreadN2=late_loads, spreadN1=lambda: p4_early(a))
    def final_hook():
        a.wait_all(vm=False)
        a("s_barrier")
        ops = []
        for st in range(3): ops += C4.dma(st)
        return ops + p4_setup(a)
    hk["final"] = final_hook
    if os.environ.get("ST3"):
        stamp(a, 1)
        hk.update(start=lambda: stamp(a, 2), after3=lambda: (sigs(), stamp(a, 3)), pre_tail=lambda: stamp(a, 4))
    core.mainloop(hooks=hk, npeel=4, ntail=2)
    a.wait_vm("late")
    stamp(a, 1 if os.environ.get("ST4") else 5)
    ln_gelu_epilogue(a, 48, 3584, [28, 29, 30, 31], None, [(208 + 2 * t, 209 + 2 * t) for t in range(4)], "regs", scale=[220, 221, 222, 223], tag="h3st")

def service(a):
    from k2m import flag_add, F_X1, F_CS
    a("s_lshr_b32 s50, s40, 1")
    a("s_lshl_b32 s50, s50, 3")
    a("s_add_u32 s50, s50, s60")
    a("s_sub_u32 s50, s50, 56")
    a("s_mov_b32 s96, s68"); a("s_mov_b32 s97, s69"); a(f"s_mov_b32 s98, {7*MB}"); a("s_mov_b32 s99, 0x00020000")
    a("v_mul_u32_u24 v16, 147, v1")
    a("v_lshrrev_b32 v16, 11, v16")
    a("v_mul_u32_u24 v17, 14, v16")
    a("v_sub_u32 v17, v1, v17")
    a("v_mul_u32_u24 v18, 7168, v16")
    a("v_lshl_add_u32 v18, v17, 4, v18")
    a("v_cmp_le_u32 vcc, 56, v1")
    a("v_mov_b32 v19, 0x7fffffff")
    a("s_mul_i32 s51, s20, {}".format(128 * 7168))
    a("v_cndmask_b32 v18, v18, v19, vcc")
    a("s_mul_i32 s52, s50, 224")
    a("s_add_u32 s51, s51, s52")
    a("v_mov_b32 v28, 0x00003f80")
    a("v_mov_b32 v29, 0x3f800000")
    for i in range(8): a(f"v_mov_b32 v{32+i}, 0")
    for i in range(32):
        a(f"buffer_load_dwordx4 v[{64+4*i}:{67+4*i}], v18, s[96:99], s51 offen")
        a(f"s_add_u32 s51, s51, {4*7168}")
    for i in range(32):
        if i % 4 == 0: a(f"s_waitcnt vmcnt({28-i})")
        for q in range(4):
            a(f"v_dot2_f32_bf16 v{32+2*q}, v{64+4*i+q}, v28, v{32+2*q}")
            a(f"v_dot2_f32_bf16 v{33+2*q}, v{64+4*i+q}, v29, v{33+2*q}")
    a("v_mul_u32_u24 v19, 448, v16")
    a("v_lshl_add_u32 v19, v17, 5, v19")
    a("s_mul_i32 s51, s20, 1792")
    a("v_add_u32 v19, s51, v19")
    a("v_lshlrev_b32 v20, 5, v1")
    a("v_add_u32 v20, 32768, v20")
    a("v_cndmask_b32 v19, v19, v20, vcc")
    a("ds_write_b128 v19, v[32:35]")
    a("ds_write_b128 v19, v[36:39] offset:16")
    a("s_lshr_b32 s38, s50, 2")
    a(f"s_add_u32 s38, s38, {F_X1}")
    a("s_lshl_b32 s38, s38, 8")
    a(f"s_add_u32 s38, s38, {WS_FLAG}")
    a("s_cmp_lg_u32 s20, 0")
    a("s_cbranch_scc1 L_sv_w")
    a("v_mov_b32 v24, 0")
    a("v_mov_b32 v25, 0")
    a("s_nop 0")
    spin_wait(a, 25, 24, 38, 32, "svx")
    a.label("L_sv_w")
    a("s_waitcnt lgkmcnt(0)")
    a("s_barrier")
    a("s_lshl_b32 s51, s50, 9")
    a("s_lshl_b32 s52, s20, 15")
    a("s_add_u32 s51, s51, s52")
    a(f"s_add_u32 s51, s51, {WS_P1}")
    a("s_add_u32 s52, s51, 16384")
    a("v_lshlrev_b32 v21, 3, v1")
    a("buffer_load_dwordx2 v[40:41], v21, s[16:19], s51 offen sc1")
    a("buffer_load_dwordx2 v[42:43], v21, s[16:19], s52 offen sc1")
    a("v_and_b32 v22, 127, v0")
    a("v_lshlrev_b32 v22, 2, v22")
    for q in range(32): a(f"ds_read_b32 v{64+q}, v22 offset:{448*q}")
    a("s_waitcnt lgkmcnt(0)")
    for w in (16, 8, 4, 2, 1):
        for q in range(w): a(f"v_add_f32 v{64+q}, v{64+q}, v{64+w+q}")
    a("v_mov_b32 v23, 112")
    a("v_cmp_lt_u32 vcc, v0, v23")
    a("v_mov_b32 v23, 0x7fffffff")
    a("s_mul_i32 s51, s50, 448")
    a(f"s_add_u32 s51, s51, {WS_CSF}")
    a("v_cndmask_b32 v22, v23, v22, vcc")
    a("s_waitcnt vmcnt(0)")
    a("buffer_store_dword v64, v22, s[16:19], s51 offen sc1")
    a("v_add_f32 v40, v40, v42")
    a("v_add_f32 v41, v41, v43")
    a("s_lshl_b32 s51, s20, 9")
    a("s_add_u32 s51, s51, 65536")
    a("v_add_u32 v23, s51, v21")
    a("ds_write_b64 v23, v[40:41]")
    a("s_waitcnt lgkmcnt(0)")
    a("s_barrier")
    a("v_add_u32 v23, 65536, v21")
    for q in range(8): a(f"ds_read_b64 v[{64+2*q}:{65+2*q}], v23 offset:{512*q}")
    a("s_waitcnt lgkmcnt(0)")
    for q in range(1, 8):
        a(f"v_add_f32 v64, v64, v{64+2*q}")
        a(f"v_add_f32 v65, v65, v{65+2*q}")
    a(f"v_mul_f32 v64, {f2u(1/1024)}, v64")
    a(f"v_mul_f32 v65, {f2u(1/1024)}, v65")
    a("v_fma_f32 v65, -v64, v64, v65")
    a("v_max_f32 v65, 0, v65")
    a(f"v_add_f32 v65, {f2u(1e-5)}, v65")
    a("v_rsq_f32 v65, v65")
    a("s_lshl_b32 s51, s50, 9")
    a(f"s_add_u32 s51, s51, {WS_ST1}")
    a("s_cmp_lg_u32 s20, 0")
    a("s_cbranch_scc1 L_sv_ns")
    a("buffer_store_dwordx2 v[64:65], v21, s[16:19], s51 offen sc1")
    a.label("L_sv_ns")
    a("s_waitcnt vmcnt(0)")
    a("s_barrier")
    flag_add(a, [f"s_mov_b32 s48, {WS_FLAG + F_CS*256}"], "cs")
    a("s_lshl_b32 s51, s50, 3")
    a("s_add_u32 s51, s51, s20")
    a("v_lshlrev_b32 v26, 6, v1")
    a("s_mov_b32 s96, s72"); a("s_mov_b32 s97, s73"); a(f"s_mov_b32 s98, {7*MB}")
    a("s_lshl_b32 s52, s51, 12")
    for i in (0, 3, 1, 4, 2, 5, 6):
        a(f"s_add_u32 s53, s52, {i*MB}")
        a("buffer_load_dword v27, v26, s[96:99], s53 offen")

def phase4(a, C, had3, st=(4, 5, 6)):
    a("v_mov_b32 v18, 0")
    a.wait_all()
    a("s_barrier")
    if st[0] is not None: stamp(a, st[0])
    def signal():
        lab = a.newlabel("nosig3")
        a("s_cmp_ge_u32 s60, 56")
        a(f"s_cbranch_scc1 {lab}")
        a("s_cmp_lg_u32 s20, 0")
        a(f"s_cbranch_scc1 {lab}")
        a("s_lshl_b32 s48, s39, 8")
        a(f"s_add_u32 s48, s48, {WS_FLAG}")
        a("v_mov_b32 v19, 1")
        a("s_mov_b64 exec, 1")
        a("buffer_atomic_add v19, v18, s[16:19], s48 offen")
        a("s_mov_b64 exec, -1")
        a.label(lab)
    signal()
    C.period(0, dma=True)
    C.period(1, dma=True)
    C.period(2, dma=True)
    def poll0():
        lab = a.newlabel("nopoll")
        a("s_cmp_lg_u32 s20, 0")
        a(f"s_cbranch_scc1 {lab}")
        a("buffer_load_dword v19, v18, s[16:19], s38 offen sc1")
        a.label(lab)
    def chk0():
        lab = a.newlabel("nochk")
        a("s_cmp_lg_u32 s20, 0")
        a(f"s_cbranch_scc1 {lab}")
        a("s_waitcnt vmcnt(4)")
        spin_wait(a, 19, 18, 38, 28, "h3")
        a.label(lab)
    C.period(3, dma=True, extra={16: [poll0]})
    C.period(4, dma=True, extra={16: [chk0]})
    a(f"v_mov_b32 v{K_XD}, v7")
    a("s_mov_b32 s12, s72")
    a("s_mov_b32 s13, s73")
    a(f"s_mov_b32 s14, {7*MB}")
    a("s_cmp_eq_u32 s43, 0")
    a(f"s_cselect_b32 s24, {24*4096}, 0")
    a(f"s_cselect_b32 s25, {24*64*2048}, 0")
    if st[1] is not None: stamp(a, st[1])
    a.vm = [("st", 6)] * 4 + [("st", 7)] * 4
    vm_top = list(a.vm)
    a.lines.append(".p2align 6")
    a.label("L_p4_loop")
    lt = [lambda: a("s_sub_u32 s28, s28, 1"), lambda: a("s_cmp_lg_u32 s28, 0")]
    for s in range(5, 9): C.period(s, dma=True, extra=({15: lt} if s == 8 else None))
    assert [(t[0], t[1] - 4) for t in a.vm] == vm_top, (a.vm, vm_top)
    a("s_cbranch_scc1 L_p4_loop")
    a.vm = [("st", 38)] * 4 + [("st", 39)] * 4
    a("s_lshl_b32 s56, s47, 15")
    a("s_lshl_b32 s49, s20, 12")
    a("s_add_u32 s56, s56, s49")
    a(f"s_add_u32 s56, s56, {WS_PART}")
    a("s_mov_b32 s52, 0")
    a("s_lshl_b32 s53, s47, 8")
    a(f"s_add_u32 s53, s53, {WS_FLAG + 128*256}")
    a("s_mov_b32 s55, 0")
    def poll_issue():
        a.vmem("buffer_load_dword v19, v18, s[16:19], s53 offen sc1", "poll")
    def early():
        a("s_cmp_eq_u32 s43, 0")
        a("s_cbranch_scc0 L_p4_noearly")
        for tt in range(4):
            a(f"buffer_load_dwordx4 v[{176+4*tt}:{179+4*tt}], v20, s[16:19], s{36 + (tt>>1)} offen offset:{2048*(tt&1)} {HF}")
        a("s_lshl_b32 s48, s46, 3")
        a(f"s_add_u32 s48, s48, {WS_G + 4}")
        a("v_lshlrev_b32 v21, 3, v2")
        for tt in range(4):
            a(f"buffer_load_dword v{24+tt}, v21, s[16:19], s48 offen offset:{128*tt}")
        a("v_readfirstlane_b32 s54, v19")
        a("s_lshr_b32 s54, s54, s52")
        a("s_and_b32 s55, s54, 1")
        a("s_cbranch_scc0 L_p4_noearly")
        for i in range(4):
            a(f"buffer_load_dwordx4 v[{160+4*i}:{163+4*i}], v20, s[16:19], s56 offen offset:{1024*i} sc1")
        a.label("L_p4_noearly")
    C.period(37, dma=False, extra={8: [poll_issue]})
    C.period(38, dma=False, extra={16: [lambda: a.wait_vm("poll")]})
    C.period(39, dma=False, last=True, extra={0: [early]})
    for f in C.mfmas(39): f()
    if st[2] is not None: stamp(a, st[2])
    a("s_barrier")
    a("s_nop 3")
    a("s_lshl_b32 s48, s20, 13")
    a("v_add_u32 v21, s48, v20")
    a("s_xor_b32 s48, s20, 4")
    a("s_lshl_b32 s48, s48, 13")
    a("v_add_u32 v22, s48, v20")
    a("s_cmp_eq_u32 s23, 0")
    a("s_cbranch_scc0 L_p4_x1")
    for i in range(8): a(f"ds_write_b128 v21, v[{K_ACC+32+4*i}:{K_ACC+35+4*i}] offset:{1024*i}")
    a("s_branch L_p4_x2")
    a.label("L_p4_x1")
    for i in range(8): a(f"ds_write_b128 v21, v[{K_ACC+4*i}:{K_ACC+3+4*i}] offset:{1024*i}")
    a("s_waitcnt lgkmcnt(0)")
    for i in range(32): a(f"v_mov_b32 v{K_ACC+i}, v{K_ACC+32+i}")
    a.label("L_p4_x2")
    a("s_waitcnt lgkmcnt(0)")
    a("s_barrier")
    for i in range(8): a(f"ds_read_b128 v[{K_ACC+32+4*i}:{K_ACC+35+4*i}], v22 offset:{1024*i}")
    a("s_cmp_eq_u32 s43, 0")
    a("s_cbranch_scc1 L_p4_main_ep")
    a("s_waitcnt lgkmcnt(0)")
    for tt in range(4):
        t = 32 + 4 * tt
        d0, d1 = K_ACC + 4 * tt, K_ACC + 4 * (4 + tt)
        for d in (d0, d1):
            for i in range(4): a(f"v_add_f32 v{d+i}, v{d+i}, v{d+32+i}")
        a(f"v_cvt_pk_bf16_f32 v{t}, v{d0}, v{d0+1}")
        a(f"v_cvt_pk_bf16_f32 v{t+1}, v{d0+2}, v{d0+3}")
        a(f"v_cvt_pk_bf16_f32 v{t+2}, v{d1}, v{d1+1}")
        a(f"v_cvt_pk_bf16_f32 v{t+3}, v{d1+2}, v{d1+3}")
        a(f"buffer_store_dwordx4 v[{t}:{t+3}], v20, s[16:19], s56 offen offset:{1024*tt} sc1")
    if os.environ.get("ST4"): stamp(a, 5)
    a("s_waitcnt vmcnt(0)")
    a("s_barrier")
    if os.environ.get("ST4"): stamp(a, 6)
    a("s_cmp_lg_u32 s20, 0")
    a("s_cbranch_scc1 L_p4_fin")
    a("s_lshl_b32 s48, 1, s52")
    a("v_mov_b32 v19, s48")
    a("s_mov_b64 exec, 1")
    a("buffer_atomic_or v19, v18, s[16:19], s53 offen")
    a("s_branch L_p4_fin")
    a.label("L_p4_main_ep")
    a("s_cmp_eq_u32 s55, 1")
    a("s_cbranch_scc1 L_p4_have")
    a("buffer_load_dword v19, v18, s[16:19], s53 offen sc1")
    a("s_waitcnt vmcnt(1) lgkmcnt(0)")
    a.label("L_p4_have")
    a("s_waitcnt vmcnt(4) lgkmcnt(0)")
    for i in range(32): a(f"v_add_f32 v{K_ACC+i}, v{K_ACC+i}, v{K_ACC+32+i}")
    for tt in range(4):
        for cl in range(2):
            for w in range(2):
                src = 176 + 4 * tt + 2 * cl + w
                d = K_ACC + 4 * (4 * cl + tt) + 2 * w
                a(f"v_lshlrev_b32 v48, 16, v{src}")
                a(f"v_and_b32 v49, 0xffff0000, v{src}")
                a(f"v_fma_f32 v{d}, v48, v{24+tt}, v{d}")
                a(f"v_fma_f32 v{d+1}, v49, v{24+tt}, v{d+1}")
    a("s_cmp_eq_u32 s55, 1")
    a("s_cbranch_scc1 L_p4_have3")
    a("s_mov_b32 s91, 0")
    a.label("L_p4_poll")
    a("s_waitcnt vmcnt(0)")
    a("v_readfirstlane_b32 s54, v19")
    a("s_lshr_b32 s54, s54, s52")
    a("s_and_b32 s54, s54, 1")
    a("s_cbranch_scc1 L_p4_pollok")
    a("s_add_u32 s91, s91, 1")
    a(f"s_cmp_ge_u32 s91, {SPIN_MAX}")
    a("s_cbranch_scc1 L_p4_pollok")
    a("s_sleep 1")
    a("buffer_load_dword v19, v18, s[16:19], s53 offen sc1")
    a("s_branch L_p4_poll")
    a.label("L_p4_pollok")
    for i in range(4):
        a(f"buffer_load_dwordx4 v[{160+4*i}:{163+4*i}], v20, s[16:19], s56 offen offset:{1024*i} sc1")
    a.label("L_p4_have3")
    if os.environ.get("ST4"): stamp(a, 5)
    srd(a, 8, 58, 4 * MB)
    a("v_lshrrev_b32 v48, 1, v3")
    a("v_and_b32 v49, 1, v3")
    a("v_lshl_add_u32 v48, v49, 1, v48")
    a("v_lshlrev_b32 v48, 4, v48")
    a("v_lshl_add_u32 v48, v2, 11, v48")
    a("s_lshl_b32 s50, s46, 11")
    a("s_lshl_b32 s51, s45, 7")
    a("s_add_u32 s50, s50, s51")
    a("s_lshl_b32 s51, s23, 6")
    a("s_add_u32 s50, s50, s51")
    a("s_waitcnt vmcnt(0)")
    if os.environ.get("ST4"): stamp(a, 6)
    for tt in range(4):
        for cl in range(2):
            for w in range(2):
                src = 160 + 4 * tt + 2 * cl + w
                d = K_ACC + 4 * (4 * cl + tt) + 2 * w
                a(f"v_lshlrev_b32 v50, 16, v{src}")
                a(f"v_and_b32 v51, 0xffff0000, v{src}")
                a(f"v_add_f32 v{d}, v{d}, v50")
                a(f"v_add_f32 v{d+1}, v{d+1}, v51")
        t = 32 + 4 * tt
        d0, d1 = K_ACC + 4 * tt, K_ACC + 4 * (4 + tt)
        a(f"v_cvt_pk_bf16_f32 v{t}, v{d0}, v{d0+1}")
        a(f"v_cvt_pk_bf16_f32 v{t+1}, v{d0+2}, v{d0+3}")
        a(f"v_cvt_pk_bf16_f32 v{t+2}, v{d1}, v{d1+1}")
        a(f"v_cvt_pk_bf16_f32 v{t+3}, v{d1+2}, v{d1+3}")
        a("s_nop 1")
        a(f"v_permlane16_swap_b32 v{t}, v{t+2}")
        a(f"v_permlane16_swap_b32 v{t+1}, v{t+3}")
        a("s_nop 1")
        a(f"buffer_store_dwordx4 v[{t}:{t+3}], v48, s[8:11], s50 offen")
        a("s_add_u32 s50, s50, 32768")
    a.label("L_p4_fin")

def k34():
    a = Asm(); a.uid = 5000
    name = "k34_kernel"
    a("s_cmp_ge_u32 s2, 256")
    a("s_cbranch_scc1 L_k34_end")
    a("s_load_dwordx2 s[68:69], s[0:1], 48")
    a("s_load_dwordx2 s[70:71], s[0:1], 16")
    a("s_load_dwordx2 s[72:73], s[0:1], 56")
    a("s_load_dwordx2 s[58:59], s[0:1], 72")
    a("s_load_dwordx4 s[60:63], s[0:1], 80")
    code_prefetch(a, name, 1, vd=27, va=26)
    stamp(a, 0)
    lane_setup(a)
    a("s_and_b32 s40, s2, 7")
    a("s_lshr_b32 s41, s2, 3")
    a("s_waitcnt lgkmcnt(0)")
    srd(a, 16, 62, WS_SIZE)
    srd(a, 64, 60, 256)
    C4 = CoreK2(a)
    a("s_cmp_ge_u32 s41, 28")
    a("s_cbranch_scc1 L_k34_skip3")
    a.vm = []
    p3_early_emit(a)
    phase3(a, C4)
    vm3 = list(a.vm)
    a("s_branch L_k34_p4")
    a.label("L_k34_skip3")
    a("s_mov_b32 s39, 0")
    for i in range(1, 4): stamp(a, i)
    for f in p4_early(a): f()
    a.vm = []
    for st in range(3):
        for f in C4.dma(st): f()
    a("s_waitcnt vmcnt(0)")
    a.label("L_k34_p4")
    a.vm = vm3; a.lgkm = []
    phase4(a, C4, True)
    if gen2.STAMP: a("s_mov_b64 exec, -1"); a("s_waitcnt vmcnt(0)")
    stamp(a, 7); stamp_dump(a, 8, 2)
    a.label("L_k34_end")
    a("s_endpgm")
    return name, a.text(), dict(grid=256, block=512, lds=163840, vgpr=240)

def k234():
    from k2m import phaseA, phaseA_fallback, flag_add, F_O, F_CS, A_K
    a = Asm(); a.uid = 6000
    name = "k234_kernel"
    a("s_cmp_ge_u32 s2, 256")
    a("s_cbranch_scc1 L_k234_end")
    a("s_load_dwordx2 s[4:5], s[0:1], 0")
    a("s_load_dwordx2 s[6:7], s[0:1], 40")
    a("s_load_dwordx2 s[68:69], s[0:1], 48")
    a("s_load_dwordx2 s[70:71], s[0:1], 16")
    a("s_load_dwordx2 s[72:73], s[0:1], 56")
    a("s_load_dwordx2 s[58:59], s[0:1], 72")
    a("s_load_dwordx2 s[62:63], s[0:1], 88")
    code_prefetch(a, name, 2, vd=27, va=26)
    stamp(a, 0)
    a("v_and_b32 v1, 63, v0")
    a("v_lshrrev_b32 v2, 6, v0")
    a("s_and_b32 s40, s2, 7")
    a("v_readfirstlane_b32 s20, v2")
    a("s_lshr_b32 s41, s2, 3")
    a("s_and_b32 s60, s40, 1")
    a("s_lshl_b32 s60, s60, 5")
    a("s_add_u32 s60, s60, s41")
    C4 = CoreK2(a)
    def p3e():
        a("s_cmp_ge_u32 s60, 56")
        a("s_cbranch_scc1 L_k234_noe")
        vm = list(a.vm)
        p3_early_emit(a, remap={2: 236, 3: 237, 16: 238, 17: 239, 18: 235})
        a.label("L_k234_noe")
    phaseA(a, p3e)
    a("s_setprio 0")
    a("s_cmp_ge_u32 s60, 56")
    a("s_cbranch_scc1 L_k234_skip3")
    phase3(a, C4, merged=True)
    vm3 = list(a.vm)
    a("s_branch L_k234_p4")
    a.label("L_k234_skip3")
    a("s_mov_b32 s39, 0")
    a("v_and_b32 v2, 15, v1")
    a("v_lshrrev_b32 v3, 4, v1")
    a("s_waitcnt vmcnt(0) lgkmcnt(0)")
    a("s_barrier")
    flag_add(a, [f"s_add_u32 s48, s37, {F_O}", "s_lshl_b32 s48, s48, 8", f"s_add_u32 s48, s48, {WS_FLAG}"], "o2")
    service(a)
    for f in p4_early(a): f()
    a("s_lshr_b32 s38, s42, 1")
    a(f"s_add_u32 s38, s38, {F_O}")
    a("s_lshl_b32 s38, s38, 8")
    a(f"s_add_u32 s38, s38, {WS_FLAG}")
    a("s_cmp_lg_u32 s20, 0")
    a("s_cbranch_scc1 L_k234_w")
    a("v_mov_b32 v24, 0")
    a("v_mov_b32 v25, 0")
    a("s_nop 0")
    spin_wait(a, 25, 24, 38, 32, "o3")
    a.label("L_k234_w")
    a("s_barrier")
    stamp(a, 1 if os.environ.get("ST4") else 5)
    a.vm = []
    for st in range(3):
        for f in C4.dma(st): f()
    for f in p4_setup(a): f()
    a.label("L_k234_p4")
    a.vm = vm3; a.lgkm = []
    phase4(a, C4, True, st=((2, 3, 4) if os.environ.get('ST4') else (6, None, None) if os.environ.get('ST3') else (None, 6, None)))
    if gen2.STAMP: a("s_mov_b64 exec, -1"); a("s_waitcnt vmcnt(0)")
    stamp(a, 7); stamp_dump(a, 8, 1)
    a.label("L_k234_end")
    a("s_endpgm")
    phaseA_fallback(a)
    return name, a.text(), dict(grid=256, block=512, lds=163840, vgpr=240)
```

```python
import sys, math, os, struct
from asmlib import *
from gemm16 import *

MB = 1 << 20
COMPACT = os.environ.get("COMPACT", "0") == "1"
if COMPACT:
    WS_KV = 0; WS_HS = 8 * MB; WS_H3 = 0; WS_Q = 14 * MB; WS_X1 = 18 * MB; WS_O = 22 * MB; WS_ST = 26 * MB; WS_PART = 28 * MB
else:
    WS_Q = 0; WS_KV = 4 * MB; WS_HS = 12 * MB; WS_X1 = 16 * MB; WS_O = 20 * MB; WS_H3 = 24 * MB; WS_ST = 40 * MB; WS_PART = 44 * MB
WS_CS1 = WS_ST + 720896
WS_CS3 = WS_ST + 131072
WS_G = WS_ST + 393216
WS_P1 = WS_ST + 458752
WS_CSF = WS_ST + 65536
WS_ST1 = WS_ST + 98304
WS_STAMP = WS_ST + MB
WS_FLAG = WS_ST + 917504
WS_P2 = WS_ST + 2 * MB
WS_SIZE = 56 * MB
WS_PA = 48 * MB
ST_FLAG = os.environ.get("STFLAG", "sc1")

def f2u(x): return struct.unpack("<I", struct.pack("<f", x))[0]
QSCALE = math.log2(math.e) / math.sqrt(32.0)
GC1 = -2.0 * math.log2(math.e) * math.sqrt(2.0 / math.pi)
GC2 = GC1 * 0.044715
STAMP = False
STAMP_OFF = False

def srd(a, d, base, nbytes):
    a(f"s_mov_b32 s{d}, s{base}")
    a(f"s_mov_b32 s{d+1}, s{base+1}")
    a(f"s_mov_b32 s{d+2}, {nbytes}")
    a(f"s_mov_b32 s{d+3}, 0x00020000")

def stamp(a, idx, rt=False):
    if not STAMP or rt: return
    if STAMP_OFF and idx != 7: return
    a(f"s_memtime s[90:91]")
    a(f"s_memrealtime s[92:93]")
    a("s_waitcnt lgkmcnt(0)")
    a(f"s_mov_b32 s{74+idx}, s90")
    a(f"s_mov_b32 s{82+idx}, s92")
    a.lgkm = []

def stamp_dump(a, n, kidx=0):
    if not STAMP: return
    lab = a.newlabel("nodump")
    a("s_cmp_lg_u32 s20, 0")
    a(f"s_cbranch_scc1 {lab}")
    a("s_lshl_b32 s92, s2, 6")
    a(f"s_add_u32 s92, s92, {WS_STAMP + kidx*65536}")
    a("v_mov_b32 v16, 0")
    for i in range(16):
        a(f"v_mov_b32 v17, s{74+i}")
        a(f"buffer_store_dword v17, v16, s[16:19], s92 offen offset:{4*i}")
    if os.environ.get("DBGDUMP"):
        a("s_cmp_lg_u32 s2, 0")
        a(f"s_cbranch_scc1 {lab}")
        a("s_load_dwordx2 s[92:93], s[0:1], 80")
        a("s_waitcnt lgkmcnt(0)")
        a("s_mov_b32 s94, 256")
        a("s_mov_b32 s95, 0x00020000")
        for i in range(7):
            for h in range(2):
                a(f"s_sub_u32 s91, s{75+8*h+i}, s{74+8*h+i}")
                a("v_mov_b32 v17, s91")
                a(f"buffer_store_dword v17, v16, s[92:95], 0 offen offset:{4*(8*h+i+1)}")
    a.label(lab)

CODEPF = os.environ.get("CODEPF", "1")
def code_prefetch(a, kname, nloads, allcode=False, vd=8, va=9):
    if CODEPF == "0": return
    a("s_getpc_b64 s[92:93]")
    a.label(f"L_pc_{kname}")
    end = "L_code_end" if allcode else f"L_end_{kname}"
    a(f"s_mov_b32 s94, {end}-L_pc_{kname}")
    a("s_mov_b32 s95, 0x00020000")
    a(f"v_lshlrev_b32 v{va}, 6, v0")
    if os.environ.get("CPF1", "1") == "1" and nloads > 1:
        a("s_bfe_u32 s91, s2, 0x20003")
        a("s_lshl_b32 s91, s91, 15")
        a.vmem(f"buffer_load_dword v{vd}, v{va}, s[92:95], s91 offen", "cpf")
        return
    for i in range(nloads):
        a.vmem(f"buffer_load_dword v{vd}, v{va}, s[92:95], 0 offen", "cpf")
        if i < nloads - 1: a(f"v_add_u32 v{va}, 32768, v{va}")

def lane_setup(a):
    a("v_and_b32 v1, 63, v0")
    a("v_lshrrev_b32 v2, 6, v0")
    a("s_nop 0")
    a("v_readfirstlane_b32 s20, v2")
    a("v_and_b32 v2, 15, v1")
    a("v_lshrrev_b32 v3, 4, v1")
    a("s_lshr_b32 s21, s20, 1")
    a("s_and_b32 s22, s20, 1")

def wave_sum(a, regs):
    pad = max(0, 3 - len(regs))
    steps = ["row_shr:1 row_mask:0xf bank_mask:0xf bound_ctrl:0", "row_shr:2 row_mask:0xf bank_mask:0xf bound_ctrl:0",
             "row_shr:4 row_mask:0xf bank_mask:0xf bound_ctrl:0", "row_shr:8 row_mask:0xf bank_mask:0xf bound_ctrl:0",
             "row_bcast:15 row_mask:0xa bank_mask:0xf", "row_bcast:31 row_mask:0xc bank_mask:0xf"]
    a("s_nop 1")
    for st in steps:
        for r in regs:
            a(f"v_add_f32_dpp v{r}, v{r}, v{r} {st}")
        if pad: a(f"s_nop {pad-1}")

def gelu_block(a, regs, c1, c2, dd, tmp, scale=None):
    n = len(regs)
    P = lambda r: f"v[{r}:{r+1}]"
    for i in range(0, n, 2): a(f"v_pk_mul_f32 {P(tmp[i])}, {P(regs[i])}, {P(regs[i])}")
    for i in range(0, n, 2): a(f"v_pk_fma_f32 {P(tmp[i])}, {P(tmp[i])}, {P(c2)}, {P(c1)}")
    for i in range(0, n, 2): a(f"v_pk_mul_f32 {P(tmp[i])}, {P(tmp[i])}, {P(regs[i])}")
    for i in range(n): a(f"v_exp_f32 v{tmp[i]}, v{tmp[i]}")
    if scale is not None:
        for i in range(0, n, 2): a(f"v_pk_mul_f32 {P(regs[i])}, {P(regs[i])}, {P(scale)}")
    a("s_nop 0")
    for i in range(0, n, 2): a(f"v_pk_fma_f32 {P(tmp[i])}, {P(tmp[i])}, {P(dd)}, {P(dd)}")
    for i in range(n): a(f"v_rcp_f32 v{tmp[i]}, v{tmp[i]}")
    a("s_nop 0")
    for i in range(0, n, 2): a(f"v_pk_mul_f32 {P(regs[i])}, {P(regs[i])}, {P(tmp[i])}")

LDS_X = 3 * SLOT

def ln_gelu_epilogue(a, s_dst_base, kd, v_voff, v_mask, stats_regs, cs_lds, scale=None, tag=None):
    if cs_lds is None:
        a("s_lshl_b32 s33, s22, 8")
        a(f"s_add_u32 s33, s33, {LDS_X}")
        a(f"v_lshl_add_u32 v16, v3, 4, s33")
    elif cs_lds != "regs":
        a(f"v_lshl_add_u32 v16, v3, 4, s{cs_lds}")
    for c in range(4 if cs_lds != "regs" else 0):
        a.ds(f"ds_read_b128 v[{192+4*c}:{195+4*c}], v16 offset:{64*c}", "cs")
    for tt in range(4):
        m, r = stats_regs[tt]
        a(f"v_mul_f32 v224, {f2u(GC1)}, v{r}")
        a(f"v_mul_f32 v226, v{r}, v{r}")
        a(f"v_rcp_f32 v228, v{r}")
        a(f"v_mul_f32 v226, v226, v224")
        a(f"v_mul_f32 v226, {f2u(0.044715)}, v226")
        a(f"v_sub_f32 v230, 0, v{m}")
        a("v_mov_b32 v225, v224")
        a("v_mov_b32 v227, v226")
        a("v_mov_b32 v229, v228")
        a("v_mov_b32 v231, v230")
        if scale:
            a(f"v_mov_b32 v232, v{scale[tt]}")
            a(f"v_mov_b32 v233, v{scale[tt]}")
        a.wait_lgkm("cs")
        regs = []
        for c in range(4):
            d = acc(tt, c)
            for i in range(0, 4, 2):
                a(f"v_pk_fma_f32 v[{d+i}:{d+i+1}], v[230:231], v[{192+4*c+i}:{192+4*c+i+1}], v[{d+i}:{d+i+1}]")
            regs += [d, d + 1, d + 2, d + 3]
        gelu_block(a, regs, 224, 226, 228, list(range(32, 48)), scale=(232 if scale else None))
        t = 48 + 8 * (tt % 2)
        for i in range(8):
            a(f"v_cvt_pk_bf16_f32 v{t+i}, v{regs[2*i]}, v{regs[2*i+1]}")
        if v_mask:
            for i in range(8):
                a(f"v_cndmask_b32 v{t+i}, 0, v{t+i}, {v_mask[tt]}")
        for p in range(2):
            a.vmem(f"buffer_store_dwordx4 v[{t+4*p}:{t+4*p+3}], v{v_voff[tt]}, s[16:19], s{s_dst_base} offen offset:{1024*p} {ST_FLAG}", tag)

def build(kernels, path):
    head = ""
    body = '.amdgcn_target "amdgcn-amd-amdhsa--gfx950"\n.text\n'
    desc = '.section .rodata,"a"\n'
    for name, text, cfg in kernels:
        head += f"; @launch kernel={name} grid=({cfg['grid']},1,1) block=({cfg['block']},1,1) lds={cfg['lds']}\n"
        body += kernel_header(name) + text + f"L_end_{name}:\n"
        desc += kernel_desc(name, cfg['vgpr'])
    body += "L_code_end:\n"
    open(path, "w").write(head + body + desc)

if __name__ == "__main__":
    if "--stamp" in sys.argv: STAMP = True
    pass
```

```python
from gen2 import *
import gen2

class Rec:
    def __init__(self, a): self.a = a; self.ops = []
    def __call__(self, *lines):
        self.ops.append(lambda: [self.a(l) for l in lines])
    def f(self, fn): self.ops.append(fn)
    def split(self, n):
        k = (len(self.ops) + n - 1) // n
        return [self.ops[i*k:(i+1)*k] for i in range(n)]

def rec_wave_sum(r, regs):
    steps = ["row_shr:1 row_mask:0xf bank_mask:0xf bound_ctrl:0", "row_shr:2 row_mask:0xf bank_mask:0xf bound_ctrl:0",
             "row_shr:4 row_mask:0xf bank_mask:0xf bound_ctrl:0", "row_shr:8 row_mask:0xf bank_mask:0xf bound_ctrl:0",
             "row_bcast:15 row_mask:0xa bank_mask:0xf", "row_bcast:31 row_mask:0xc bank_mask:0xf"]
    r("s_nop 1")
    for st in steps:
        for x in regs: r(f"v_add_f32_dpp v{x}, v{x}, v{x} {st}")

def k1(a=None, name="k1_kernel"):
    single = a is not None
    if not single:
        a = Asm(); a.uid = 1000
        a("s_cmp_ge_u32 s2, 256")
        a("s_cbranch_scc1 L_k1_end")
    from gen2 import stamp as _st
    smap = {0: 0, 3: 1, 5: 2, 6: 3} if os.environ.get("ST1") else {0: 0}
    stamp = (lambda a, i: (_st(a, smap[i]) if i in smap else None)) if single else _st
    NSIG = 256 if single else 192
    a("s_load_dwordx4 s[4:7], s[0:1], 0")
    a("s_load_dwordx4 s[36:39], s[0:1], 32")
    a("s_load_dwordx4 s[60:63], s[0:1], 80")
    a("s_load_dwordx2 s[72:73], s[0:1], 64")
    code_prefetch(a, name, 3, allcode=True, vd=29, va=30)
    stamp(a, 0)
    lane_setup(a)
    a("s_and_b32 s40, s2, 7")
    a("s_lshr_b32 s41, s2, 3")
    a("s_and_b32 s42, s40, 1")
    a("s_lshl_b32 s42, s42, 2")
    a("s_and_b32 s43, s41, 3")
    a("s_add_u32 s42, s42, s43")
    a("s_lshr_b32 s43, s40, 1")
    a("s_lshr_b32 s44, s41, 2")
    a("s_cmp_eq_u32 s43, 3")
    a("s_movk_i32 s23, 6144")
    a("s_cselect_b32 s23, 2048, s23")
    a("s_cselect_b32 s45, 0, s43")
    a("s_lshl_b32 s58, s45, 11")
    a("s_lshl_b32 s45, s44, 8")
    a("s_add_u32 s45, s45, s58")
    a("s_lshl_b32 s46, s42, 8")
    a("s_lshl_b32 s47, s42, 3")
    a("s_add_u32 s47, s47, s44")
    def pf_setup():
        a(f"s_mov_b32 s{S_LOFF}, 0")
        a("s_sub_u32 s33, s20, 6")
        a("s_lshl_b32 s33, s33, 6")
        a("s_cmp_ge_u32 s41, 16")
        a("s_cbranch_scc1 L_k1_pfw")
        a("s_mov_b32 s34, 0")
        a("s_and_b32 s48, s40, 1")
        a("s_lshl_b32 s48, s48, 10")
        a("s_lshl_b32 s49, s41, 6")
        a("s_add_u32 s48, s48, s49")
        a("v_add_u32 v16, s48, v1")
        a("v_lshlrev_b32 v16, 11, v16")
        a("s_add_u32 s33, s33, 4096")
        a(f"v_add_u32 v{V_LD}, s33, v16")
        a(f"s_movk_i32 s{S_LSTEP}, 128")
        a("s_branch L_ldE_k1")
        a.label("L_k1_pfw")
        a("s_mov_b32 s34, 1")
        a("s_sub_u32 s48, s41, 16")
        a("s_lshl_b32 s48, s48, 2")
        a("v_add_u32 v16, s48, v3")
        a("v_mul_lo_u32 v16, v16, s23")
        a("v_lshl_add_u32 v16, v2, 7, v16")
        a("s_add_u32 s33, s33, s58")
        a(f"v_add_u32 v{V_LD}, s33, v16")
        a(f"s_lshl_b32 s{S_LSTEP}, s23, 6")
    sym_setup16(a, "row", 23, 45, 46, 1024)
    read_addr_setup16(a, "row")
    a("s_waitcnt lgkmcnt(0)")
    stamp(a, 1)
    a("s_sub_u32 s8, s4, 4096")
    a("s_subb_u32 s9, s5, 0")
    a(f"s_mov_b32 s10, {4*MB + 4096}")
    a("s_mov_b32 s11, 0x00020000")
    a("s_cmp_eq_u32 s43, 3")
    a("s_cselect_b32 s12, s36, s6")
    a("s_cselect_b32 s13, s37, s7")
    a(f"s_mov_b32 s14, {6*MB}")
    a(f"s_cselect_b32 s14, {2*MB}, s14")
    a("s_mov_b32 s15, 0x00020000")
    stamp(a, 2)

    def signal():
        lab = a.newlabel("nosig")
        a("s_cmp_lg_u32 s20, 0")
        a(f"s_cbranch_scc1 {lab}")
        a("v_mov_b32 v16, 0")
        a("v_mov_b32 v17, 1")
        a("s_mov_b64 s[50:51], exec")
        a("s_mov_b64 exec, 1")
        a("buffer_atomic_add v17, v16, s[64:67], 0 offen")
        a("s_mov_b64 exec, s[50:51]")
        a.label(lab)

    def rs_loads(kind):
        a(f"s_add_u32 s48, s47, {(kind-1)*64}")
        a("s_lshl_b32 s48, s48, 4")
        a("s_lshl_b32 s49, s20, 1")
        a("s_add_u32 s59, s48, s49")
        a("s_lshl_b32 s49, s59, 11")
        a("s_add_u32 s49, s49, 4096")
        a("v_lshlrev_b32 v16, 5, v1")
        for r in range(2):
            for h in range(2):
                d = 192 + 8 * r + 4 * h
                a.vmem(f"buffer_load_dwordx4 v[{d}:{d+3}], v16, s[8:11], s49 offen offset:{2048*r+16*h}", "duty")
        srd(a, 68, 72, 2048)
        for h in range(2):
            a.vmem(f"buffer_load_dwordx4 v[{216+4*h}:{219+4*h}], v16, s[68:71], 0 offen offset:{16*h}", "duty")
    def rs_ops():
        r = Rec(a)
        r.f(lambda: a.wait_vm("duty"))
        for i in range(6): r(f"v_mov_b32 v{208+i}, 0")
        for i in range(8):
            r(f"v_lshlrev_b32 v224, 16, v{216+i}")
            r(f"v_and_b32 v225, 0xffff0000, v{216+i}")
            for q in range(2):
                x = 192 + 8 * q + i
                r(f"v_lshlrev_b32 v{226+2*q}, 16, v{x}")
                r(f"v_and_b32 v{227+2*q}, 0xffff0000, v{x}")
            for q in range(2):
                for h in range(2):
                    r(f"v_add_f32 v{208+2*q}, v{208+2*q}, v{226+2*q+h}")
                    r(f"v_fma_f32 v{209+2*q}, v{226+2*q+h}, v{226+2*q+h}, v{209+2*q}")
                    r(f"v_mul_f32 v{226+2*q+h}, v{226+2*q+h}, v{224+h}")
            for q in range(2): r(f"v_cvt_pk_bf16_f32 v{226+2*q}, v{226+2*q}, v{227+2*q}")
            for q in range(2):
                r(f"v_lshlrev_b32 v{227+2*q}, 16, v{226+2*q}")
                r(f"v_and_b32 v{226+2*q}, 0xffff0000, v{226+2*q}")
                r(f"v_add_f32 v{212+q}, v{212+q}, v{227+2*q}")
                r(f"v_add_f32 v{212+q}, v{212+q}, v{226+2*q}")
        rec_wave_sum(r, [208, 209, 210, 211, 212, 213])
        for q in range(2):
            s_, q_ = 208 + 2 * q, 209 + 2 * q
            r(f"v_mul_f32 v{s_}, {f2u(1/1024)}, v{s_}")
            r(f"v_mul_f32 v{q_}, {f2u(1/1024)}, v{q_}")
            r(f"v_fma_f32 v{q_}, -v{s_}, v{s_}, v{q_}")
            r(f"v_max_f32 v{q_}, 0, v{q_}")
            r(f"v_add_f32 v{q_}, {f2u(1e-5)}, v{q_}")
            r(f"v_rsq_f32 v{q_}, v{q_}")
        r("v_cvt_pk_bf16_f32 v212, v212, v213")
        r("v_and_b32 v213, 0xffff0000, v212")
        r("v_lshlrev_b32 v212, 16, v212")
        for q in range(2): r(f"v_mul_f32 v{212+q}, {f2u(-math.log2(math.e))}, v{212+q}")
        for q in range(2): r(f"v_exp_f32 v{212+q}, v{212+q}")
        r("s_nop 0")
        for q in range(2): r(f"v_add_f32 v{212+q}, 1.0, v{212+q}")
        for q in range(2): r(f"v_rcp_f32 v{212+q}, v{212+q}")
        r("s_nop 0")
        r("v_cvt_pk_bf16_f32 v212, v212, v213")
        r("v_lshlrev_b32 v216, 16, v212")
        r("v_and_b32 v218, 0xffff0000, v212")
        r("v_sub_f32 v217, 1.0, v216")
        r("v_sub_f32 v219, 1.0, v218")
        r("v_cvt_pk_bf16_f32 v212, v217, v219")
        r("v_lshlrev_b32 v217, 16, v212")
        r("v_and_b32 v219, 0xffff0000, v212")
        r("s_lshl_b32 s49, s59, 3")
        r(f"s_add_u32 s54, s49, {WS_G}")
        r(f"s_add_u32 s49, s49, {WS_ST}")
        r("v_mov_b32 v16, 0")
        r("s_mov_b32 s52, 0")
        r("s_mov_b32 s53, 0x80000000")
        def st():
            a("s_mov_b64 exec, s[52:53]")
            a.vmem("buffer_store_dwordx4 v[208:211], v16, s[16:19], s49 offen sc1", "dst")
            a.vmem("buffer_store_dwordx4 v[216:219], v16, s[16:19], s54 offen sc1", "dst")
            a("s_mov_b64 exec, -1")
        r.f(st)
        return r
    def cs_loads():
        srd(a, 68, 36, 2 * MB)
        a("s_lshl_b32 s48, s42, 7")
        a("s_lshl_b32 s49, s20, 4")
        a("s_add_u32 s48, s48, s49")
        a("s_lshl_b32 s48, s48, 11")
        a("s_lshl_b32 s49, s44, 8")
        a("s_add_u32 s48, s48, s49")
        a("v_lshlrev_b32 v16, 11, v3")
        a("v_lshl_add_u32 v16, v2, 4, v16")
        for r in range(4):
            a.vmem(f"buffer_load_dwordx4 v[{192+4*r}:{195+4*r}], v16, s[68:71], s48 offen", "duty")
            if r < 3: a("s_add_u32 s48, s48, 8192")
    def cs_ops1():
        r = Rec(a)
        r.f(lambda: a.wait_vm("duty"))
        for q in range(4):
            for i in range(4):
                x = 192 + 4 * q + i
                if q == 0:
                    r(f"v_lshlrev_b32 v{208+2*i}, 16, v{x}")
                    r(f"v_and_b32 v{209+2*i}, 0xffff0000, v{x}")
                else:
                    r(f"v_lshlrev_b32 v216, 16, v{x}")
                    r(f"v_and_b32 v217, 0xffff0000, v{x}")
                    r(f"v_add_f32 v{208+2*i}, v{208+2*i}, v216")
                    r(f"v_add_f32 v{209+2*i}, v{209+2*i}, v217")
        r("s_lshl_b32 s48, s20, 11")
        r(f"s_add_u32 s48, s48, {LDS_X}")
        r("v_lshlrev_b32 v16, 9, v3")
        r("v_lshl_add_u32 v16, v2, 5, v16")
        r("v_add_u32 v16, s48, v16")
        r.f(lambda: a.ds("ds_write_b128 v16, v[208:211]", "csw"))
        r.f(lambda: a.ds("ds_write_b128 v16, v[212:215] offset:16", "csw"))
        return r.ops
    def cs_ops2():
        r = Rec(a)
        r("v_and_b32 v16, 127, v0")
        r("v_lshrrev_b32 v17, 7, v0")
        r("v_lshlrev_b32 v18, 12, v17")
        r("v_lshl_add_u32 v18, v16, 2, v18")
        r(f"v_add_u32 v19, {LDS_X}, v18")
        for q in range(8): r.f(lambda q=q: a.ds(f"ds_read_b32 v{192+q}, v19 offset:{512*q}", "csr"))
        r("s_lshl_b32 s48, s42, 14")
        r("s_lshl_b32 s49, s44, 9")
        r("s_add_u32 s48, s48, s49")
        r(f"s_add_u32 s48, s48, {WS_CS1}")
        for _ in range(4): r("s_nop 0")
        r.f(lambda: a.wait_lgkm("csr"))
        for q in range(1, 8): r(f"v_add_f32 v192, v192, v{192+q}")
        r.f(lambda: a.vmem("buffer_store_dword v192, v18, s[16:19], s48 offen sc1", "dst"))
        return r.ops

    def poll_issue():
        lab = a.newlabel("np1")
        a("v_mov_b32 v16, 0")
        a("s_cmp_lg_u32 s20, 0")
        a(f"s_cbranch_scc1 {lab}")
        a("buffer_load_dword v27, v16, s[64:67], 0 offen" + ("" if os.environ.get("PLAIN1", "1") == "1" else " sc1"))
        a.label(lab)
    def poll_check():
        lab = a.newlabel("poll"); ok = a.newlabel("pollok")
        a("s_cmp_lg_u32 s20, 0")
        a(f"s_cbranch_scc1 {ok}")
        a("s_waitcnt vmcnt(6)")
        a("s_mov_b32 s49, 0")
        a.label(lab)
        a("v_readfirstlane_b32 s48, v27")
        a(f"s_cmp_ge_u32 s48, {NSIG}")
        a(f"s_cbranch_scc1 {ok}")
        a("s_add_u32 s49, s49, 1")
        a(f"s_cmp_ge_u32 s49, {1 << 22}")
        a(f"s_cbranch_scc1 {ok}")
        a("s_sleep 4")
        a("buffer_load_dword v27, v16, s[64:67], 0 offen sc1")
        a("s_waitcnt vmcnt(0)")
        a(f"s_branch {lab}")
        a.label(ok)
    PFW = os.environ.get("PFW", "none")
    PFR = int(os.environ.get("PFR", "256"))
    def wq_pf(kind):
        a(f"s_add_u32 s94, s47, {kind*64}")
        a("s_lshl_b32 s94, s94, 3")
        a("s_add_u32 s94, s94, s20")
        a("s_lshl_b32 s94, s94, 12")
        a(f"s_add_u32 s94, s94, {PFR*6144}")
        a("v_lshlrev_b32 v27, 6, v1")
        a.vmem("buffer_load_dword v28, v27, s[12:15], s94 offen", "pf")
    for role in ("S",):
        if role == "P": a.label("L_k1_roleP")
        a.vm = []; a.lgkm = []
        Core16(a, "row", role=role).prologue_dma()
        vm0 = list(a.vm)
        srd(a, 16, 62, WS_SIZE)
        srd(a, 64, 60, 256)
        a("s_cmp_lg_u32 s20, 7")
        a("s_cbranch_scc1 L_k1_nozero")
        a("s_lshl_b32 s48, s2, 8")
        a(f"s_add_u32 s48, s48, {WS_FLAG}")
        a("v_lshlrev_b32 v16, 2, v1")
        a("v_mov_b32 v17, 0")
        a("buffer_store_dword v17, v16, s[16:19], s48 offen sc1")
        a.label("L_k1_nozero")
        for k in (1, 2, 3):
            a(f"s_cmp_eq_u32 s43, {k}")
            a(f"s_cbranch_scc1 L_k1_p{k}{role}")
        for kind in range(4):
            if kind: a.label(f"L_k1_p{kind}{role}")
            a.vm = list(vm0); a.lgkm = []
            core = Core16(a, "row", swap=(kind == 2), tag=f"k1{kind}", role=role)
            hk = dict(start=lambda: stamp(a, 3), after0=lambda: stamp(a, 4), pre_tail=lambda: stamp(a, 5))
            if kind < 3 and PFW != "none":
                prev = hk[PFW]
                hk[PFW] = (lambda prev=prev, kind=kind: (prev(), wq_pf(kind)))
            if kind == 0:
                cs_loads()
                hk.update(spread2=cs_ops1, spread3=cs_ops2, prebar5=["dst"], after5=signal)
                if single: hk.update(end12=poll_issue, end13=poll_check)
                core.mainloop(hooks=hk, npeel=6, ntail=(2 if single else 0))
            elif kind in (1, 2):
                rs_loads(kind)
                NSP = int(os.environ.get("NSP", "4"))
                parts = rs_ops().split(NSP)
                for i in range(NSP): hk[f"spread{(2 if NSP < 6 else 1)+i}"] = (lambda i=i: parts[i])
                hk.update(prebar7=["dst"], after7=signal)
                if single: hk.update(end12=poll_issue, end13=poll_check)
                core.mainloop(hooks=hk, npeel=8, ntail=(2 if single else 0))
            else:
                def stat_loads():
                    r = Rec(a)
                    r("s_lshl_b32 s48, s21, 6", "s_add_u32 s48, s48, s46", "s_lshl_b32 s48, s48, 3", f"s_add_u32 s48, s48, {WS_ST}")
                    r("v_lshlrev_b32 v16, 3, v2")
                    for tt in range(4):
                        r.f(lambda tt=tt: a.vmem(f"buffer_load_dwordx2 v[{208+2*tt}:{209+2*tt}], v16, s[16:19], s48 offen offset:{128*tt} sc1", "stat"))
                    r("v_and_b32 v17, 127, v0")
                    r("v_lshrrev_b32 v18, 7, v0")
                    r("v_lshlrev_b32 v19, 15, v18")
                    r("v_lshl_add_u32 v19, v17, 2, v19")
                    r("s_lshl_b32 s49, s44, 9", f"s_add_u32 s49, s49, {WS_CS1}")
                    for kb in range(8):
                        r.f(lambda kb=kb: (a.vmem(f"buffer_load_dword v{216+kb}, v19, s[16:19], s49 offen sc1", "csp"), a("s_add_u32 s49, s49, 4096")))
                    return r.ops
                def red1():
                    r = Rec(a)
                    r("s_lshr_b32 s48, s44, 1", "s_lshr_b32 s49, s48, 1", "s_add_u32 s49, s49, 1", "s_sub_u32 s50, 0, s49", "s_and_b32 s48, s48, 1",
                      "s_cmp_eq_u32 s48, 0", "s_cselect_b32 s49, s49, s50", "s_lshl_b32 s48, s21, 6", "s_add_u32 s48, s48, s46", "s_add_u32 s48, s48, s49")
                    for tt in range(4):
                        v = 28 + tt
                        r(f"v_add_u32 v16, s48, v2")
                        if tt: r(f"v_add_u32 v16, {16*tt}, v16")
                        r(f"v_mov_b32 v18, 2048")
                        r(f"v_cmp_lt_u32 s[{50+2*tt}:{51+2*tt}], v16, v18")
                        r("v_and_b32 v16, 2047, v16")
                        r("v_lshrrev_b32 v17, 5, v16")
                        r("v_lshlrev_b32 v17, 16, v17")
                        r("v_bfe_u32 v18, v16, 4, 1")
                        r("v_lshl_add_u32 v17, v18, 11, v17")
                        r("v_and_b32 v18, 15, v16")
                        r("v_lshl_add_u32 v17, v18, 4, v17")
                        r(f"v_lshl_add_u32 v{v}, v3, 8, v17")
                    r.f(lambda: a.wait_vm("csp"))
                    for kb in range(1, 8): r(f"v_add_f32 v216, v216, v{216+kb}")
                    r("v_lshlrev_b32 v19, 2, v0")
                    r(f"v_add_u32 v19, {LDS_X + 1024}, v19")
                    r.f(lambda: a.ds("ds_write_b32 v19, v216", "rw"))
                    return r.ops
                def red2():
                    r = Rec(a)
                    r("s_lshl_b32 s49, s22, 8", f"s_add_u32 s49, s49, {LDS_X + 1024}")
                    r("v_lshl_add_u32 v19, v1, 2, s49")
                    for g in range(4): r.f(lambda g=g: a.ds(f"ds_read_b32 v{216+g}, v19 offset:{512*g}", "rr"))
                    r("s_lshl_b32 s48, s44, 1", "s_add_u32 s48, s48, s22", "s_lshl_b32 s48, s48, 12", f"s_add_u32 s48, s48, {WS_HS}")
                    for _ in range(4): r("s_nop 0")
                    r.f(lambda: a.wait_lgkm("rr"))
                    r("v_add_f32 v216, v216, v217")
                    r("v_add_f32 v218, v218, v219")
                    r("v_add_f32 v216, v216, v218")
                    r("v_subrev_u32 v19, 1024, v19")
                    r.f(lambda: a.ds("ds_write_b32 v19, v216", "rw2"))
                    for _ in range(4): r("s_nop 0")
                    r.f(lambda: a.wait_lgkm("rw2"))
                    r("s_lshl_b32 s49, s22, 8", f"s_add_u32 s49, s49, {LDS_X}")
                    r("v_lshl_add_u32 v16, v3, 4, s49")
                    for c in range(4): r.f(lambda c=c: a.ds(f"ds_read_b128 v[{192+4*c}:{195+4*c}], v16 offset:{64*c}", "cs"))
                    return r.ops
                def w2pf():
                    srd(a, 68, 38, 2 * MB)
                    a("s_lshl_b32 s48, s47, 3")
                    a("s_add_u32 s48, s48, s20")
                    a("s_lshl_b32 s48, s48, 12")
                    a("v_lshlrev_b32 v27, 6, v1")
                    a("buffer_load_dword v28, v27, s[68:71], s48 offen")
                hk.update(after1=w2pf, end10=poll_issue, end11=poll_check, spread12=stat_loads, spreadN2=red1, spreadN1=red2)
                if single: hk.update(prebar3=["x"], after3=signal)
                core.mainloop(hooks=hk, npeel=(4 if single else 2), ntail=4)
            a(f"s_branch L_k1_ep{kind}")
    for kind in range(3):
        a.label(f"L_k1_ep{kind}")
        stamp(a, 6)
        hsh, tsh = (17, 11) if kind == 0 else (18, 12)
        base = WS_Q if kind == 0 else (WS_KV + (2048 if kind == 2 else 0))
        a("s_lshl_b32 s48, s44, 2")
        a("s_lshl_b32 s49, s22, 1")
        a("s_add_u32 s48, s48, s49")
        a(f"s_lshl_b32 s48, s48, {hsh}")
        a("s_lshl_b32 s49, s42, 3")
        a("s_lshl_b32 s50, s21, 1")
        a("s_add_u32 s49, s49, s50")
        a(f"s_lshl_b32 s49, s49, {tsh}")
        a("s_add_u32 s48, s48, s49")
        a(f"s_add_u32 s48, s48, {base}")
        a("v_lshrrev_b32 v16, 3, v2")
        a(f"v_lshlrev_b32 v16, {7 if kind == 0 else 8}, v16")
        a("v_and_b32 v17, 7, v2")
        a("v_lshl_add_u32 v16, v17, 4, v16")
        a("v_lshl_add_u32 v16, v3, 9, v16")
        if kind == 0:
            a(f"v_mov_b32 v18, {f2u(QSCALE)}"); a(f"v_mov_b32 v19, {f2u(QSCALE)}")
        n = 0
        for p in range(2):
            for o in range(4):
                t = 128 + 4 * n; n += 1
                if kind == 2:
                    c, pp = (n - 1) // 2, (n - 1) % 2
                    d0, d1 = acc(2 * pp, c), acc(2 * pp + 1, c)
                    soff = (c >> 1) * (1 << hsh) + pp * (1 << tsh); imm = (c & 1) * 128
                else:
                    d0, d1 = acc(o, 2 * p), acc(o, 2 * p + 1)
                    soff = (o >> 1) * (1 << tsh) + p * (1 << hsh); imm = (o & 1) * (256 if kind == 0 else 128)
                if kind == 0:
                    for d in (d0, d0 + 2, d1, d1 + 2):
                        a(f"v_pk_mul_f32 v[{d}:{d+1}], v[{d}:{d+1}], v[18:19]")
                a(f"v_cvt_pk_bf16_f32 v{t}, v{d0}, v{d0+1}")
                a(f"v_cvt_pk_bf16_f32 v{t+1}, v{d0+2}, v{d0+3}")
                a(f"v_cvt_pk_bf16_f32 v{t+2}, v{d1}, v{d1+1}")
                a(f"v_cvt_pk_bf16_f32 v{t+3}, v{d1+2}, v{d1+3}")
                a(f"s_add_u32 s49, s48, {soff}")
                a(f"buffer_store_dwordx4 v[{t}:{t+3}], v16, s[16:19], s49 offen offset:{imm} {ST_FLAG}")
        a("s_branch L_k1_fin")
    a.label("L_k1_ep3")
    a.vm = []; a.lgkm = []
    stamp(a, 6)
    masks = [f"s[{50+2*tt}:{51+2*tt}]" for tt in range(4)]
    a("s_waitcnt vmcnt(0) lgkmcnt(0)")
    ln_gelu_epilogue(a, 48, 1024, [28, 29, 30, 31], masks, [(208 + 2 * t, 209 + 2 * t) for t in range(4)], "regs")
    a.label("L_k1_fin")
    if single: return
    if gen2.STAMP: a("s_waitcnt vmcnt(0)")
    stamp(a, 7); stamp_dump(a, 8, 0)
    a.label("L_k1_end")
    a("s_endpgm")
    return name, a.text(), dict(grid=256, block=512, lds=163840, vgpr=232)
```

```python
from gen2 import *
import gen2
from k1gen import Rec

SLA = 32768
A_Q = 32; A_NEG = 48; A_S = 64; A_P = 96; A_O = 104; A_L = 136; A_SEL = 144; A_K = 148; A_V = 164
G_ACC = 180
G_F = 196
X_RES = 228
C3 = 196
PK = 212
NVA = 240
V_KVD = 4; V_XD = 5; V_WD = 6; V_KVD2 = 7
V_KVR = 8
V_XR = 10
V_WR = 12
V_LP = 14
V_L16 = 15
V_KV2 = 28
F_QKV = 56
F_HS = 64
HFA = ''
S_KVO = 24; S_XO = 25; S_WO = 26; S_CN = 29; S_MK = 30; S_MX = 31; S_MW = 34; S_MK2 = 27
XCH = 98304
F_X1 = 16
F_O = 32
F_CS = 48

class KA:
    def __init__(self, a, hf=''): self.a = a; self.hf = hf
    def dma(self, stage):
        a = self.a; t = ("st", stage); sl = (stage % 4) * SLA; F = self.hf
        if 1 <= stage <= 16:
            return [
                lambda: a(f"s_add_u32 m0, s{S_MK}, {sl}"),
                lambda: a.vmem(f"buffer_load_dwordx4 v{V_KVD}, s[16:19], s{S_KVO} offen {F}lds", t),
                lambda: a(f"s_add_u32 m0, s{S_MX}, {sl}"),
                lambda: a.vmem(f"buffer_load_dwordx4 v{V_XD}, s[16:19], s{S_XO} offen {F}lds", t),
                lambda: a.vmem(f"buffer_load_dwordx4 v{V_XD}, s[16:19], s{S_XO} offen offset:1024 {F}lds", t),
                lambda: a(f"s_add_u32 m0, s{S_MW}, {sl}"),
                lambda: a.vmem(f"buffer_load_dwordx4 v{V_WD}, s[12:15], s{S_WO} offen lds", t),
                lambda: a(f"s_add_u32 s{S_KVO}, s{S_KVO}, 8192"),
                lambda: a(f"s_add_u32 s{S_XO}, s{S_XO}, 4096"),
                lambda: a(f"s_add_u32 s{S_WO}, s{S_WO}, {64*2048}"),
            ]
        ops = [lambda: a(f"s_add_u32 m0, s{S_MK2}, {sl}")]
        for j in range(4):
            ops.append(lambda j=j: a.vmem(f"buffer_load_dwordx4 v{V_KVD2}, s[16:19], s{S_KVO} offen offset:{1024*j} {F}lds", t))
        ops.append(lambda: a(f"s_add_u32 s{S_KVO}, s{S_KVO}, 32768"))
        return ops
    def kvaddr(self, kt):
        if 4 <= kt < 20:
            sl = (kt - 3) % 4
            return V_KVR + (sl >> 1), (sl & 1) * SLA
        st, j = (0, kt) if kt < 4 else (17 + (kt - 20) // 4, (kt - 20) % 4)
        sl = st % 4
        return V_KV2 + (sl >> 1), (sl & 1) * SLA + j * 4096
    def kreads(self, kt):
        a = self.a; k = A_K + 8 * (kt % 2); v, off = self.kvaddr(kt)
        return [lambda: a.ds(f"ds_read_b128 v[{k}:{k+3}], v{v} offset:{off}", ("k", kt, 0)),
                lambda: a.ds(f"ds_read_b128 v[{k+4}:{k+7}], v{v} offset:{off+1024}", ("k", kt, 1))]
    def vreads(self, kt):
        a = self.a; d = A_V + 8 * (kt % 2); v, off = self.kvaddr(kt)
        return [lambda: a.ds(f"ds_read_b128 v[{d}:{d+3}], v{v} offset:{off+2048}", ("v", kt, 0)),
                lambda: a.ds(f"ds_read_b128 v[{d+4}:{d+7}], v{v} offset:{off+3072}", ("v", kt, 1))]
    def greads(self, T):
        a = self.a; i = T % 4; sl = (1 + T // 4) % 4; pr = sl >> 1; off = (sl & 1) * SLA
        gx = G_F + 8 * i; gw = gx + 4
        kg, s = i >> 1, i & 1
        return [lambda: a.ds(f"ds_read_b128 v[{gx}:{gx+3}], v{V_XR+pr} offset:{off+1024*kg+512*s}", ("gx", T)),
                lambda: a.ds(f"ds_read_b64_tr_b16 v[{gw}:{gw+1}], v{V_WR+pr} offset:{off+(32*kg+8*s)*128}", ("gw", T)),
                lambda: a.ds(f"ds_read_b64_tr_b16 v[{gw+2}:{gw+3}], v{V_WR+pr} offset:{off+(32*kg+8*s+16)*128}", ("gw", T))]
    def reads(self, t):
        T = t + 2
        if T > 63: return []
        kv = self.kreads(T // 2) if T % 2 == 0 else self.vreads(T // 2)
        g = (self.greads(2 * (t - 6)) + self.greads(2 * (t - 6) + 1)) if 6 <= t <= 37 else []
        return g[:3] + kv + g[3:]
    def qk(self, u, half):
        a = self.a
        kt, qs = u >> 1, u & 1
        k = A_K + 8 * (kt % 2) + 4 * half; S = A_S + 16 * (u % 2); q = A_Q + 8 * qs + 4 * half
        def f():
            a.wait_lgkm(("k", kt, half))
            c = f"v[{A_NEG}:{A_NEG+15}]" if half == 0 else f"v[{S}:{S+15}]"
            a(f"v_mfma_f32_32x32x16_bf16 v[{S}:{S+15}], v[{k}:{k+3}], v[{q}:{q+3}], {c}")
        return f
    def gm(self, T):
        a = self.a
        gx = G_F + 8 * (T % 4); gw = gx + 4
        def f():
            a.wait_lgkm(("gx", T), ("gw", T))
            c = f"v[{G_ACC}:{G_ACC+15}]"
            a(f"v_mfma_f32_32x32x16_bf16 v[{G_ACC}:{G_ACC+15}], v[{gw}:{gw+3}], v[{gx}:{gx+3}], {c}")
        return f
    def pv(self, u, half):
        a = self.a
        kt, qs = u >> 1, u & 1
        v = A_V + 8 * (kt % 2) + 4 * half; p = A_P + 4 * half; O = A_O + 16 * qs
        def f():
            a.wait_lgkm(("v", kt, half))
            a(f"v_mfma_f32_32x32x16_bf16 v[{O}:{O+15}], v[{v}:{v+3}], v[{p}:{p+3}], v[{O}:{O+15}]")
        return f
    def sm(self, u, half):
        a = self.a
        p = A_P + 4 * half; L = A_L + 4 * (u & 1)
        return lambda: a(f"v_mfma_f32_16x16x32_bf16 v[{L}:{L+3}], v[{A_SEL}:{A_SEL+3}], v[{p}:{p+3}], v[{L}:{L+3}]")
    def slot(self, t, misc=()):
        a = self.a
        S = A_S + 16 * (t % 2)
        e = lambda i: (lambda: a(f"v_exp_f32 v{S+i}, v{S+i}"))
        c = lambda i: (lambda: a(f"v_cvt_pk_bf16_f32 v{A_P+i}, v{S+2*i}, v{S+2*i+1}"))
        rd = self.reads(t)
        nxt = 0 <= t + 1 <= 63; prev = 0 <= t <= 64; cur = 0 <= t <= 63
        gg = 7 <= t <= 38
        seq = []
        def M(f, cond):
            if cond: seq.append(f)
        def V(*fs):
            if cur: seq.extend(fs)
        M(self.qk(t + 1, 0), nxt)
        V(e(0), e(1), e(2))
        M(self.pv(t - 1, 1), prev)
        V(c(0), e(3), e(4), c(1))
        M(self.qk(t + 1, 1), nxt)
        V(e(5), e(6), c(2))
        M(self.sm(t - 1, 1), prev)
        V(e(7), e(8))
        M(self.gm(2 * (t - 7)), gg)
        V(c(3), e(9), e(10), c(4))
        M(self.pv(t, 0), cur)
        V(e(11), e(12), c(5))
        M(self.sm(t, 0), cur)
        V(e(13), e(14))
        M(self.gm(2 * (t - 7) + 1), gg)
        V(e(15), c(6), c(7))
        fill = list(rd) + list(misc)
        n = len(seq)
        out = []; j = 0
        for i, f in enumerate(seq):
            out.append(f)
            tgt = (len(fill) * (i + 1)) // max(1, (n - 6)) if n > 6 else len(fill)
            while j < min(tgt, len(fill)):
                out.append(fill[j]); j += 1
        out += fill[j:]
        for f in out: f()
    def bar(self, tags):
        a = self.a
        n = a._need(a.vm, tags)
        if n is None: a.wait_all(vm=False)
        else:
            a(f"s_waitcnt vmcnt({n}) lgkmcnt(0)")
            a.vm = a.vm[len(a.vm) - n:] if n else []
            a.lgkm = []
        a("s_barrier")
    def period1(self, s, tail=(), extra=None):
        d = self.dma(s + 3)
        h = (len(d) + 1) // 2
        self.a("s_setprio 1")
        self.slot(2 * s + 4, d[:h] + (extra or {}).get(0, []))
        self.a("s_setprio 0")
        self.slot(2 * s + 5, d[h:] + list(tail) + (extra or {}).get(1, []))
        self.bar([("st", s + 1)])
    def period2(self, s, extra=None, tail=(), bartags=None, barrier=True):
        a = self.a
        t0 = 38 + 8 * (s - 17)
        for i in range(8):
            if i % 2 == 0: a(f"s_setprio {3 - i//2}")
            m = list((extra or {}).get(i, []))
            if i == 7: m += list(tail)
            self.slot(t0 + i, m)
        if barrier: self.bar(bartags)

def flag_add(a, slot_sgpr_expr_lines, tag):
    lab = a.newlabel("nf" + tag)
    a("s_cmp_lg_u32 s20, 0")
    a(f"s_cbranch_scc1 {lab}")
    for l in slot_sgpr_expr_lines: a(l)
    a("v_mov_b32 v30, 0")
    a("v_mov_b32 v31, 1")
    a("s_mov_b64 exec, 1")
    a("buffer_atomic_add v31, v30, s[16:19], s48 offen")
    a("s_mov_b64 exec, -1")
    a.label(lab)

def phaseA(a, p3_early, single=False):
    from gen2 import stamp as _st
    stamp = (lambda a, i: None) if (os.environ.get('ST3') or os.environ.get('ST4')) else _st
    a("v_and_b32 v2, 31, v1")
    a("v_lshrrev_b32 v3, 5, v1")
    a("s_lshr_b32 s21, s20, 1")
    a("s_and_b32 s22, s20, 1")
    a("s_lshl_b32 s42, s40, 2")
    a("s_and_b32 s43, s41, 3")
    a("s_add_u32 s42, s42, s43")
    a("s_lshr_b32 s43, s41, 2")
    a("s_and_b32 s44, s40, 3")
    a("s_lshl_b32 s44, s44, 2")
    a("s_and_b32 s45, s41, 3")
    a("s_add_u32 s44, s44, s45")
    a("s_lshr_b32 s45, s40, 2")
    a("s_lshl_b32 s45, s45, 3")
    a("s_add_u32 s45, s45, s43")
    a(f"v_lshlrev_b32 v{V_L16}, 4, v1")
    a("s_lshl_b32 s46, s42, 18")
    a(f"s_add_u32 s46, s46, {WS_KV}")
    a("s_lshl_b32 s47, s20, 10")
    a("s_add_u32 s47, s47, s46")
    a(f"v_add_u32 v{V_KVD}, s47, v{V_L16}")
    a("s_lshl_b32 s47, s20, 12")
    a("s_add_u32 s47, s47, s46")
    a(f"v_add_u32 v{V_KVD2}, s47, v{V_L16}")
    a("s_lshl_b32 s46, s44, 2")
    a("s_add_u32 s46, s46, s21")
    a("s_lshl_b32 s46, s46, 16")
    a("s_lshl_b32 s47, s22, 11")
    a("s_add_u32 s46, s46, s47")
    a(f"s_add_u32 s46, s46, {WS_HS}")
    a(f"v_add_u32 v{V_XD}, s46, v{V_L16}")
    a("v_lshrrev_b32 v17, 3, v1")
    a("s_lshl_b32 s46, s20, 3")
    a("v_add_u32 v17, s46, v17")
    a("v_lshlrev_b32 v17, 11, v17")
    a("v_and_b32 v18, 7, v1")
    a("v_bfe_u32 v19, v1, 4, 1")
    a("v_lshlrev_b32 v19, 2, v19")
    a("v_xor_b32 v18, v18, v19")
    a("v_lshl_add_u32 v17, v18, 4, v17")
    a("s_lshl_b32 s46, s45, 7")
    a(f"v_add_u32 v{V_WD}, s46, v17")
    a(f"s_lshl_b32 s{S_MK}, s20, 10")
    a(f"s_lshl_b32 s{S_MX}, s20, 11")
    a(f"s_add_u32 s{S_MX}, s{S_MX}, 8192")
    a(f"s_add_u32 s{S_MW}, s{S_MK}, 24576")
    a(f"s_lshl_b32 s{S_MK2}, s20, 12")
    a("s_lshl_b32 s46, s22, 12")
    a(f"v_add_u32 v{V_KVR}, s46, v{V_L16}")
    a(f"v_add_u32 v{V_KVR+1}, {2*SLA}, v{V_KVR}")
    a("v_lshrrev_b32 v17, 4, v2")
    a("v_lshlrev_b32 v17, 11, v17")
    a("v_lshl_add_u32 v17, v3, 8, v17")
    a("v_and_b32 v18, 15, v2")
    a(f"v_lshl_add_u32 v{V_LP}, v18, 4, v17")
    a("s_lshl_b32 s46, s21, 12")
    a("s_add_u32 s46, s46, 8192")
    a(f"v_add_u32 v{V_XR}, s46, v{V_LP}")
    a(f"v_add_u32 v{V_XR+1}, {2*SLA}, v{V_XR}")
    a("v_bfe_u32 v17, v1, 2, 2")
    a("v_lshl_add_u32 v18, v3, 2, v17")
    a("v_bfe_u32 v19, v1, 1, 1")
    a("v_bfe_u32 v20, v1, 4, 1")
    a("v_lshl_add_u32 v19, v19, 1, v20")
    a("s_lshl_b32 s46, s22, 2")
    a("v_add_u32 v19, s46, v19")
    a("v_lshrrev_b32 v17, 1, v17")
    a("v_lshlrev_b32 v17, 2, v17")
    a("v_xor_b32 v19, v19, v17")
    a("v_lshlrev_b32 v18, 7, v18")
    a("v_lshl_add_u32 v18, v19, 4, v18")
    a("v_and_b32 v20, 1, v1")
    a("v_lshl_add_u32 v18, v20, 3, v18")
    a(f"v_add_u32 v{V_WR}, 24576, v18")
    a(f"v_add_u32 v{V_WR+1}, {2*SLA}, v{V_WR}")
    a("v_bfe_u32 v17, v1, 2, 1")
    a("v_bfe_u32 v18, v1, 4, 1")
    a("v_cmp_eq_u32 vcc, v17, v18")
    a("v_mov_b32 v19, 0x3f803f80")
    a("s_nop 0")
    for i in range(4): a(f"v_cndmask_b32 v{A_SEL+i}, 0, v19, vcc")
    for r in (S_KVO, S_XO, S_WO): a(f"s_mov_b32 s{r}, 0")
    a("s_lshl_b32 s46, s42, 17")
    a("s_lshl_b32 s47, s43, 3")
    a("s_add_u32 s47, s47, s20")
    a("s_andn2_b32 s48, s47, 1")
    a("s_lshl_b32 s48, s48, 11")
    a("s_add_u32 s46, s46, s48")
    a(f"s_add_u32 s46, s46, {WS_Q}")
    a("s_lshl_b32 s48, s22, 14")
    a(f"v_add_u32 v{V_KV2}, s48, v{V_L16}")
    a(f"v_add_u32 v{V_KV2+1}, {2*SLA}, v{V_KV2}")
    from mega import spin_wait
    HF = "sc1 " if single else ""
    if not single:
        a("s_waitcnt lgkmcnt(0)")
        srd(a, 16, 62, WS_SIZE)
    srd(a, 12, 6, 2 * MB)
    srd(a, 8, 4, 4 * MB)
    for i in range(40): a(f"v_mov_b32 v{A_O+i}, 0")
    for i in range(8): a(f"v_mov_b32 v{A_P+i}, 0")
    for i in range(16): a(f"v_mov_b32 v{A_V+i}, 0")
    for i in range(16): a(f"v_mov_b32 v{G_ACC+i}, 0")
    if single:
        single()
    stamp(a, 1)
    K = KA(a, HF)
    for i in range(4):
        a.vmem(f"buffer_load_dwordx4 v[{A_Q+4*i}:{A_Q+4*i+3}], v{V_L16}, s[16:19], s46 offen offset:{1024*i} {HF}", "q")
    for f in K.dma(0): f()
    if single:
        a(f"s_mov_b32 s38, {WS_FLAG + F_HS*256}")
        a("v_mov_b32 v30, 0")
        a("v_mov_b32 v31, 0")
    else:
        for st in (1, 2, 3):
            for f in K.dma(st): f()
    a.wait_vm(("st", 0))
    a("s_barrier")
    k1b = A_K + 8
    a.ds(f"ds_read_b128 v[{k1b}:{k1b+3}], v{V_L16}", "k0")
    a.ds(f"ds_read_b128 v[{k1b+4}:{k1b+7}], v{V_L16} offset:1024", "k0")
    for f in K.reads(-2): f()
    a.wait_lgkm("k0")
    for qs in range(2):
        S = A_S + 16 * qs
        a(f"v_mfma_f32_32x32x16_bf16 v[{S}:{S+15}], v[{k1b}:{k1b+3}], v[{A_Q+8*qs}:{A_Q+8*qs+3}], 0")
        a(f"v_mfma_f32_32x32x16_bf16 v[{S}:{S+15}], v[{k1b+4}:{k1b+7}], v[{A_Q+8*qs+4}:{A_Q+8*qs+7}], v[{S}:{S+15}]")
    for f in K.reads(-1): f()
    a("s_nop 7"); a("s_nop 7")
    S = A_S
    a(f"v_max3_f32 v17, v{S}, v{S+1}, v{S+2}")
    a(f"v_max3_f32 v18, v{S+3}, v{S+4}, v{S+5}")
    for i in range(6, 32, 4):
        a(f"v_max3_f32 v17, v17, v{S+i}, v{S+i+1}")
        if i + 3 < 32: a(f"v_max3_f32 v18, v18, v{S+i+2}, v{S+i+3}")
    a("v_max_f32 v17, v17, v18")
    a("v_mov_b32 v18, v17")
    a("s_nop 1")
    a("v_permlane32_swap_b32 v17, v18")
    a("s_nop 1")
    a("v_max_f32 v17, v17, v18")
    for i in range(16): a(f"v_sub_f32 v{A_NEG+i}, 0, v17")
    a("s_nop 1")
    K.qk(0, 0)(); K.qk(0, 1)()
    a("s_nop 7"); a("s_nop 3")
    stamp(a, 2)
    def hs_poll():
        lab = a.newlabel("nhp")
        a("s_cmp_lg_u32 s20, 0")
        a(f"s_cbranch_scc1 {lab}")
        a("buffer_load_dword v31, v30, s[16:19], s38 offen" + ("" if os.environ.get("PLAIN2", "1") == "1" else " sc1"))
        a.label(lab)
    K.slot(0, [hs_poll] if single else [])
    K.slot(1)
    if single:
        lab = a.newlabel("nhc")
        a("s_cmp_lg_u32 s20, 0")
        a(f"s_cbranch_scc1 {lab}")
        a("s_waitcnt vmcnt(0)")
        spin_wait(a, 31, 30, 38, 64, "hs")
        a.label(lab)
        a("s_barrier")
        for i in range(3): K.slot(2 + i, K.dma(1 + i))
        K.slot(5)
    else:
        for t in range(2, 6): K.slot(t)
    K.bar([("st", 1)])
    K.period1(1)
    a(f"s_mov_b32 s{S_CN}, 3")
    vm_top = list(a.vm)
    a.lines.append(".p2align 6")
    a.label("L_pa_loop1")
    lt = [lambda: a(f"s_sub_u32 s{S_CN}, s{S_CN}, 1"), lambda: a(f"s_cmp_lg_u32 s{S_CN}, 0")]
    for s in range(2, 6): K.period1(s, tail=(lt if s == 5 else ()))
    assert [(t[0], t[1] - 4) for t in a.vm] == vm_top, (a.vm, vm_top)
    a("s_cbranch_scc1 L_pa_loop1")
    a.vm = [("st", 15)] * 4 + [("st", 16)] * 4
    def xres():
        a("s_lshl_b32 s46, s44, 7")
        a("s_lshl_b32 s48, s21, 5")
        a("s_add_u32 s46, s46, s48")
        a("s_lshl_b32 s48, s46, 11")
        a("s_lshl_b32 s49, s45, 7")
        a("s_add_u32 s48, s48, s49")
        a("s_lshl_b32 s49, s22, 6")
        a("s_add_u32 s48, s48, s49")
        a("v_lshlrev_b32 v17, 11, v2")
        a("v_lshl_add_u32 v17, v3, 3, v17")
        for s in range(2):
            for b in range(2):
                d = X_RES + 4 * s + 2 * b
                a.vmem(f"buffer_load_dwordx2 v[{d}:{d+1}], v17, s[8:11], s48 offen offset:{32*b+16*s}", "xres")
        a("s_lshl_b32 s48, s47, 8")
        a(f"s_add_u32 s48, s48, {WS_G}")
        a("v_lshlrev_b32 v17, 3, v2")
        a.vmem(f"buffer_load_dword v25, v17, s[16:19], s48 offen {HF}", "xres")
    K.period1(14, extra={1: [xres]})
    K.period1(15)
    K.period1(16)
    stamp(a, 3)
    r = Rec(a)
    r.f(lambda: a.wait_vm("xres"))
    for s in range(2):
        for b in range(2):
            for w in range(2):
                src = X_RES + 4 * s + 2 * b + w
                d = G_ACC + 8 * s + 4 * b + 2 * w
                r(f"v_lshlrev_b32 v17, 16, v{src}")
                r(f"v_and_b32 v18, 0xffff0000, v{src}")
                r(f"v_add_f32 v{d}, v{d}, v17")
                r(f"v_add_f32 v{d+1}, v{d+1}, v18")
    for i in range(8): r(f"v_cvt_pk_bf16_f32 v{PK+i}, v{G_ACC+2*i}, v{G_ACC+2*i+1}")
    r("s_lshl_b32 s48, s44, 2", "s_add_u32 s48, s48, s21", "s_lshl_b32 s48, s48, 16", "s_lshl_b32 s49, s45, 12", "s_add_u32 s48, s48, s49",
      "s_lshl_b32 s49, s22, 10", "s_add_u32 s48, s48, s49", f"s_add_u32 s48, s48, {WS_X1}")
    r.f(lambda: a.vmem(f"buffer_store_dwordx4 v[{PK}:{PK+3}], v{V_LP}, s[16:19], s48 offen sc1", "x1st"))
    r.f(lambda: a.vmem(f"buffer_store_dwordx4 v[{PK+4}:{PK+7}], v{V_LP}, s[16:19], s48 offen offset:512 sc1", "x1st"))
    r("v_mov_b32 v20, 0"); r("v_mov_b32 v21, 0")
    for i in range(8):
        r(f"v_lshlrev_b32 v17, 16, v{PK+i}")
        r(f"v_and_b32 v18, 0xffff0000, v{PK+i}")
        r("v_add_f32 v20, v20, v17")
        r("v_fma_f32 v21, v17, v17, v21")
        r("v_add_f32 v20, v20, v18")
        r("v_fma_f32 v21, v18, v18, v21")
    r("v_mov_b32 v22, v20", "v_mov_b32 v23, v21", "s_nop 1", "v_permlane32_swap_b32 v20, v22", "v_permlane32_swap_b32 v21, v23", "s_nop 1",
      "v_add_f32 v20, v20, v22", "v_add_f32 v21, v21, v23")
    r("v_lshlrev_b32 v24, 3, v2")
    r("s_lshl_b32 s48, s46, 3", "s_lshl_b32 s49, s45, 1", "s_add_u32 s49, s49, s22", "s_lshl_b32 s49, s49, 14", "s_add_u32 s48, s48, s49", f"s_add_u32 s48, s48, {WS_P2}")
    r.f(lambda: a.vmem("buffer_store_dwordx2 v[20:21], v24, s[16:19], s48 offen sc1", "x1st"))
    parts = r.split(4)
    K.period2(17, extra={2 + i: parts[i] for i in range(4)}, bartags=[("st", 18), "x1st", ("st", 19)])
    flag_add(a, ["s_lshr_b32 s48, s44, 1", f"s_add_u32 s48, s48, {F_X1}", "s_lshl_b32 s48, s48, 8", f"s_add_u32 s48, s48, {WS_FLAG}"], "x1")
    r = Rec(a)
    r("s_mov_b32 s96, s68", "s_mov_b32 s97, s69", f"s_mov_b32 s98, {7*MB}", "s_mov_b32 s99, 0x00020000")
    r("s_mul_i32 s48, s2, 7", "s_add_u32 s48, s48, s20", "s_sub_u32 s48, s48, 1", "s_lshl_b32 s48, s48, 12", "s_cmp_eq_u32 s20, 0", "s_cselect_b32 s48, 0x7f000000, s48")
    r("v_lshlrev_b32 v26, 6, v1")
    r.f(lambda: a.vmem("buffer_load_dword v27, v26, s[96:99], s48 offen", "pf"))
    r2 = Rec(a)
    r2("s_mov_b32 s96, s70", "s_mov_b32 s97, s71", f"s_mov_b32 s98, {2*MB}", f"s_sub_u32 s49, s48, {5*MB}")
    r2.f(lambda: a.vmem("buffer_load_dword v27, v26, s[96:99], s49 offen", "pf"))
    r3 = Rec(a)
    r3("s_mov_b32 s96, s72", "s_mov_b32 s97, s73", f"s_mov_b32 s98, {7*MB}")
    r3.f(lambda: a.vmem("buffer_load_dword v27, v26, s[96:99], s48 offen", "pf"))
    K.period2(18, extra={0: r.ops, 4: r2.ops}, bartags=[])
    def poll0():
        lab = a.newlabel("np")
        a("s_and_b32 s38, s60, 7")
        a(f"s_add_u32 s38, s38, {F_X1}")
        a("s_lshl_b32 s38, s38, 8")
        a(f"s_add_u32 s38, s38, {WS_FLAG}")
        a("v_mov_b32 v30, 0")
        a("s_cmp_lg_u32 s20, 0")
        a(f"s_cbranch_scc1 {lab}")
        a("buffer_load_dword v31, v30, s[16:19], s38 offen sc1")
        a.label(lab)
    def chk0():
        lab = a.newlabel("nc")
        a("s_cmp_lg_u32 s20, 0")
        a(f"s_cbranch_scc1 {lab}")
        a("s_waitcnt vmcnt(0)")
        spin_wait(a, 31, 30, 38, 32, "x1")
        a.label(lab)
    K.period2(19, extra={3: [poll0]}, tail=[chk0], bartags=[])
    stamp(a, 4)
    a("s_mov_b32 s35, s47")
    a("s_mov_b32 s36, s42")
    a("s_mov_b32 s37, s43")
    p3_early()
    K.slot(62); K.slot(63)
    a("s_nop 1")
    K.slot(64)
    a("s_lshl_b32 s48, s20, 12")
    a(f"s_add_u32 s48, s48, {XCH}")
    a(f"v_add_u32 v22, s48, v{V_L16}")
    a("v_xor_b32 v23, 4096, v22")
    a("s_lshl_b32 s48, s20, 8")
    a("s_add_u32 s48, s48, 131072")
    a("v_lshl_add_u32 v20, v1, 2, s48")
    a("v_xor_b32 v21, 256, v20")
    a("s_cmp_eq_u32 s22, 0")
    a("s_cbranch_scc0 L_pa_x1")
    for i in range(4): a(f"ds_write_b128 v22, v[{A_O+16+4*i}:{A_O+19+4*i}] offset:{1024*i}")
    a(f"ds_write_b32 v20, v{A_L+4}")
    a("s_branch L_pa_x2")
    a.label("L_pa_x1")
    for i in range(4): a(f"ds_write_b128 v22, v[{A_O+4*i}:{A_O+3+4*i}] offset:{1024*i}")
    a(f"ds_write_b32 v20, v{A_L}")
    a("s_waitcnt lgkmcnt(0)")
    for i in range(16): a(f"v_mov_b32 v{A_O+i}, v{A_O+16+i}")
    a(f"v_mov_b32 v{A_L}, v{A_L+4}")
    for i in range(8): a(f"v_mov_b32 v{A_Q+i}, v{A_Q+8+i}")
    a.label("L_pa_x2")
    a("s_waitcnt lgkmcnt(0)")
    a("s_barrier")
    for i in range(4): a(f"ds_read_b128 v[{A_O+16+4*i}:{A_O+19+4*i}], v23 offset:{1024*i}")
    a(f"ds_read_b32 v{A_L+4}, v21")
    a("s_waitcnt lgkmcnt(0)")
    for i in range(16): a(f"v_add_f32 v{A_O+i}, v{A_O+i}, v{A_O+16+i}")
    a(f"v_add_f32 v{A_L}, v{A_L}, v{A_L+4}")
    a(f"v_max3_f32 v18, abs(v{A_O}), abs(v{A_O+1}), abs(v{A_O+2})")
    for i in range(3, 15, 2): a(f"v_max3_f32 v18, v18, abs(v{A_O+i}), abs(v{A_O+i+1})")
    a(f"v_max3_f32 v18, v18, abs(v{A_O+15}), abs(v{A_O+15})")
    a(f"v_mov_b32 v19, {f2u(2.0**60)}")
    a(f"v_cmp_nlt_f32 vcc, v{A_L}, v19")
    a(f"v_mov_b32 v19, {f2u(2.0**120)}")
    a(f"v_cmp_nlt_f32 s[50:51], v18, v19")
    a(f"v_mov_b32 v19, {f2u(2.0**-60)}")
    a(f"v_cmp_ngt_f32 s[52:53], v{A_L}, v19")
    a("s_nop 1")
    a("s_or_b64 vcc, vcc, s[50:51]")
    a("s_or_b64 vcc, vcc, s[52:53]")
    if os.environ.get("FORCE_FB"): a("s_mov_b64 vcc, -1")
    a("s_cbranch_vccnz L_pa_fallback")
    a.label("L_pa_fin")
    a(f"v_rcp_f32 v18, v{A_L}")
    a("s_nop 0")
    a("v_mul_f32 v18, v18, v25")
    for i in range(16): a(f"v_mul_f32 v{A_O+i}, v{A_O+i}, v18")
    for i in range(8): a(f"v_cvt_pk_bf16_f32 v{X_RES+i}, v{A_O+2*i}, v{A_O+2*i+1}")
    a("s_lshl_b32 s48, s35, 16")
    a("s_lshr_b32 s49, s36, 1")
    a("s_lshl_b32 s49, s49, 12")
    a("s_add_u32 s48, s48, s49")
    a("s_and_b32 s49, s36, 1")
    a("s_lshl_b32 s49, s49, 10")
    a("s_add_u32 s48, s48, s49")
    a(f"s_add_u32 s48, s48, {WS_O}")
    a.vmem(f"buffer_store_dwordx4 v[{X_RES}:{X_RES+3}], v{V_LP}, s[16:19], s48 offen sc1", "ost")
    a.vmem(f"buffer_store_dwordx4 v[{X_RES+4}:{X_RES+7}], v{V_LP}, s[16:19], s48 offen offset:512 sc1", "ost")

def phaseA_fallback(a):
    a.label("L_pa_fallback")
    a("s_lshl_b32 s52, s36, 18")
    a(f"s_add_u32 s52, s52, {WS_KV}")
    a("s_mov_b32 s53, s52")
    a("s_mov_b32 s54, 64")
    a("v_mov_b32 v18, 0xff800000")
    S = A_S
    L16 = V_L16
    a.label("L_pa_fb1")
    a(f"buffer_load_dwordx4 v[{A_K}:{A_K+3}], v{L16}, s[16:19], s53 offen sc1")
    a(f"buffer_load_dwordx4 v[{A_K+4}:{A_K+7}], v{L16}, s[16:19], s53 offen offset:1024 sc1")
    a("s_waitcnt vmcnt(0)")
    a(f"v_mfma_f32_32x32x16_bf16 v[{S}:{S+15}], v[{A_K}:{A_K+3}], v[{A_Q}:{A_Q+3}], 0")
    a(f"v_mfma_f32_32x32x16_bf16 v[{S}:{S+15}], v[{A_K+4}:{A_K+7}], v[{A_Q+4}:{A_Q+7}], v[{S}:{S+15}]")
    a("s_nop 7"); a("s_nop 7")
    for i in range(0, 16, 2): a(f"v_max3_f32 v18, v18, v{S+i}, v{S+i+1}")
    a("s_add_u32 s53, s53, 4096")
    a("s_sub_u32 s54, s54, 1")
    a("s_cmp_lg_u32 s54, 0")
    a("s_cbranch_scc1 L_pa_fb1")
    a("v_mov_b32 v19, v18")
    a("s_nop 1")
    a("v_permlane32_swap_b32 v18, v19")
    a("s_nop 1")
    a("v_max_f32 v18, v18, v19")
    for i in range(16): a(f"v_sub_f32 v{A_NEG+i}, 0, v18")
    for i in range(16): a(f"v_mov_b32 v{A_O+i}, 0")
    for i in range(4): a(f"v_mov_b32 v{A_L+i}, 0")
    a("s_mov_b32 s53, s52")
    a("s_mov_b32 s54, 64")
    a.label("L_pa_fb2")
    for i in range(2):
        a(f"buffer_load_dwordx4 v[{A_K+4*i}:{A_K+4*i+3}], v{L16}, s[16:19], s53 offen offset:{1024*i} sc1")
        a(f"buffer_load_dwordx4 v[{A_V+4*i}:{A_V+4*i+3}], v{L16}, s[16:19], s53 offen offset:{2048+1024*i} sc1")
    a("s_waitcnt vmcnt(0)")
    a(f"v_mfma_f32_32x32x16_bf16 v[{S}:{S+15}], v[{A_K}:{A_K+3}], v[{A_Q}:{A_Q+3}], v[{A_NEG}:{A_NEG+15}]")
    a(f"v_mfma_f32_32x32x16_bf16 v[{S}:{S+15}], v[{A_K+4}:{A_K+7}], v[{A_Q+4}:{A_Q+7}], v[{S}:{S+15}]")
    a("s_nop 7"); a("s_nop 7")
    for i in range(16): a(f"v_exp_f32 v{S+i}, v{S+i}")
    a("s_nop 0")
    for i in range(8): a(f"v_cvt_pk_bf16_f32 v{A_P+i}, v{S+2*i}, v{S+2*i+1}")
    a("s_nop 1")
    for h in range(2):
        a(f"v_mfma_f32_32x32x16_bf16 v[{A_O}:{A_O+15}], v[{A_V+4*h}:{A_V+4*h+3}], v[{A_P+4*h}:{A_P+4*h+3}], v[{A_O}:{A_O+15}]")
        a(f"v_mfma_f32_16x16x32_bf16 v[{A_L}:{A_L+3}], v[{A_SEL}:{A_SEL+3}], v[{A_P+4*h}:{A_P+4*h+3}], v[{A_L}:{A_L+3}]")
    a("s_add_u32 s53, s53, 4096")
    a("s_sub_u32 s54, s54, 1")
    a("s_cmp_lg_u32 s54, 0")
    a("s_cbranch_scc1 L_pa_fb2")
    a("s_nop 7"); a("s_nop 7")
    a("s_branch L_pa_fin")
```

```python
from gen2 import *
import gen2
from k1gen import Rec
from k34gen import CoreK, SK, K_XD, K_WD, K_XR, K_WR, K_XF, K_WF, K_ACC
HF = os.environ.get('HF', 'sc1 ')
D_H3 = 32
SPIN_MAX = 1 << 22
OUTF = os.environ.get('OUTF', 'nt')
NA4, NB4 = [int(x) for x in os.environ.get("NAB", "34,38").split(",")]
EXTRA = NA4 % 4
assert NB4 % 4 == EXTRA and EXTRA in (0, 2) and NA4 + NB4 == 72

def spin_wait(a, vdst, vzero, soff_sgpr, target, tag, issued=True):
    lab = a.newlabel("sp" + tag); ok = a.newlabel("spok" + tag)
    a("s_mov_b32 s91, 0")
    a.label(lab)
    a(f"v_readfirstlane_b32 s90, v{vdst}")
    a(f"s_cmp_ge_u32 s90, {target}")
    a(f"s_cbranch_scc1 {ok}")
    a("s_add_u32 s91, s91, 1")
    a(f"s_cmp_ge_u32 s91, {SPIN_MAX}")
    a(f"s_cbranch_scc1 {ok}")
    a("s_sleep 4")
    a(f"buffer_load_dword v{vdst}, v{vzero}, s[16:19], s{soff_sgpr} offen sc1")
    a("s_waitcnt vmcnt(0)")
    a(f"s_branch {lab}")
    a.label(ok)

class CoreK2(CoreK):
    def __init__(self, a): self.a = a; self.xf = ""
    def mfmas(self, s):
        a = self.a; buf = s % 2
        o = []
        for c in range(4):
            for tt in range(4):
                def f(c=c, tt=tt):
                    a.wait_lgkm(("x", s, tt), ("w", s, c))
                    A = K_WF + 16 * buf + 4 * c; B = K_XF + 16 * buf + 4 * tt; d = K_ACC + 4 * (4 * c + tt)
                    cc = "0" if s == 0 else f"v[{d}:{d+3}]"
                    a(f"v_mfma_f32_16x16x32_bf16 v[{d}:{d+3}], v[{A}:{A+3}], v[{B}:{B+3}], {cc}")
                o.append(f)
        return o
    def dma(self, stage):
        a = self.a; t = ("st", stage); sl = (stage % 4) * SK
        return [
            lambda: a(f"s_add_u32 m0, s29, {sl}"),
            lambda: a.vmem(f"buffer_load_dwordx4 v{K_XD}, s[16:19], s24 offen {HF}lds", t),
            lambda: a.vmem(f"buffer_load_dwordx4 v{K_XD}, s[16:19], s24 offen offset:1024 {HF}lds", t),
            lambda: a(f"s_add_u32 m0, s29, {sl + 16384}"),
            lambda: a.vmem(f"buffer_load_dwordx4 v{K_WD}, s[12:15], s25 offen lds", t),
            lambda: a.vmem(f"buffer_load_dwordx4 v{K_WD+1}, s[12:15], s25 offen offset:1024 lds", t),
            lambda: a("s_add_u32 s24, s24, 4096"),
            lambda: a(f"s_add_u32 s25, s25, {64*2048}"),
        ]

def p4_early(a):
    R = Rec(a)
    R("s_and_b32 s43, s40, 1")
    R("s_lshr_b32 s42, s40, 1")
    R("s_lshl_b32 s42, s42, 2")
    R("s_and_b32 s44, s41, 3")
    R("s_add_u32 s42, s42, s44")
    R("s_lshr_b32 s44, s41, 2")
    R("s_lshl_b32 s47, s42, 3")
    R("s_add_u32 s47, s47, s44")
    R("v_lshlrev_b32 v224, 4, v1")
    R("s_lshl_b32 s55, s42, 2")
    R("s_lshr_b32 s56, s20, 1")
    R("s_add_u32 s55, s55, s56")
    R("s_lshl_b32 s57, s22, 11")
    R("s_mul_i32 s56, s55, 229376")
    R("s_add_u32 s56, s56, s57")
    R(f"s_add_u32 s56, s56, {WS_H3}")
    R("v_add_u32 v7, s56, v224")
    R("s_lshl_b32 s56, s55, 16")
    R("s_add_u32 s56, s56, s57")
    R(f"s_add_u32 s56, s56, {WS_O}")
    R(f"v_add_u32 v{K_XD}, s56, v224")
    R("v_lshlrev_b32 v225, 1, v3")
    R("v_xor_b32 v225, v2, v225")
    R("v_xor_b32 v226, 8, v225")
    R("s_lshl_b32 s55, s20, 3")
    R("v_add_u32 v227, s55, v3")
    R("v_lshlrev_b32 v227, 11, v227")
    PAIR = int(os.environ.get("PAIR", "-1"))
    if PAIR >= 0:
        R(f"s_add_u32 s56, s44, {PAIR}", "s_and_b32 s56, s56, 7", "s_add_u32 s56, s56, 8")
        R("s_mov_b32 s55, s44")
    else:
        R("s_lshl_b32 s55, s44, 1", "s_add_u32 s56, s55, 1")
    R("s_cmp_eq_u32 s22, 0", "s_cselect_b32 s45, s55, s56")
    R("s_lshl_b32 s55, s55, 7", "s_lshl_b32 s56, s56, 7")
    R("v_and_b32 v228, 7, v225")
    R("v_lshl_add_u32 v227, v228, 4, v227")
    R("v_mov_b32 v228, s55")
    R("v_mov_b32 v229, s56")
    R("v_cmp_gt_u32 vcc, 8, v225", "s_nop 1", "v_cndmask_b32 v230, v229, v228, vcc", "v_cndmask_b32 v231, v228, v229, vcc")
    R(f"v_add_u32 v{K_WD}, v227, v230")
    R("v_add_u32 v231, v227, v231")
    R(f"v_add_u32 v{K_WD+1}, {4*2048-1024}, v231")
    R("s_lshl_b32 s29, s20, 11")
    R(f"s_mul_i32 s24, s43, {8*4096}")
    R(f"s_mul_i32 s25, s43, {8*64*2048}")
    R("s_mov_b32 s12, s70", "s_mov_b32 s13, s71", f"s_mov_b32 s14, {2*MB}", "s_mov_b32 s15, 0x00020000")
    return R.ops

def p4_setup(a0):
    a = Rec(a0)
    a("s_lshr_b32 s23, s20, 2")
    a("s_bfe_u32 s21, s20, 0x10001")
    a("v_lshlrev_b32 v20, 4, v1")
    a("s_lshl_b32 s49, s21, 13")
    a("s_lshl_b32 s57, s23, 10")
    a("s_add_u32 s49, s49, s57")
    a(f"v_add_u32 v{K_XR}, s49, v20")
    a(f"v_add_u32 v{K_XR+1}, {2*SK}, v{K_XR}")
    a("v_bfe_u32 v22, v1, 2, 2")
    a("v_lshl_add_u32 v22, v3, 2, v22")
    a("v_and_b32 v23, 7, v22")
    a("s_lshl_b32 s49, s22, 2")
    a("v_xor_b32 v23, s49, v23")
    a("v_lshlrev_b32 v22, 8, v22")
    a("v_lshl_add_u32 v22, v23, 5, v22")
    a("v_and_b32 v23, 3, v1")
    a("v_lshl_add_u32 v22, v23, 3, v22")
    a("s_lshl_b32 s49, s23, 13")
    a("s_add_u32 s49, s49, 16384")
    a(f"v_add_u32 v{K_WR}, s49, v22")
    for c in range(1, 4): a(f"v_xor_b32 v{K_WR+c}, {c<<5}, v{K_WR}")
    for c in range(4): a(f"v_add_u32 v{K_WR+4+c}, {2*SK}, v{K_WR+c}")
    a("s_cmp_eq_u32 s43, 0", f"s_cselect_b32 s28, {(NB4-EXTRA)//4-2}, {(NA4-EXTRA)//4-2}")
    a("s_lshl_b32 s49, s42, 7")
    a("s_lshl_b32 s57, s21, 6")
    a("s_add_u32 s46, s49, s57")
    a("s_lshl_b32 s50, s42, 2")
    a("s_lshl_b32 s51, s21, 1")
    a("s_add_u32 s50, s50, s51")
    a("s_lshl_b32 s50, s50, 16")
    a("s_lshl_b32 s51, s45, 12")
    a("s_add_u32 s50, s50, s51")
    a("s_lshl_b32 s51, s23, 10")
    a("s_add_u32 s50, s50, s51")
    a(f"s_add_u32 s36, s50, {WS_X1}")
    a("s_add_u32 s37, s36, 65536")
    a("s_lshr_b32 s38, s42, 1")
    a("s_lshl_b32 s38, s38, 8")
    a(f"s_add_u32 s38, s38, {WS_FLAG}")
    return a.ops

def p3_early_emit(a, remap=None):
    a("s_and_b32 s42, s60, 7")
    a("s_mov_b32 s39, s42")
    a("s_lshr_b32 s43, s40, 1")
    a("s_mul_i32 s43, s43, 7")
    a("s_lshr_b32 s44, s60, 3")
    a("s_add_u32 s44, s44, s43")
    a("s_movk_i32 s23, 7168")
    a("s_lshl_b32 s45, s44, 8")
    a("s_lshl_b32 s46, s42, 3")
    if remap:
        a(f"v_and_b32 v{remap[2]}, 15, v1")
        a(f"v_lshrrev_b32 v{remap[3]}, 4, v1")
    sym_setup16(a, "frag", 23, 45, 46, 1024, remap=remap)
    a(f"s_add_u32 s8, s62, {WS_X1}")
    a("s_addc_u32 s9, s63, 0")
    a(f"s_mov_b32 s10, {4*MB}")
    a("s_mov_b32 s11, 0x00020000")
    srd(a, 12, 68, 7 * MB)
    a(f"s_mov_b32 s{S_SLOT}, 0")
    Core16(a, "frag", role="S", xflag=HF).prologue_dma()

def phase3(a, C4, merged=False):
    from k2n import flag_add, F_O, F_CS
    a("v_and_b32 v2, 15, v1")
    a("v_lshrrev_b32 v3, 4, v1")
    a("s_lshr_b32 s21, s20, 1")
    a(f"s_mov_b32 s49, s{S_SLOT}")
    read_addr_setup16(a, "frag")
    a(f"s_mov_b32 s{S_SLOT}, s49")
    def addr_ops():
        r = Rec(a)
        r("s_lshl_b32 s48, s21, 1")
        r("s_add_u32 s48, s48, s46")
        r("s_mul_i32 s48, s48, 229376")
        r("s_lshl_b32 s49, s44, 1")
        r("s_add_u32 s49, s49, s22")
        r("s_lshl_b32 s49, s49, 12")
        r("s_add_u32 s48, s48, s49")
        r(f"s_add_u32 s48, s48, {WS_H3}")
        r("v_lshlrev_b32 v28, 4, v1")
        r("v_add_u32 v29, 2048, v28")
        r("v_add_u32 v30, 229376, v28")
        r("v_add_u32 v31, 229376, v29")
        r("s_lshl_b32 s51, s42, 8", "s_lshl_b32 s52, s21, 6", "s_add_u32 s51, s51, s52", "s_lshl_b32 s51, s51, 3", f"s_add_u32 s53, s51, {WS_ST1}", f"s_add_u32 s51, s51, {WS_G + 4}")
        r("v_lshlrev_b32 v19, 3, v2")
        for tt in range(4):
            r.f(lambda tt=tt: a.vmem(f"buffer_load_dword v{220+tt}, v19, s[16:19], s51 offen offset:{128*tt} sc1", "aux"))
        r("s_lshl_b32 s54, s44, 9", "s_lshl_b32 s52, s22, 8", "s_add_u32 s54, s54, s52", f"s_add_u32 s54, s54, {WS_CSF}")
        r("v_lshlrev_b32 v18, 4, v3")
        return r.ops
    def late_loads():
        r = Rec(a)
        for tt in range(4):
            r.f(lambda tt=tt: a.vmem(f"buffer_load_dwordx2 v[{208+2*tt}:{209+2*tt}], v19, s[16:19], s53 offen offset:{128*tt} sc1", "late"))
        for c in range(4):
            r.f(lambda c=c: a.vmem(f"buffer_load_dwordx4 v[{192+4*c}:{195+4*c}], v18, s[16:19], s54 offen offset:{64*c} sc1", "late"))
        return r.ops
    core = Core16(a, "frag", tag="k3", role="S", xflag=HF)
    def sigs():
        flag_add(a, [f"s_add_u32 s48, s37, {F_O}", "s_lshl_b32 s48, s48, 8", f"s_add_u32 s48, s48, {WS_FLAG}"], "o")
    def polls():
        lab = a.newlabel("np3")
        a("s_lshr_b32 s38, s40, 1")
        a("s_lshl_b32 s38, s38, 1")
        a("s_bfe_u32 s50, s41, 0x10001")
        a("s_add_u32 s38, s38, s50")
        a(f"s_add_u32 s38, s38, {F_O}")
        a("s_lshl_b32 s38, s38, 8")
        a(f"s_add_u32 s38, s38, {WS_FLAG}")
        a(f"s_mov_b32 s34, {WS_FLAG + F_CS*256}")
        a("v_mov_b32 v24, 0")
        a("s_cmp_lg_u32 s20, 0")
        a(f"s_cbranch_scc1 {lab}")
        a("buffer_load_dword v25, v24, s[16:19], s38 offen sc1")
        a("buffer_load_dword v26, v24, s[16:19], s34 offen" + ("" if os.environ.get("PLAIN2", "1") == "1" else " sc1"))
        a.label(lab)
    def chks():
        lab = a.newlabel("nc3")
        a("s_cmp_lg_u32 s20, 0")
        a(f"s_cbranch_scc1 {lab}")
        a("s_waitcnt vmcnt(6)")
        spin_wait(a, 25, 24, 38, 32, "o")
        spin_wait(a, 26, 24, 34, 32, "cs")
        a.label(lab)
    hk = dict(prebar3=["ost"], after3=sigs, spread12=addr_ops, end12=polls, end13=chks,
              spreadN2=late_loads, spreadN1=lambda: p4_early(a))
    def final_hook():
        a.wait_all(vm=False)
        a("s_barrier")
        ops = []
        for st in range(3): ops += C4.dma(st)
        return ops + p4_setup(a)
    hk["final"] = final_hook
    if os.environ.get("ST3"):
        stamp(a, 1)
        hk.update(start=lambda: stamp(a, 2), after3=lambda: (sigs(), stamp(a, 3)), pre_tail=lambda: stamp(a, 4))
    core.mainloop(hooks=hk, npeel=4, ntail=2)
    a.wait_vm("late")
    stamp(a, 1 if os.environ.get("ST4") else 5)
    ln_gelu_epilogue(a, 48, 3584, [28, 29, 30, 31], None, [(208 + 2 * t, 209 + 2 * t) for t in range(4)], "regs", scale=[220, 221, 222, 223], tag="h3st")

def service(a):
    from k2n import flag_add, F_X1, F_CS
    a("s_lshr_b32 s50, s40, 1")
    a("s_lshl_b32 s50, s50, 3")
    a("s_add_u32 s50, s50, s60")
    a("s_sub_u32 s50, s50, 56")
    a("s_mov_b32 s96, s68"); a("s_mov_b32 s97, s69"); a(f"s_mov_b32 s98, {7*MB}"); a("s_mov_b32 s99, 0x00020000")
    a("v_mul_u32_u24 v16, 147, v1")
    a("v_lshrrev_b32 v16, 11, v16")
    a("v_mul_u32_u24 v17, 14, v16")
    a("v_sub_u32 v17, v1, v17")
    a("v_mul_u32_u24 v18, 7168, v16")
    a("v_lshl_add_u32 v18, v17, 4, v18")
    a("v_cmp_le_u32 vcc, 56, v1")
    a("v_mov_b32 v19, 0x7fffffff")
    a("s_mul_i32 s51, s20, {}".format(128 * 7168))
    a("v_cndmask_b32 v18, v18, v19, vcc")
    a("s_mul_i32 s52, s50, 224")
    a("s_add_u32 s51, s51, s52")
    a("v_mov_b32 v28, 0x00003f80")
    a("v_mov_b32 v29, 0x3f800000")
    for i in range(8): a(f"v_mov_b32 v{32+i}, 0")
    for i in range(32):
        a(f"buffer_load_dwordx4 v[{64+4*i}:{67+4*i}], v18, s[96:99], s51 offen")
        a(f"s_add_u32 s51, s51, {4*7168}")
    for i in range(32):
        if i % 4 == 0: a(f"s_waitcnt vmcnt({28-i})")
        for q in range(4):
            a(f"v_dot2_f32_bf16 v{32+2*q}, v{64+4*i+q}, v28, v{32+2*q}")
            a(f"v_dot2_f32_bf16 v{33+2*q}, v{64+4*i+q}, v29, v{33+2*q}")
    a("v_mul_u32_u24 v19, 448, v16")
    a("v_lshl_add_u32 v19, v17, 5, v19")
    a("s_mul_i32 s51, s20, 1792")
    a("v_add_u32 v19, s51, v19")
    a("v_lshlrev_b32 v20, 5, v1")
    a("v_add_u32 v20, 32768, v20")
    a("v_cndmask_b32 v19, v19, v20, vcc")
    a("ds_write_b128 v19, v[32:35]")
    a("ds_write_b128 v19, v[36:39] offset:16")
    a("s_lshr_b32 s38, s50, 2")
    a(f"s_add_u32 s38, s38, {F_X1}")
    a("s_lshl_b32 s38, s38, 8")
    a(f"s_add_u32 s38, s38, {WS_FLAG}")
    a("s_cmp_lg_u32 s20, 0")
    a("s_cbranch_scc1 L_sv_w")
    a("v_mov_b32 v24, 0")
    a("v_mov_b32 v25, 0")
    a("s_nop 0")
    spin_wait(a, 25, 24, 38, 32, "svx")
    a.label("L_sv_w")
    a("s_waitcnt lgkmcnt(0)")
    a("s_barrier")
    a("s_lshl_b32 s51, s50, 9")
    a("s_lshl_b32 s52, s20, 16")
    a("s_add_u32 s51, s51, s52")
    a(f"s_add_u32 s51, s51, {WS_P2}")
    a("v_lshlrev_b32 v21, 3, v1")
    for q in range(4):
        a(f"buffer_load_dwordx2 v[{40+2*q}:{41+2*q}], v21, s[16:19], s51 offen sc1")
        a("s_add_u32 s51, s51, 16384")
    a("v_and_b32 v22, 127, v0")
    a("v_lshlrev_b32 v22, 2, v22")
    for q in range(32): a(f"ds_read_b32 v{64+q}, v22 offset:{448*q}")
    a("s_waitcnt lgkmcnt(0)")
    for w in (16, 8, 4, 2, 1):
        for q in range(w): a(f"v_add_f32 v{64+q}, v{64+q}, v{64+w+q}")
    a("v_mov_b32 v23, 112")
    a("v_cmp_lt_u32 vcc, v0, v23")
    a("v_mov_b32 v23, 0x7fffffff")
    a("s_mul_i32 s51, s50, 448")
    a(f"s_add_u32 s51, s51, {WS_CSF}")
    a("v_cndmask_b32 v22, v23, v22, vcc")
    a("s_waitcnt vmcnt(0)")
    a("buffer_store_dword v64, v22, s[16:19], s51 offen sc1")
    for q in range(1, 4):
        a(f"v_add_f32 v40, v40, v{40+2*q}")
        a(f"v_add_f32 v41, v41, v{41+2*q}")
    a("s_lshl_b32 s51, s20, 9")
    a("s_add_u32 s51, s51, 65536")
    a("v_add_u32 v23, s51, v21")
    a("ds_write_b64 v23, v[40:41]")
    a("s_waitcnt lgkmcnt(0)")
    a("s_barrier")
    a("v_add_u32 v23, 65536, v21")
    for q in range(8): a(f"ds_read_b64 v[{64+2*q}:{65+2*q}], v23 offset:{512*q}")
    a("s_waitcnt lgkmcnt(0)")
    for q in range(1, 8):
        a(f"v_add_f32 v64, v64, v{64+2*q}")
        a(f"v_add_f32 v65, v65, v{65+2*q}")
    a(f"v_mul_f32 v64, {f2u(1/1024)}, v64")
    a(f"v_mul_f32 v65, {f2u(1/1024)}, v65")
    a("v_fma_f32 v65, -v64, v64, v65")
    a("v_max_f32 v65, 0, v65")
    a(f"v_add_f32 v65, {f2u(1e-5)}, v65")
    a("v_rsq_f32 v65, v65")
    a("s_lshl_b32 s51, s50, 9")
    a(f"s_add_u32 s51, s51, {WS_ST1}")
    a("s_cmp_lg_u32 s20, 0")
    a("s_cbranch_scc1 L_sv_ns")
    a("buffer_store_dwordx2 v[64:65], v21, s[16:19], s51 offen sc1")
    a.label("L_sv_ns")
    a("s_waitcnt vmcnt(0)")
    a("s_barrier")
    flag_add(a, [f"s_mov_b32 s48, {WS_FLAG + F_CS*256}"], "cs")
    a("s_lshl_b32 s51, s50, 3")
    a("s_add_u32 s51, s51, s20")
    a("v_lshlrev_b32 v26, 6, v1")
    a("s_mov_b32 s96, s72"); a("s_mov_b32 s97, s73"); a(f"s_mov_b32 s98, {7*MB}")
    a("s_lshl_b32 s52, s51, 12")
    for i in (0, 3, 1, 4, 2, 5, 6):
        a(f"s_add_u32 s53, s52, {i*MB}")
        a("buffer_load_dword v27, v26, s[96:99], s53 offen")

def phase4(a, C, had3, st=(4, 5, 6)):
    a("v_mov_b32 v18, 0")
    a.wait_all()
    a("s_barrier")
    if st[0] is not None: stamp(a, st[0])
    def signal():
        lab = a.newlabel("nosig3")
        a("s_cmp_ge_u32 s60, 56")
        a(f"s_cbranch_scc1 {lab}")
        a("s_cmp_lg_u32 s20, 0")
        a(f"s_cbranch_scc1 {lab}")
        a("s_lshl_b32 s48, s39, 8")
        a(f"s_add_u32 s48, s48, {WS_FLAG}")
        a("v_mov_b32 v19, 1")
        a("s_mov_b64 exec, 1")
        a("buffer_atomic_add v19, v18, s[16:19], s48 offen")
        a("s_mov_b64 exec, -1")
        a.label(lab)
    signal()
    C.period(0, dma=True)
    C.period(1, dma=True)
    C.period(2, dma=True)
    def poll0():
        lab = a.newlabel("nopoll")
        a("s_cmp_lg_u32 s20, 0")
        a(f"s_cbranch_scc1 {lab}")
        a("buffer_load_dword v19, v18, s[16:19], s38 offen sc1")
        a.label(lab)
    def chk0():
        lab = a.newlabel("nochk")
        a("s_cmp_lg_u32 s20, 0")
        a(f"s_cbranch_scc1 {lab}")
        a("s_waitcnt vmcnt(4)")
        spin_wait(a, 19, 18, 38, 28, "h3")
        a.label(lab)
    C.period(3, dma=True, extra={16: [poll0]})
    C.period(4, dma=True, extra={16: [chk0]})
    a(f"v_mov_b32 v{K_XD}, v7")
    a("s_mov_b32 s12, s72")
    a("s_mov_b32 s13, s73")
    a(f"s_mov_b32 s14, {7*MB}")
    a("s_cmp_eq_u32 s43, 0")
    a(f"s_cselect_b32 s24, {(NA4-8)*4096}, 0")
    a(f"s_cselect_b32 s25, {(NA4-8)*64*2048}, 0")
    if st[1] is not None: stamp(a, st[1])
    a.vm = [("st", 6)] * 4 + [("st", 7)] * 4
    vm_top = list(a.vm)
    a.lines.append(".p2align 6")
    a.label("L_p4_loop")
    lt = [lambda: a("s_sub_u32 s28, s28, 1"), lambda: a("s_cmp_lg_u32 s28, 0")]
    for s in range(5, 9): C.period(s, dma=True, extra=({15: lt} if s == 8 else None))
    assert [(t[0], t[1] - 4) for t in a.vm] == vm_top, (a.vm, vm_top)
    a("s_cbranch_scc1 L_p4_loop")
    a.vm = [("st", 38)] * 4 + [("st", 39)] * 4
    a("s_lshl_b32 s56, s47, 15")
    a("s_lshl_b32 s49, s20, 12")
    a("s_add_u32 s56, s56, s49")
    a(f"s_add_u32 s56, s56, {WS_PART}")
    a("s_mov_b32 s52, 0")
    a("s_lshl_b32 s53, s47, 8")
    a(f"s_add_u32 s53, s53, {WS_FLAG + 128*256}")
    a("s_mov_b32 s55, 0")
    def poll_issue():
        a.vmem("buffer_load_dword v19, v18, s[16:19], s53 offen sc1", "poll")
    def early():
        a("s_cmp_eq_u32 s43, 0")
        a("s_cbranch_scc0 L_p4_noearly")
        for tt in range(4):
            a(f"buffer_load_dwordx4 v[{176+4*tt}:{179+4*tt}], v20, s[16:19], s{36 + (tt>>1)} offen offset:{2048*(tt&1)} {HF}")
        a("s_lshl_b32 s48, s46, 3")
        a(f"s_add_u32 s48, s48, {WS_G + 4}")
        a("v_lshlrev_b32 v21, 3, v2")
        for tt in range(4):
            a(f"buffer_load_dword v{24+tt}, v21, s[16:19], s48 offen offset:{128*tt} sc1")
        a("v_readfirstlane_b32 s54, v19")
        a("s_lshr_b32 s54, s54, s52")
        a("s_and_b32 s55, s54, 1")
        a("s_cbranch_scc0 L_p4_noearly")
        for i in range(4):
            a(f"buffer_load_dwordx4 v[{160+4*i}:{163+4*i}], v20, s[16:19], s56 offen offset:{1024*i} sc1")
        a.label("L_p4_noearly")
    for e in range(EXTRA): C.period(37 + e, dma=True)
    T = 37 + EXTRA
    C.period(T, dma=False, extra={8: [poll_issue]})
    C.period(T + 1, dma=False, extra={16: [lambda: a.wait_vm("poll")]})
    C.period(T + 2, dma=False, last=True, extra={0: [early]})
    for f in C.mfmas(T + 2): f()
    if st[2] is not None: stamp(a, st[2])
    a("s_barrier")
    a("s_nop 3")
    a("s_lshl_b32 s48, s20, 13")
    a("v_add_u32 v21, s48, v20")
    a("s_xor_b32 s48, s20, 4")
    a("s_lshl_b32 s48, s48, 13")
    a("v_add_u32 v22, s48, v20")
    a("s_cmp_eq_u32 s23, 0")
    a("s_cbranch_scc0 L_p4_x1")
    for i in range(8): a(f"ds_write_b128 v21, v[{K_ACC+32+4*i}:{K_ACC+35+4*i}] offset:{1024*i}")
    a("s_branch L_p4_x2")
    a.label("L_p4_x1")
    for i in range(8): a(f"ds_write_b128 v21, v[{K_ACC+4*i}:{K_ACC+3+4*i}] offset:{1024*i}")
    a("s_waitcnt lgkmcnt(0)")
    for i in range(32): a(f"v_mov_b32 v{K_ACC+i}, v{K_ACC+32+i}")
    a.label("L_p4_x2")
    a("s_waitcnt lgkmcnt(0)")
    a("s_barrier")
    for i in range(8): a(f"ds_read_b128 v[{K_ACC+32+4*i}:{K_ACC+35+4*i}], v22 offset:{1024*i}")
    a("s_cmp_eq_u32 s43, 0")
    a("s_cbranch_scc1 L_p4_main_ep")
    a("s_waitcnt lgkmcnt(0)")
    for tt in range(4):
        t = 32 + 4 * tt
        d0, d1 = K_ACC + 4 * tt, K_ACC + 4 * (4 + tt)
        for d in (d0, d1):
            for i in range(4): a(f"v_add_f32 v{d+i}, v{d+i}, v{d+32+i}")
        a(f"v_cvt_pk_bf16_f32 v{t}, v{d0}, v{d0+1}")
        a(f"v_cvt_pk_bf16_f32 v{t+1}, v{d0+2}, v{d0+3}")
        a(f"v_cvt_pk_bf16_f32 v{t+2}, v{d1}, v{d1+1}")
        a(f"v_cvt_pk_bf16_f32 v{t+3}, v{d1+2}, v{d1+3}")
        a(f"buffer_store_dwordx4 v[{t}:{t+3}], v20, s[16:19], s56 offen offset:{1024*tt} sc1")
    if os.environ.get("ST4"): stamp(a, 5)
    a("s_waitcnt vmcnt(0)")
    a("s_barrier")
    if os.environ.get("ST4"): stamp(a, 6)
    a("s_cmp_lg_u32 s20, 0")
    a("s_cbranch_scc1 L_p4_fin")
    a("s_lshl_b32 s48, 1, s52")
    a("v_mov_b32 v19, s48")
    a("s_mov_b64 exec, 1")
    a("buffer_atomic_or v19, v18, s[16:19], s53 offen")
    a("s_branch L_p4_fin")
    a.label("L_p4_main_ep")
    a("s_cmp_eq_u32 s55, 1")
    a("s_cbranch_scc1 L_p4_have")
    a("buffer_load_dword v19, v18, s[16:19], s53 offen sc1")
    a("s_waitcnt vmcnt(1) lgkmcnt(0)")
    a.label("L_p4_have")
    a("s_waitcnt vmcnt(4) lgkmcnt(0)")
    for i in range(32): a(f"v_add_f32 v{K_ACC+i}, v{K_ACC+i}, v{K_ACC+32+i}")
    for tt in range(4):
        for cl in range(2):
            for w in range(2):
                src = 176 + 4 * tt + 2 * cl + w
                d = K_ACC + 4 * (4 * cl + tt) + 2 * w
                a(f"v_lshlrev_b32 v48, 16, v{src}")
                a(f"v_and_b32 v49, 0xffff0000, v{src}")
                a(f"v_fma_f32 v{d}, v48, v{24+tt}, v{d}")
                a(f"v_fma_f32 v{d+1}, v49, v{24+tt}, v{d+1}")
    a("s_cmp_eq_u32 s55, 1")
    a("s_cbranch_scc1 L_p4_have3")
    a("s_mov_b32 s91, 0")
    a.label("L_p4_poll")
    a("s_waitcnt vmcnt(0)")
    a("v_readfirstlane_b32 s54, v19")
    a("s_lshr_b32 s54, s54, s52")
    a("s_and_b32 s54, s54, 1")
    a("s_cbranch_scc1 L_p4_pollok")
    a("s_add_u32 s91, s91, 1")
    a(f"s_cmp_ge_u32 s91, {SPIN_MAX}")
    a("s_cbranch_scc1 L_p4_pollok")
    a("s_sleep 1")
    a("buffer_load_dword v19, v18, s[16:19], s53 offen sc1")
    a("s_branch L_p4_poll")
    a.label("L_p4_pollok")
    for i in range(4):
        a(f"buffer_load_dwordx4 v[{160+4*i}:{163+4*i}], v20, s[16:19], s56 offen offset:{1024*i} sc1")
    a.label("L_p4_have3")
    if os.environ.get("ST4"): stamp(a, 5)
    srd(a, 8, 58, 4 * MB)
    a("v_lshrrev_b32 v48, 1, v3")
    a("v_and_b32 v49, 1, v3")
    a("v_lshl_add_u32 v48, v49, 1, v48")
    a("v_lshlrev_b32 v48, 4, v48")
    a("v_lshl_add_u32 v48, v2, 11, v48")
    a("s_lshl_b32 s50, s46, 11")
    a("s_lshl_b32 s51, s45, 7")
    a("s_add_u32 s50, s50, s51")
    a("s_lshl_b32 s51, s23, 6")
    a("s_add_u32 s50, s50, s51")
    a("s_waitcnt vmcnt(0)")
    if os.environ.get("ST4"): stamp(a, 6)
    for tt in range(4):
        for cl in range(2):
            for w in range(2):
                src = 160 + 4 * tt + 2 * cl + w
                d = K_ACC + 4 * (4 * cl + tt) + 2 * w
                a(f"v_lshlrev_b32 v50, 16, v{src}")
                a(f"v_and_b32 v51, 0xffff0000, v{src}")
                a(f"v_add_f32 v{d}, v{d}, v50")
                a(f"v_add_f32 v{d+1}, v{d+1}, v51")
        t = 32 + 4 * tt
        d0, d1 = K_ACC + 4 * tt, K_ACC + 4 * (4 + tt)
        a(f"v_cvt_pk_bf16_f32 v{t}, v{d0}, v{d0+1}")
        a(f"v_cvt_pk_bf16_f32 v{t+1}, v{d0+2}, v{d0+3}")
        a(f"v_cvt_pk_bf16_f32 v{t+2}, v{d1}, v{d1+1}")
        a(f"v_cvt_pk_bf16_f32 v{t+3}, v{d1+2}, v{d1+3}")
        a("s_nop 1")
        a(f"v_permlane16_swap_b32 v{t}, v{t+2}")
        a(f"v_permlane16_swap_b32 v{t+1}, v{t+3}")
        a("s_nop 1")
        a(f"buffer_store_dwordx4 v[{t}:{t+3}], v48, s[8:11], s50 offen {OUTF}")
        a("s_add_u32 s50, s50, 32768")
    a.label("L_p4_fin")

def k34():
    a = Asm(); a.uid = 5000
    name = "k34_kernel"
    a("s_cmp_ge_u32 s2, 256")
    a("s_cbranch_scc1 L_k34_end")
    a("s_load_dwordx2 s[68:69], s[0:1], 48")
    a("s_load_dwordx2 s[70:71], s[0:1], 16")
    a("s_load_dwordx2 s[72:73], s[0:1], 56")
    a("s_load_dwordx2 s[58:59], s[0:1], 72")
    a("s_load_dwordx4 s[60:63], s[0:1], 80")
    code_prefetch(a, name, 1, vd=27, va=26)
    stamp(a, 0)
    lane_setup(a)
    a("s_and_b32 s40, s2, 7")
    a("s_lshr_b32 s41, s2, 3")
    a("s_waitcnt lgkmcnt(0)")
    srd(a, 16, 62, WS_SIZE)
    srd(a, 64, 60, 256)
    C4 = CoreK2(a)
    a("s_cmp_ge_u32 s41, 28")
    a("s_cbranch_scc1 L_k34_skip3")
    a.vm = []
    p3_early_emit(a)
    phase3(a, C4)
    vm3 = list(a.vm)
    a("s_branch L_k34_p4")
    a.label("L_k34_skip3")
    a("s_mov_b32 s39, 0")
    for i in range(1, 4): stamp(a, i)
    for f in p4_early(a): f()
    a.vm = []
    for st in range(3):
        for f in C4.dma(st): f()
    a("s_waitcnt vmcnt(0)")
    a.label("L_k34_p4")
    a.vm = vm3; a.lgkm = []
    phase4(a, C4, True)
    if gen2.STAMP: a("s_mov_b64 exec, -1"); a("s_waitcnt vmcnt(0)")
    stamp(a, 7); stamp_dump(a, 8, 2)
    a.label("L_k34_end")
    a("s_endpgm")
    return name, a.text(), dict(grid=256, block=512, lds=163840, vgpr=240)

def k234():
    from k2n import phaseA, phaseA_fallback, flag_add, F_O, F_CS, A_K
    a = Asm(); a.uid = 6000
    name = "k234_kernel"
    a("s_cmp_ge_u32 s2, 256")
    a("s_cbranch_scc1 L_k234_end")
    a("s_load_dwordx2 s[4:5], s[0:1], 0")
    a("s_load_dwordx2 s[6:7], s[0:1], 40")
    a("s_load_dwordx2 s[68:69], s[0:1], 48")
    a("s_load_dwordx2 s[70:71], s[0:1], 16")
    a("s_load_dwordx2 s[72:73], s[0:1], 56")
    a("s_load_dwordx2 s[58:59], s[0:1], 72")
    a("s_load_dwordx2 s[62:63], s[0:1], 88")
    code_prefetch(a, name, 2, vd=27, va=26)
    stamp(a, 0)
    a("v_and_b32 v1, 63, v0")
    a("v_lshrrev_b32 v2, 6, v0")
    a("s_and_b32 s40, s2, 7")
    a("v_readfirstlane_b32 s20, v2")
    a("s_lshr_b32 s41, s2, 3")
    a("s_and_b32 s60, s40, 1")
    a("s_lshl_b32 s60, s60, 5")
    a("s_add_u32 s60, s60, s41")
    C4 = CoreK2(a)
    def p3e():
        a("s_cmp_ge_u32 s60, 56")
        a("s_cbranch_scc1 L_k234_noe")
        vm = list(a.vm)
        p3_early_emit(a, remap={2: 236, 3: 237, 16: 238, 17: 239, 18: 235})
        a.label("L_k234_noe")
    phaseA(a, p3e)
    a("s_setprio 0")
    a("s_cmp_ge_u32 s60, 56")
    a("s_cbranch_scc1 L_k234_skip3")
    phase3(a, C4, merged=True)
    vm3 = list(a.vm)
    a("s_branch L_k234_p4")
    a.label("L_k234_skip3")
    a("s_mov_b32 s39, 0")
    a("v_and_b32 v2, 15, v1")
    a("v_lshrrev_b32 v3, 4, v1")
    a("s_waitcnt vmcnt(0) lgkmcnt(0)")
    a("s_barrier")
    flag_add(a, [f"s_add_u32 s48, s37, {F_O}", "s_lshl_b32 s48, s48, 8", f"s_add_u32 s48, s48, {WS_FLAG}"], "o2")
    service(a)
    for f in p4_early(a): f()
    a("s_lshr_b32 s38, s42, 1")
    a(f"s_add_u32 s38, s38, {F_O}")
    a("s_lshl_b32 s38, s38, 8")
    a(f"s_add_u32 s38, s38, {WS_FLAG}")
    a("s_cmp_lg_u32 s20, 0")
    a("s_cbranch_scc1 L_k234_w")
    a("v_mov_b32 v24, 0")
    a("v_mov_b32 v25, 0")
    a("s_nop 0")
    spin_wait(a, 25, 24, 38, 32, "o3")
    a.label("L_k234_w")
    a("s_barrier")
    stamp(a, 1 if os.environ.get("ST4") else 5)
    a.vm = []
    for st in range(3):
        for f in C4.dma(st): f()
    for f in p4_setup(a): f()
    a.label("L_k234_p4")
    a.vm = vm3; a.lgkm = []
    phase4(a, C4, True, st=((2, 3, 4) if os.environ.get('ST4') else (6, None, None) if os.environ.get('ST3') else (None, 6, None)))
    if gen2.STAMP: a("s_mov_b64 exec, -1"); a("s_waitcnt vmcnt(0)")
    stamp(a, 7); stamp_dump(a, 8, 1)
    a.label("L_k234_end")
    a("s_endpgm")
    phaseA_fallback(a)
    return name, a.text(), dict(grid=256, block=512, lds=163840, vgpr=240)

def kall():
    from k2n import phaseA, phaseA_fallback, flag_add, F_O, F_CS, A_K
    a = Asm(); a.uid = 6000
    name = "kall_kernel"
    a("s_cmp_ge_u32 s2, 256")
    a("s_cbranch_scc1 L_ka_end")
    from k1gen import k1
    from k2n import F_QKV, F_HS
    k1(a, name)
    a("s_cmp_eq_u32 s43, 3")
    a(f"s_add_u32 s61, s44, {F_QKV}")
    a("s_cmp_eq_u32 s43, 3")
    a(f"s_cselect_b32 s61, {F_HS}, s61")
    a("s_lshl_b32 s61, s61, 8")
    a(f"s_add_u32 s61, s61, {WS_FLAG}")
    a("s_load_dwordx2 s[6:7], s[0:1], 40")
    a("s_load_dwordx2 s[68:69], s[0:1], 48")
    a("s_load_dwordx2 s[70:71], s[0:1], 16")
    a("s_load_dwordx2 s[72:73], s[0:1], 56")
    a("s_load_dwordx2 s[58:59], s[0:1], 72")
    a("s_waitcnt lgkmcnt(0)")
    a.vm = []; a.lgkm = []
    a("s_and_b32 s60, s40, 1")
    a("s_lshl_b32 s60, s60, 5")
    a("s_add_u32 s60, s60, s41")
    C4 = CoreK2(a)
    def p3e():
        a("s_cmp_ge_u32 s60, 56")
        a("s_cbranch_scc1 L_ka_noe")
        vm = list(a.vm)
        p3_early_emit(a, remap={2: 236, 3: 237, 16: 238, 17: 239, 18: 235})
        a.label("L_ka_noe")
    def sgl():
        if os.environ.get("ST1"): stamp(a, 4)
        a("s_waitcnt vmcnt(0) lgkmcnt(0)")
        a("s_barrier")
        if os.environ.get("ST1"): stamp(a, 5)
        flag_add(a, ["s_mov_b32 s48, s61"], "p1")
        a(f"s_add_u32 s38, s40, {F_QKV}")
        a("s_lshl_b32 s38, s38, 8")
        a(f"s_add_u32 s38, s38, {WS_FLAG}")
        a("s_cmp_lg_u32 s20, 0")
        a("s_cbranch_scc1 L_ka_qw")
        a("v_mov_b32 v30, 0")
        a("v_mov_b32 v31, 0")
        a("s_nop 0")
        spin_wait(a, 31, 30, 38, 24, "qkv")
        a.label("L_ka_qw")
        a("s_barrier")
        if os.environ.get("ST1"): stamp(a, 6); gen2.STAMP_OFF = True
    phaseA(a, p3e, single=sgl)
    a("s_setprio 0")
    a("s_cmp_ge_u32 s60, 56")
    a("s_cbranch_scc1 L_ka_skip3")
    phase3(a, C4, merged=True)
    vm3 = list(a.vm)
    a("s_branch L_ka_p4")
    a.label("L_ka_skip3")
    a("s_mov_b32 s39, 0")
    a("v_and_b32 v2, 15, v1")
    a("v_lshrrev_b32 v3, 4, v1")
    a("s_waitcnt vmcnt(0) lgkmcnt(0)")
    a("s_barrier")
    flag_add(a, [f"s_add_u32 s48, s37, {F_O}", "s_lshl_b32 s48, s48, 8", f"s_add_u32 s48, s48, {WS_FLAG}"], "o2")
    service(a)
    for f in p4_early(a): f()
    a("s_lshr_b32 s38, s42, 1")
    a(f"s_add_u32 s38, s38, {F_O}")
    a("s_lshl_b32 s38, s38, 8")
    a(f"s_add_u32 s38, s38, {WS_FLAG}")
    a("s_cmp_lg_u32 s20, 0")
    a("s_cbranch_scc1 L_ka_w")
    a("v_mov_b32 v24, 0")
    a("v_mov_b32 v25, 0")
    a("s_nop 0")
    spin_wait(a, 25, 24, 38, 32, "o3")
    a.label("L_ka_w")
    a("s_barrier")
    stamp(a, 1 if os.environ.get("ST4") else 5)
    a.vm = []
    for st in range(3):
        for f in C4.dma(st): f()
    for f in p4_setup(a): f()
    a.label("L_ka_p4")
    a.vm = vm3; a.lgkm = []
    phase4(a, C4, True, st=((2, 3, 4) if os.environ.get('ST4') else (6, None, None) if os.environ.get('ST3') else (None, 6, None)))
    if gen2.STAMP: a("s_mov_b64 exec, -1"); a("s_waitcnt vmcnt(0)")
    stamp(a, 7); stamp_dump(a, 8, 0)
    a.label("L_ka_end")
    a("s_endpgm")
    phaseA_fallback(a)
    return name, a.text(), dict(grid=256, block=512, lds=163840, vgpr=240)
```

```python
from asmlib import *
import os
LDF = os.environ.get('LDFLAG', '')
S_SRDX = 8; S_SRDW = 12
S_SRDL = 96
S_LOFF = 24
S_LOFF2 = 25
S_SLOT = 26; S_DELTA = 27; S_CNT = 28
S_M0B = 29
S_GSTR = 30
S_LSTEP = 31
S_TMP = 32
V_LD = 4
V_PFD = 8
V_XRD = 10
V_WRD = 12
V_CSR = 21; V_CSD = 224; V_CSA = 232
V_WF = 32; V_ACC = 64; V_XF = 128
SLOT = 49152
PFD = int(os.environ.get("PFD", "6"))

def xf(buf, tt, ks): return V_XF + 32 * buf + 8 * tt + 4 * ks
def wf(c, ks): return V_WF + 8 * c + 4 * ks
def acc(tt, c): return V_ACC + 4 * (4 * c + tt)

class Core16:
    def __init__(self, a, xmode, swap=False, nsteps=16, tag="", role="L", xflag="", colsum=False, wseg=False):
        self.xflag = xflag; self.colsum = colsum; self.wseg = wseg
        self.a = a; self.xmode = xmode; self.swap = swap; self.nsteps = nsteps; self.tag = tag; self.role = role

    def dma_ops(self, stage):
        a = self.a
        if self.role == "P":
            return [lambda: a.vmem(f"buffer_load_dword v{V_PFD}, v{V_LD}, s[{S_SRDL}:{S_SRDL+3}], s{S_LOFF} offen", "pf"),
                    lambda: a(f"s_add_u32 s{S_LOFF}, s{S_LOFF}, s{S_LSTEP}")]
        if self.role == "S":
            xstep = 128 if self.xmode == "row" else 4096
            ops = [lambda: a(f"s_add_u32 m0, s{S_SLOT}, s{S_M0B}")]
            for j in range(4):
                v = V_LD + (j if self.xmode == "row" else 0)
                ops.append(lambda j=j, v=v: a.vmem(f"buffer_load_dwordx4 v{v}, s[{S_SRDX}:{S_SRDX+3}], s{S_LOFF} offen offset:{1024*j} {self.xflag}lds", ("st", stage)))
            ops.append(lambda: a(f"s_add_u32 m0, s{S_SLOT}, s{S_GSTR}"))
            for j in range(2):
                ops.append(lambda j=j: a.vmem(f"buffer_load_dwordx4 v{8+j}, s[{S_SRDW}:{S_SRDW+3}], s{S_LOFF2} offen offset:{1024*j} {LDF}lds", ("st", stage)))
            if os.environ.get("WFIRST", "1") == "1": ops = ops[5:8] + ops[0:5]
            ops.append(lambda: a(f"s_add_u32 s{S_LOFF}, s{S_LOFF}, {xstep}"))
            ops.append(lambda: a(f"s_add_u32 s{S_LOFF2}, s{S_LOFF2}, s{S_LSTEP}"))
            return ops
        ops = [lambda: a(f"s_add_u32 m0, s{S_SLOT}, s{S_M0B}"),
               lambda: a(f"s_add_u32 s{S_LOFF2}, s{S_LOFF}, s{S_GSTR}")]
        for g in range(2):
            if g: ops.append(lambda: a("s_add_u32 m0, m0, 4096"))
            for j in range(4):
                ops.append(lambda j=j, g=g: a.vmem(f"buffer_load_dwordx4 v{V_LD+j}, s[{S_SRDL}:{S_SRDL+3}], s{S_LOFF2 if g else S_LOFF} offen offset:{1024*j} {LDF}lds", ("st", stage)))
        ops.append(lambda: a(f"s_add_u32 s{S_LOFF}, s{S_LOFF}, s{S_LSTEP}"))
        return ops

    def xr(self, buf, tt, ks):
        a = self.a
        d = xf(buf, tt, ks)
        if self.xmode == "row":
            return lambda: a.ds(f"ds_read_b128 v[{d}:{d+3}], v{V_XRD+ks} offset:{2048*tt}", ("x", buf, tt, ks))
        return lambda: a.ds(f"ds_read_b128 v[{d}:{d+3}], v{V_XRD} offset:{2048*tt+1024*ks}", ("x", buf, tt, ks))

    def wr(self, c, ks, r):
        a = self.a
        off = 8192 * ks + (1024 * r if self.xmode == "row" else 4096 * r)
        if self.wseg: off = 2048 * ks + 256 * r
        d = wf(c, ks) + 2 * r
        return lambda: a.ds(f"ds_read_b64_tr_b16 v[{d}:{d+1}], v{V_WRD+c} offset:{off}", ("w", c, ks))

    def reads(self, buf):
        o = [self.xr(buf, 0, 0), self.wr(0, 0, 0), self.wr(0, 0, 1), self.xr(buf, 0, 1), self.wr(0, 1, 0), self.wr(0, 1, 1)]
        for tt in range(1, 4):
            o += [self.xr(buf, tt, 0), self.xr(buf, tt, 1)]
        for c in range(1, 4):
            o += [self.wr(c, 0, 0), self.wr(c, 0, 1), self.wr(c, 1, 0), self.wr(c, 1, 1)]
        return o

    def group(self, buf, c, first=False):
        a = self.a
        ops = []
        for tt in range(4):
            for ks in range(2):
                def f(tt=tt, ks=ks):
                    a.wait_lgkm(("x", buf, tt, ks), ("w", c, ks))
                    A, B = wf(c, ks), xf(buf, tt, ks)
                    if self.swap is True or (self.swap and c in self.swap): A, B = B, A
                    d = acc(tt, c)
                    cc = "0" if (first and ks == 0) else f"v[{d}:{d+3}]"
                    a(f"v_mfma_f32_16x16x32_bf16 v[{d}:{d+3}], v[{A}:{A+3}], v[{B}:{B+3}], {cc}")
                ops.append(f)
        return ops

    def bump_ops(self):
        a = self.a
        n = 2 if self.xmode == "row" else 1
        ops = [lambda i=i: a(f"v_add_u32 v{V_XRD+i}, s{S_DELTA}, v{V_XRD+i}") for i in range(n)]
        ops += [lambda i=i: a(f"v_add_u32 v{V_WRD+i}, s{S_DELTA}, v{V_WRD+i}") for i in range(4)]
        if self.colsum: ops.append(lambda: a(f"v_add_u32 v{V_CSR}, s{S_DELTA}, v{V_CSR}"))
        return ops

    def period(self, s, dma, last=False, extra=None, loop_tail=None, spread=None, prebar=None):
        a = self.a
        first = (s == 0)
        buf = s % 2
        sl = [[] for _ in range(33)]
        rd = self.reads(buf)
        if first:
            for i, o in enumerate(rd): sl[16 if i < 12 else 16 + (i - 11)].append(o)
        else:
            for i, o in enumerate(rd): sl[i + 1].append(o)
        if dma:
            d = self.dma_ops(s + 2)
            if self.role == "P": pos = [16 if first else 2] * 2
            elif self.role == "S":
                pos = [16] * 10 if first else [0, 2, 7, 12, 17, 21, 22, 27, 28, 28]
                if os.environ.get("WFIRST", "1") == "1" and not first: pos = [int(x) for x in os.environ.get("GDPOS", "0,1,5,9,10,15,21,27,28,28").split(",")]
                if prebar and not first and os.environ.get("EARLYD", "1") == "1": pos = [0, 1, 2, 4, 5, 6, 7, 9, 10, 10]
            else: pos = [16] * 12 if first else [0, 0, 1, 4, 8, 11, 13, 15, 18, 22, 25, 26]
            for p, o in zip(pos, d): sl[p].append(o)
        adv = [lambda: a(f"s_add_u32 s{S_SLOT}, s{S_SLOT}, {SLOT}"),
               lambda: a(f"s_cmp_eq_u32 s{S_SLOT}, {3*SLOT}"),
               lambda: a(f"s_cselect_b32 s{S_SLOT}, 0, s{S_SLOT}"),
               lambda: a(f"s_cmp_eq_u32 s{S_SLOT}, {2*SLOT}"),
               lambda: a(f"s_cselect_b32 s{S_DELTA}, s{S_TMP}, s{S_TMP+1}")]
        if not last:
            sl[29] += adv
            b = self.bump_ops()
            sl[30] += b[:3]; sl[31] += b[3:]
        if loop_tail: sl[31] += loop_tail
        for k, v in (extra or {}).items(): sl[k] += v
        if spread:
            lo = 17 if first else 1
            n = len(spread)
            for i, o in enumerate(spread): sl[lo + (i * (28 - lo)) // n].append(o)
        if self.colsum:
            lo = 16 if first else 0
            sl[lo].append(lambda: a.ds(f"ds_read_b128 v[{V_CSD}:{V_CSD+3}], v{V_CSR}", "csd"))
            sl[lo].append(lambda: a.ds(f"ds_read_b128 v[{V_CSD+4}:{V_CSD+7}], v{V_CSR} offset:8192", "csd"))
            ops = [lambda: a.wait_lgkm("csd")]
            for j in range(8):
                x = V_CSD + j; q = V_CSA + 2 * (j % 4)
                ops += [lambda x=x: a(f"v_lshlrev_b32 v22, 16, v{x}"), lambda x=x: a(f"v_and_b32 v23, 0xffff0000, v{x}"),
                        lambda q=q: a(f"v_add_f32 v{q}, v{q}, v22"), lambda q=q: a(f"v_add_f32 v{q+1}, v{q+1}, v23")]
            l2 = lo + 6
            for i, o in enumerate(ops): sl[l2 + (i * (29 - l2)) // len(ops)].append(o)
        if os.environ.get("GPRIO"):
            for q in range(4): sl[8 * q].insert(0, lambda q=q: a(f"s_setprio {3-q}"))
        mf = self.group(1 - buf, 2, first=(s == 1)) + self.group(1 - buf, 3, first=(s == 1)) + self.group(buf, 0, first) + self.group(buf, 1, first)
        for i in range(33):
            for o in sl[i]: o()
            if i < 32 and not (first and i < 16): mf[i]()
        if not last:
            n = a._need(a.vm, [("st", s + 1)])
            if prebar: n = 0
            if n is None:
                a.wait_all(vm=False)
            else:
                a(f"s_waitcnt vmcnt({n}) lgkmcnt(0)")
                a.vm = a.vm[len(a.vm) - n:] if n else []
                a.lgkm = []
            a("s_barrier")

    def prologue_dma(self, three=False):
        a = self.a
        if self.role == "P":
            a(f"s_lshl_b32 s{S_TMP}, s{S_LSTEP}, 1")
            a(f"s_add_u32 s{S_LOFF}, s{S_LOFF}, s{S_TMP}")
            for st in range(PFD):
                for o in self.dma_ops(0): o()
            a(f"s_mov_b32 s{S_SLOT}, {2*SLOT}")
            return
        for st in (0, 1):
            for o in self.dma_ops(st): o()
            a(f"s_add_u32 s{S_SLOT}, s{S_SLOT}, {SLOT}")
        if three:
            for o in self.dma_ops(2): o()

    def mainloop(self, hooks=None, npeel=2, ntail=0, three=False):
        a = self.a
        hooks = hooks or {}
        N = self.nsteps
        L = self.role != "P"
        ND = 6 if self.role == "S" else 8
        assert N % 2 == 0 and npeel % 2 == 0 and N >= npeel + 4
        a(f"s_mov_b32 s{S_TMP}, {(-2*SLOT) & 0xffffffff}")
        a(f"s_mov_b32 s{S_TMP+1}, {SLOT}")
        a.wait_vm(("st", 0))
        a("s_barrier")
        if "start" in hooks: hooks["start"]()
        for s in range(npeel):
            self.period(s, dma=not (three and s == 0), spread=(hooks[f"spread{s}"]() if f"spread{s}" in hooks else None), prebar=hooks.get(f"prebar{s}"))
            if f"after{s}" in hooks: hooks[f"after{s}"]()
        lab = a.newlabel("loop" + self.tag + self.role)
        a(f"s_mov_b32 s{S_CNT}, {(N-2-npeel-ntail)//2}")
        a.vm = [("st", 3)] * ND if L else []
        a.lgkm = []
        a.lines.append(".p2align 6")
        a.label(lab)
        self.period(2, dma=True)
        lt = [lambda: a(f"s_sub_u32 s{S_CNT}, s{S_CNT}, 1"), lambda: a(f"s_cmp_lg_u32 s{S_CNT}, 0")]
        self.period(3, dma=True, loop_tail=lt)
        if L: assert a.vm == [("st", 5)] * ND, a.vm
        a(f"s_cbranch_scc1 {lab}")
        a.vm = [("st", N - 1 - ntail)] * ND if L else []
        for s in range(N - 2 - ntail, N - 2):
            self.period(s, dma=True, spread=(hooks[f"spread{s}"]() if f"spread{s}" in hooks else None), prebar=hooks.get(f"prebar{s}"),
                        extra=({32: [hooks[f"end{s}"]]} if f"end{s}" in hooks else None))
            if f"after{s}" in hooks: hooks[f"after{s}"]()
        if "pre_tail" in hooks: hooks["pre_tail"]()
        self.period(N - 2, dma=False, extra=({32: [hooks["pre_last"]]} if "pre_last" in hooks else None),
                    spread=(hooks["spreadN2"]() if "spreadN2" in hooks else None))
        self.period(N - 1, dma=False, last=True, extra=({0: [hooks["last_start"]]} if "last_start" in hooks else None),
                    spread=(hooks["spreadN1"]() if "spreadN1" in hooks else None))
        fin = self.group((N - 1) % 2, 2) + self.group((N - 1) % 2, 3)
        fo = hooks["final"]() if "final" in hooks else []
        for o in interleave(fin, fo): o()

def read_addr_setup16(a, xmode):
    a("v_bfe_u32 v17, v1, 2, 2")
    if xmode == "row":
        a("v_lshl_add_u32 v18, v3, 3, v17")
        a("v_and_b32 v19, 1, v3")
        a("v_lshl_add_u32 v19, v19, 2, v17")
    else:
        a("v_lshl_add_u32 v18, v3, 2, v17")
        a("v_and_b32 v19, 7, v18")
    a("s_lshl_b32 s33, s22, 2")
    a("v_xor_b32 v19, s33, v19")
    a("v_lshlrev_b32 v18, 8, v18")
    a("v_lshl_add_u32 v18, v19, 5, v18")
    a("v_and_b32 v20, 3, v1")
    a("v_lshl_add_u32 v18, v20, 3, v18")
    a(f"v_add_u32 v{V_WRD}, 32768, v18")
    for c in range(1, 4): a(f"v_xor_b32 v{V_WRD+c}, {c << 5}, v{V_WRD}")
    if xmode == "row":
        a("s_lshl_b32 s33, s21, 6")
        a("v_add_u32 v16, s33, v2")
        a("v_lshlrev_b32 v16, 7, v16")
        a("v_lshrrev_b32 v17, 1, v2")
        a("v_xor_b32 v17, v17, v3")
        a(f"v_lshl_add_u32 v{V_XRD}, v17, 4, v16")
        a(f"v_xor_b32 v{V_XRD+1}, 64, v{V_XRD}")
    else:
        a("s_lshl_b32 s33, s21, 13")
        a("v_lshlrev_b32 v16, 4, v1")
        a(f"v_add_u32 v{V_XRD}, s33, v16")
    a(f"s_mov_b32 s{S_SLOT}, 0")

def loader_setup16(a, xmode, s_ldw, s_col0b, s_xbase, kd, pf, uniq):
    a("s_cmp_ge_u32 s20, 6")
    a(f"s_cbranch_scc1 L_ldP_{uniq}")
    a("s_cmp_ge_u32 s20, 4")
    a(f"s_cbranch_scc1 L_ldW_{uniq}")
    a("s_mov_b32 s34, 0")
    a(f"s_lshl_b32 s{S_M0B}, s20, 13")
    a(f"s_mov_b32 s{S_LOFF}, 0")
    if xmode == "row":
        a("v_lshrrev_b32 v16, 3, v1")
        a("s_lshl_b32 s33, s20, 6")
        a(f"s_add_u32 s33, s33, s{s_xbase}")
        a("v_add_u32 v16, s33, v16")
        a("v_lshlrev_b32 v16, 11, v16")
        a("v_and_b32 v17, 7, v1")
        a("v_xor_b32 v17, v17, v3")
        a("v_xor_b32 v18, 4, v17")
        a("v_lshl_add_u32 v17, v17, 4, v16")
        a("v_lshl_add_u32 v18, v18, 4, v16")
        for j in range(4):
            a(f"v_add_u32 v{V_LD+j}, {4096 + j*8*2048 - j*1024}, v{17 if j % 2 == 0 else 18}")
        a(f"s_mov_b32 s{S_GSTR}, {32*2048}")
        a(f"s_movk_i32 s{S_LSTEP}, 128")
    else:
        a("s_lshl_b32 s33, s20, 1")
        a(f"s_add_u32 s33, s33, s{s_xbase}")
        a(f"s_mul_i32 s33, s33, {kd*64}")
        a("v_lshlrev_b32 v16, 4, v1")
        for j in range(4): a(f"v_add_u32 v{V_LD+j}, s33, v16")
        a(f"s_mov_b32 s{S_GSTR}, {kd*64}")
        a(f"s_movk_i32 s{S_LSTEP}, 4096")
    a(f"s_branch L_ldE_{uniq}")
    a.label(f"L_ldW_{uniq}")
    a("s_mov_b32 s34, 1")
    a("s_sub_u32 s33, s20, 4")
    a(f"s_lshl_b32 s{S_M0B}, s33, 13")
    a(f"s_add_u32 s{S_M0B}, s{S_M0B}, 32768")
    a(f"s_mov_b32 s{S_LOFF}, 0")
    a("s_lshl_b32 s33, s33, 5")
    a("v_add_u32 v16, s33, v3")
    a(f"v_mul_lo_u32 v16, v16, s{s_ldw}")
    a(f"v_add_u32 v16, s{s_col0b}, v16")
    a("v_lshlrev_b32 v17, 1, v3")
    a("v_xor_b32 v17, v2, v17")
    a("v_xor_b32 v18, 8, v17")
    a("v_lshl_add_u32 v17, v17, 4, v16")
    a("v_lshl_add_u32 v18, v18, 4, v16")
    a(f"s_lshl_b32 s33, s{s_ldw}, 2")
    a("s_sub_u32 s33, s33, 1024")
    for j in range(4):
        bit = ((j >> 1) & 1) if xmode == "row" else (j & 1)
        src = 18 if bit else 17
        if j == 0: a(f"v_mov_b32 v{V_LD}, v{src}")
        else:
            a(f"s_mul_i32 s{S_GSTR}, s33, {j}")
            a(f"v_add_u32 v{V_LD+j}, s{S_GSTR}, v{src}")
    a(f"s_lshl_b32 s{S_GSTR}, s{s_ldw}, 4")
    a(f"s_lshl_b32 s{S_LSTEP}, s{s_ldw}, 6")
    a(f"s_branch L_ldE_{uniq}")
    a.label(f"L_ldP_{uniq}")
    for j in range(1, 4): a(f"v_mov_b32 v{V_LD+j}, 0")
    a(f"s_mov_b32 s{S_M0B}, 0")
    a(f"s_mov_b32 s{S_GSTR}, 0")
    pf()
    a.label(f"L_ldE_{uniq}")

def loader_srd(a):
    a("s_cmp_eq_u32 s34, 0")
    a(f"s_cselect_b32 s{S_SRDL}, s8, s12")
    a(f"s_cselect_b32 s{S_SRDL+1}, s9, s13")
    a(f"s_cselect_b32 s{S_SRDL+2}, s10, s14")
    a(f"s_mov_b32 s{S_SRDL+3}, 0x00020000")

def sym_setup16(a0, xmode, s_ldw, s_col0b, s_xbase, kd, remap=None):
    import re
    def a(s):
        if remap:
            s = re.sub(r"\bv(\d+)\b", lambda m: "v%d" % remap.get(int(m.group(1)), int(m.group(1))), s)
        a0(s)
    a("v_lshlrev_b32 v18, 1, v3")
    a("v_xor_b32 v17, v2, v18")
    if xmode == "row":
        a("s_and_b32 s33, s20, 1")
        a("s_lshl_b32 s33, s33, 3")
        a("v_xor_b32 v17, s33, v17")
        a("v_mov_b32 v18, v17")
    else:
        a("v_xor_b32 v18, 8, v17")
    a("s_lshl_b32 s33, s20, 3")
    a("v_add_u32 v16, s33, v3")
    a(f"v_mul_lo_u32 v16, v16, s{s_ldw}")
    a(f"v_add_u32 v16, s{s_col0b}, v16")
    a("v_lshl_add_u32 v8, v17, 4, v16")
    a(f"s_lshl_b32 s33, s{s_ldw}, 2")
    a("s_sub_u32 s33, s33, 1024")
    a("v_lshl_add_u32 v18, v18, 4, v16")
    a("v_add_u32 v9, s33, v18")
    a(f"s_lshl_b32 s{S_LSTEP}, s{s_ldw}, 6")
    a(f"s_lshl_b32 s{S_M0B}, s20, 12")
    a(f"s_lshl_b32 s{S_GSTR}, s20, 11")
    a(f"s_add_u32 s{S_GSTR}, s{S_GSTR}, 32768")
    a(f"s_mov_b32 s{S_LOFF}, 0")
    a(f"s_mov_b32 s{S_LOFF2}, 0")
    if xmode == "row":
        a("v_lshrrev_b32 v16, 3, v1")
        a("s_lshl_b32 s33, s20, 5")
        a(f"s_add_u32 s33, s33, s{s_xbase}")
        a("v_add_u32 v16, s33, v16")
        a("v_lshlrev_b32 v16, 11, v16")
        a("v_and_b32 v17, 7, v1")
        a("v_xor_b32 v17, v17, v3")
        a("v_xor_b32 v18, 4, v17")
        a("v_lshl_add_u32 v17, v17, 4, v16")
        a("v_lshl_add_u32 v18, v18, 4, v16")
        for j in range(4):
            a(f"v_add_u32 v{V_LD+j}, {4096 + j*8*2048 - j*1024}, v{17 if j % 2 == 0 else 18}")
    else:
        a(f"s_add_u32 s33, s{s_xbase}, s20")
        a(f"s_mul_i32 s33, s33, {kd*64}")
        a("v_lshlrev_b32 v16, 4, v1")
        a(f"v_add_u32 v{V_LD}, s33, v16")
```

```python
from gen2 import *
import gen2

class Rec:
    def __init__(self, a): self.a = a; self.ops = []
    def __call__(self, *lines):
        self.ops.append(lambda: [self.a(l) for l in lines])
    def f(self, fn): self.ops.append(fn)
    def split(self, n):
        k = (len(self.ops) + n - 1) // n
        return [self.ops[i*k:(i+1)*k] for i in range(n)]

def rec_wave_sum(r, regs):
    steps = ["row_shr:1 row_mask:0xf bank_mask:0xf bound_ctrl:0", "row_shr:2 row_mask:0xf bank_mask:0xf bound_ctrl:0",
             "row_shr:4 row_mask:0xf bank_mask:0xf bound_ctrl:0", "row_shr:8 row_mask:0xf bank_mask:0xf bound_ctrl:0",
             "row_bcast:15 row_mask:0xa bank_mask:0xf", "row_bcast:31 row_mask:0xc bank_mask:0xf"]
    r("s_nop 1")
    for st in steps:
        for x in regs: r(f"v_add_f32_dpp v{x}, v{x}, v{x} {st}")

def k1(a=None, name="k1_kernel"):
    single = a is not None
    if not single:
        a = Asm(); a.uid = 1000
        a("s_cmp_ge_u32 s2, 256")
        a("s_cbranch_scc1 L_k1_end")
    from gen2 import stamp as _st
    smap = {0: 0, 3: 1, 5: 2, 6: 3} if os.environ.get("ST1") else {0: 0}
    stamp = (lambda a, i: (_st(a, smap[i]) if i in smap else None)) if single else _st
    NSIG = 256 if single else 192
    a("s_load_dwordx4 s[4:7], s[0:1], 0")
    a("s_load_dwordx4 s[36:39], s[0:1], 32")
    a("s_load_dwordx4 s[60:63], s[0:1], 80")
    a("s_load_dwordx2 s[72:73], s[0:1], 64")
    code_prefetch(a, name, 3, allcode=True, vd=29, va=30)
    stamp(a, 0)
    lane_setup(a)
    a("s_and_b32 s40, s2, 7")
    a("s_lshr_b32 s41, s2, 3")
    a("s_and_b32 s42, s40, 1")
    a("s_lshl_b32 s42, s42, 2")
    a("s_and_b32 s43, s41, 3")
    a("s_add_u32 s42, s42, s43")
    a("s_lshr_b32 s43, s40, 1")
    a("s_lshr_b32 s44, s41, 2")
    a("s_cmp_eq_u32 s43, 3")
    a("s_movk_i32 s23, 6144")
    a("s_cselect_b32 s23, 2048, s23")
    a("s_cselect_b32 s45, 0, s43")
    a("s_lshl_b32 s58, s45, 11")
    a("s_lshl_b32 s45, s44, 8")
    a("s_add_u32 s45, s45, s58")
    a("s_lshl_b32 s46, s42, 8")
    a("s_lshl_b32 s47, s42, 3")
    a("s_add_u32 s47, s47, s44")
    def pf_setup():
        a(f"s_mov_b32 s{S_LOFF}, 0")
        a("s_sub_u32 s33, s20, 6")
        a("s_lshl_b32 s33, s33, 6")
        a("s_cmp_ge_u32 s41, 16")
        a("s_cbranch_scc1 L_k1_pfw")
        a("s_mov_b32 s34, 0")
        a("s_and_b32 s48, s40, 1")
        a("s_lshl_b32 s48, s48, 10")
        a("s_lshl_b32 s49, s41, 6")
        a("s_add_u32 s48, s48, s49")
        a("v_add_u32 v16, s48, v1")
        a("v_lshlrev_b32 v16, 11, v16")
        a("s_add_u32 s33, s33, 4096")
        a(f"v_add_u32 v{V_LD}, s33, v16")
        a(f"s_movk_i32 s{S_LSTEP}, 128")
        a("s_branch L_ldE_k1")
        a.label("L_k1_pfw")
        a("s_mov_b32 s34, 1")
        a("s_sub_u32 s48, s41, 16")
        a("s_lshl_b32 s48, s48, 2")
        a("v_add_u32 v16, s48, v3")
        a("v_mul_lo_u32 v16, v16, s23")
        a("v_lshl_add_u32 v16, v2, 7, v16")
        a("s_add_u32 s33, s33, s58")
        a(f"v_add_u32 v{V_LD}, s33, v16")
        a(f"s_lshl_b32 s{S_LSTEP}, s23, 6")
    sym_setup16(a, "row", 23, 45, 46, 1024)
    read_addr_setup16(a, "row")
    a("s_waitcnt lgkmcnt(0)")
    stamp(a, 1)
    a("s_sub_u32 s8, s4, 4096")
    a("s_subb_u32 s9, s5, 0")
    a(f"s_mov_b32 s10, {4*MB + 4096}")
    a("s_mov_b32 s11, 0x00020000")
    a("s_cmp_eq_u32 s43, 3")
    a("s_cselect_b32 s12, s36, s6")
    a("s_cselect_b32 s13, s37, s7")
    a(f"s_mov_b32 s14, {6*MB}")
    a(f"s_cselect_b32 s14, {2*MB}, s14")
    a("s_mov_b32 s15, 0x00020000")
    stamp(a, 2)

    def signal():
        lab = a.newlabel("nosig")
        a("s_cmp_lg_u32 s20, 0")
        a(f"s_cbranch_scc1 {lab}")
        a("v_mov_b32 v16, 0")
        a("v_mov_b32 v17, 1")
        a("s_mov_b64 s[50:51], exec")
        a("s_mov_b64 exec, 1")
        a("buffer_atomic_add v17, v16, s[64:67], 0 offen")
        a("s_mov_b64 exec, s[50:51]")
        a.label(lab)

    def rs_loads(kind):
        a(f"s_add_u32 s48, s47, {(kind-1)*64}")
        a("s_lshl_b32 s48, s48, 4")
        a("s_lshl_b32 s49, s20, 1")
        a("s_add_u32 s59, s48, s49")
        a("s_lshl_b32 s49, s59, 11")
        a("s_add_u32 s49, s49, 4096")
        a("v_lshlrev_b32 v16, 5, v1")
        for r in range(2):
            for h in range(2):
                d = 192 + 8 * r + 4 * h
                a.vmem(f"buffer_load_dwordx4 v[{d}:{d+3}], v16, s[8:11], s49 offen offset:{2048*r+16*h}", "duty")
        srd(a, 68, 72, 2048)
        for h in range(2):
            a.vmem(f"buffer_load_dwordx4 v[{216+4*h}:{219+4*h}], v16, s[68:71], 0 offen offset:{16*h}", "duty")
    def rs_ops():
        r = Rec(a)
        r.f(lambda: a.wait_vm("duty"))
        for i in range(6): r(f"v_mov_b32 v{208+i}, 0")
        for i in range(8):
            r(f"v_lshlrev_b32 v224, 16, v{216+i}")
            r(f"v_and_b32 v225, 0xffff0000, v{216+i}")
            for q in range(2):
                x = 192 + 8 * q + i
                r(f"v_lshlrev_b32 v{226+2*q}, 16, v{x}")
                r(f"v_and_b32 v{227+2*q}, 0xffff0000, v{x}")
            for q in range(2):
                for h in range(2):
                    r(f"v_add_f32 v{208+2*q}, v{208+2*q}, v{226+2*q+h}")
                    r(f"v_fma_f32 v{209+2*q}, v{226+2*q+h}, v{226+2*q+h}, v{209+2*q}")
                    r(f"v_mul_f32 v{226+2*q+h}, v{226+2*q+h}, v{224+h}")
            for q in range(2): r(f"v_cvt_pk_bf16_f32 v{226+2*q}, v{226+2*q}, v{227+2*q}")
            for q in range(2):
                r(f"v_lshlrev_b32 v{227+2*q}, 16, v{226+2*q}")
                r(f"v_and_b32 v{226+2*q}, 0xffff0000, v{226+2*q}")
                r(f"v_add_f32 v{212+q}, v{212+q}, v{227+2*q}")
                r(f"v_add_f32 v{212+q}, v{212+q}, v{226+2*q}")
        rec_wave_sum(r, [208, 209, 210, 211, 212, 213])
        for q in range(2):
            s_, q_ = 208 + 2 * q, 209 + 2 * q
            r(f"v_mul_f32 v{s_}, {f2u(1/1024)}, v{s_}")
            r(f"v_mul_f32 v{q_}, {f2u(1/1024)}, v{q_}")
            r(f"v_fma_f32 v{q_}, -v{s_}, v{s_}, v{q_}")
            r(f"v_max_f32 v{q_}, 0, v{q_}")
            r(f"v_add_f32 v{q_}, {f2u(1e-5)}, v{q_}")
            r(f"v_rsq_f32 v{q_}, v{q_}")
        r("v_cvt_pk_bf16_f32 v212, v212, v213")
        r("v_and_b32 v213, 0xffff0000, v212")
        r("v_lshlrev_b32 v212, 16, v212")
        for q in range(2): r(f"v_mul_f32 v{212+q}, {f2u(-math.log2(math.e))}, v{212+q}")
        for q in range(2): r(f"v_exp_f32 v{212+q}, v{212+q}")
        r("s_nop 0")
        for q in range(2): r(f"v_add_f32 v{212+q}, 1.0, v{212+q}")
        for q in range(2): r(f"v_rcp_f32 v{212+q}, v{212+q}")
        r("s_nop 0")
        r("v_cvt_pk_bf16_f32 v212, v212, v213")
        r("v_lshlrev_b32 v216, 16, v212")
        r("v_and_b32 v218, 0xffff0000, v212")
        r("v_sub_f32 v217, 1.0, v216")
        r("v_sub_f32 v219, 1.0, v218")
        r("v_cvt_pk_bf16_f32 v212, v217, v219")
        r("v_lshlrev_b32 v217, 16, v212")
        r("v_and_b32 v219, 0xffff0000, v212")
        r("s_lshl_b32 s49, s59, 3")
        r(f"s_add_u32 s54, s49, {WS_G}")
        r(f"s_add_u32 s49, s49, {WS_ST}")
        r("v_mov_b32 v16, 0")
        r("s_mov_b32 s52, 0")
        r("s_mov_b32 s53, 0x80000000")
        def st():
            a("s_mov_b64 exec, s[52:53]")
            a.vmem("buffer_store_dwordx4 v[208:211], v16, s[16:19], s49 offen sc1", "dst")
            a.vmem("buffer_store_dwordx4 v[216:219], v16, s[16:19], s54 offen sc1", "dst")
            a("s_mov_b64 exec, -1")
        r.f(st)
        return r
    def cs_loads():
        srd(a, 68, 36, 2 * MB)
        a("s_lshl_b32 s48, s42, 7")
        a("s_lshl_b32 s49, s20, 4")
        a("s_add_u32 s48, s48, s49")
        a("s_lshl_b32 s48, s48, 11")
        a("s_lshl_b32 s49, s44, 8")
        a("s_add_u32 s48, s48, s49")
        a("v_lshlrev_b32 v16, 11, v3")
        a("v_lshl_add_u32 v16, v2, 4, v16")
        for r in range(4):
            a.vmem(f"buffer_load_dwordx4 v[{192+4*r}:{195+4*r}], v16, s[68:71], s48 offen", "duty")
            if r < 3: a("s_add_u32 s48, s48, 8192")
    def cs_ops1():
        r = Rec(a)
        r.f(lambda: a.wait_vm("duty"))
        for q in range(4):
            for i in range(4):
                x = 192 + 4 * q + i
                if q == 0:
                    r(f"v_lshlrev_b32 v{208+2*i}, 16, v{x}")
                    r(f"v_and_b32 v{209+2*i}, 0xffff0000, v{x}")
                else:
                    r(f"v_lshlrev_b32 v216, 16, v{x}")
                    r(f"v_and_b32 v217, 0xffff0000, v{x}")
                    r(f"v_add_f32 v{208+2*i}, v{208+2*i}, v216")
                    r(f"v_add_f32 v{209+2*i}, v{209+2*i}, v217")
        r("s_lshl_b32 s48, s20, 11")
        r(f"s_add_u32 s48, s48, {LDS_X}")
        r("v_lshlrev_b32 v16, 9, v3")
        r("v_lshl_add_u32 v16, v2, 5, v16")
        r("v_add_u32 v16, s48, v16")
        r.f(lambda: a.ds("ds_write_b128 v16, v[208:211]", "csw"))
        r.f(lambda: a.ds("ds_write_b128 v16, v[212:215] offset:16", "csw"))
        return r.ops
    def cs_ops2():
        r = Rec(a)
        r("v_and_b32 v16, 127, v0")
        r("v_lshrrev_b32 v17, 7, v0")
        r("v_lshlrev_b32 v18, 12, v17")
        r("v_lshl_add_u32 v18, v16, 2, v18")
        r(f"v_add_u32 v19, {LDS_X}, v18")
        for q in range(8): r.f(lambda q=q: a.ds(f"ds_read_b32 v{192+q}, v19 offset:{512*q}", "csr"))
        r("s_lshl_b32 s48, s42, 14")
        r("s_lshl_b32 s49, s44, 9")
        r("s_add_u32 s48, s48, s49")
        r(f"s_add_u32 s48, s48, {WS_CS1}")
        for _ in range(4): r("s_nop 0")
        r.f(lambda: a.wait_lgkm("csr"))
        for q in range(1, 8): r(f"v_add_f32 v192, v192, v{192+q}")
        r.f(lambda: a.vmem("buffer_store_dword v192, v18, s[16:19], s48 offen sc1", "dst"))
        return r.ops

    def poll_issue():
        lab = a.newlabel("np1")
        a("v_mov_b32 v16, 0")
        a("s_cmp_lg_u32 s20, 0")
        a(f"s_cbranch_scc1 {lab}")
        a("buffer_load_dword v27, v16, s[64:67], 0 offen" + ("" if os.environ.get("PLAIN1", "0") == "1" else " sc1"))
        a.label(lab)
    def poll_check():
        lab = a.newlabel("poll"); ok = a.newlabel("pollok")
        a("s_cmp_lg_u32 s20, 0")
        a(f"s_cbranch_scc1 {ok}")
        a("s_waitcnt vmcnt(6)")
        a("s_mov_b32 s49, 0")
        a.label(lab)
        a("v_readfirstlane_b32 s48, v27")
        a(f"s_cmp_ge_u32 s48, {NSIG}")
        a(f"s_cbranch_scc1 {ok}")
        a("s_add_u32 s49, s49, 1")
        a(f"s_cmp_ge_u32 s49, {1 << 22}")
        a(f"s_cbranch_scc1 {ok}")
        a("s_sleep 4")
        a("buffer_load_dword v27, v16, s[64:67], 0 offen sc1")
        a("s_waitcnt vmcnt(0)")
        a(f"s_branch {lab}")
        a.label(ok)
    PFW = os.environ.get("PFW", "none")
    PFR = int(os.environ.get("PFR", "256"))
    def wq_pf(kind):
        a(f"s_add_u32 s94, s47, {kind*64}")
        a("s_lshl_b32 s94, s94, 3")
        a("s_add_u32 s94, s94, s20")
        a("s_lshl_b32 s94, s94, 12")
        a(f"s_add_u32 s94, s94, {PFR*6144}")
        a("v_lshlrev_b32 v27, 6, v1")
        a.vmem("buffer_load_dword v28, v27, s[12:15], s94 offen", "pf")
    for role in ("S",):
        if role == "P": a.label("L_k1_roleP")
        a.vm = []; a.lgkm = []
        THREE = os.environ.get("THREE", "0") == "1"
        Core16(a, "row", role=role).prologue_dma(three=THREE)
        vm0 = list(a.vm)
        srd(a, 16, 62, WS_SIZE)
        srd(a, 64, 60, 256)
        a("s_cmp_lg_u32 s20, 7")
        a("s_cbranch_scc1 L_k1_nozero")
        a("s_lshl_b32 s48, s2, 8")
        a(f"s_add_u32 s48, s48, {WS_FLAG}")
        a("v_lshlrev_b32 v16, 2, v1")
        a("v_mov_b32 v17, 0")
        a("buffer_store_dword v17, v16, s[16:19], s48 offen sc1")
        a.label("L_k1_nozero")
        for k in (1, 2, 3):
            a(f"s_cmp_eq_u32 s43, {k}")
            a(f"s_cbranch_scc1 L_k1_p{k}{role}")
        for kind in range(4):
            if kind: a.label(f"L_k1_p{kind}{role}")
            a.vm = list(vm0); a.lgkm = []
            core = Core16(a, "row", swap=(kind == 2), tag=f"k1{kind}", role=role)
            hk = dict(start=lambda: stamp(a, 3), after0=lambda: stamp(a, 4), pre_tail=lambda: stamp(a, 5))
            if kind < 3 and PFW != "none":
                prev = hk[PFW]
                hk[PFW] = (lambda prev=prev, kind=kind: (prev(), wq_pf(kind)))
            ND = os.environ.get("NODUTY", "")
            if kind == 0:
                cs_loads()
                hk.update(spread2=cs_ops1, spread3=cs_ops2, prebar5=["dst"], after5=signal)
                if "v" in ND: hk.pop("spread2"); hk.pop("spread3")
                if "d" in ND: hk.pop("prebar5")
                if single: hk.update(end12=poll_issue, end13=poll_check)
                core.mainloop(hooks=hk, npeel=6, ntail=(2 if single else 0), three=THREE)
            elif kind in (1, 2):
                rs_loads(kind)
                NSP = 4
                D0 = int(os.environ.get("DUTY0", "2"))
                parts = rs_ops().split(NSP)
                for i in range(NSP): hk[f"spread{D0+i}"] = (lambda i=i: parts[i])
                SG = int(os.environ.get("DUTYSIG", "7"))
                hk.update({f"prebar{SG}": ["dst"], f"after{SG}": signal})
                if single: hk.update(end12=poll_issue, end13=poll_check)
                core.mainloop(hooks=hk, npeel=8, ntail=(2 if single else 0), three=THREE)
            else:
                def stat_loads():
                    r = Rec(a)
                    r("s_lshl_b32 s48, s21, 6", "s_add_u32 s48, s48, s46", "s_lshl_b32 s48, s48, 3", f"s_add_u32 s48, s48, {WS_ST}")
                    r("v_lshlrev_b32 v16, 3, v2")
                    for tt in range(4):
                        r.f(lambda tt=tt: a.vmem(f"buffer_load_dwordx2 v[{208+2*tt}:{209+2*tt}], v16, s[16:19], s48 offen offset:{128*tt} sc1", "stat"))
                    r("v_and_b32 v17, 127, v0")
                    r("v_lshrrev_b32 v18, 7, v0")
                    r("v_lshlrev_b32 v19, 15, v18")
                    r("v_lshl_add_u32 v19, v17, 2, v19")
                    r("s_lshl_b32 s49, s44, 9", f"s_add_u32 s49, s49, {WS_CS1}")
                    for kb in range(8):
                        r.f(lambda kb=kb: (a.vmem(f"buffer_load_dword v{216+kb}, v19, s[16:19], s49 offen sc1", "csp"), a("s_add_u32 s49, s49, 4096")))
                    return r.ops
                def red1():
                    r = Rec(a)
                    r("s_lshr_b32 s48, s44, 1", "s_lshr_b32 s49, s48, 1", "s_add_u32 s49, s49, 1", "s_sub_u32 s50, 0, s49", "s_and_b32 s48, s48, 1",
                      "s_cmp_eq_u32 s48, 0", "s_cselect_b32 s49, s49, s50", "s_lshl_b32 s48, s21, 6", "s_add_u32 s48, s48, s46", "s_add_u32 s48, s48, s49")
                    for tt in range(4):
                        v = 28 + tt
                        r(f"v_add_u32 v16, s48, v2")
                        if tt: r(f"v_add_u32 v16, {16*tt}, v16")
                        r(f"v_mov_b32 v18, 2048")
                        r(f"v_cmp_lt_u32 s[{50+2*tt}:{51+2*tt}], v16, v18")
                        r("v_and_b32 v16, 2047, v16")
                        r("v_lshrrev_b32 v17, 5, v16")
                        r("v_lshlrev_b32 v17, 16, v17")
                        r("v_bfe_u32 v18, v16, 4, 1")
                        r("v_lshl_add_u32 v17, v18, 11, v17")
                        r("v_and_b32 v18, 15, v16")
                        r("v_lshl_add_u32 v17, v18, 4, v17")
                        r(f"v_lshl_add_u32 v{v}, v3, 8, v17")
                    r.f(lambda: a.wait_vm("csp"))
                    for kb in range(1, 8): r(f"v_add_f32 v216, v216, v{216+kb}")
                    r("v_lshlrev_b32 v19, 2, v0")
                    r(f"v_add_u32 v19, {LDS_X + 1024}, v19")
                    r.f(lambda: a.ds("ds_write_b32 v19, v216", "rw"))
                    return r.ops
                def red2():
                    r = Rec(a)
                    r("s_lshl_b32 s49, s22, 8", f"s_add_u32 s49, s49, {LDS_X + 1024}")
                    r("v_lshl_add_u32 v19, v1, 2, s49")
                    for g in range(4): r.f(lambda g=g: a.ds(f"ds_read_b32 v{216+g}, v19 offset:{512*g}", "rr"))
                    r("s_lshl_b32 s48, s44, 1", "s_add_u32 s48, s48, s22", "s_lshl_b32 s48, s48, 12", f"s_add_u32 s48, s48, {WS_HS}")
                    for _ in range(4): r("s_nop 0")
                    r.f(lambda: a.wait_lgkm("rr"))
                    r("v_add_f32 v216, v216, v217")
                    r("v_add_f32 v218, v218, v219")
                    r("v_add_f32 v216, v216, v218")
                    r("v_subrev_u32 v19, 1024, v19")
                    r.f(lambda: a.ds("ds_write_b32 v19, v216", "rw2"))
                    for _ in range(4): r("s_nop 0")
                    r.f(lambda: a.wait_lgkm("rw2"))
                    r("s_lshl_b32 s49, s22, 8", f"s_add_u32 s49, s49, {LDS_X}")
                    r("v_lshl_add_u32 v16, v3, 4, s49")
                    for c in range(4): r.f(lambda c=c: a.ds(f"ds_read_b128 v[{192+4*c}:{195+4*c}], v16 offset:{64*c}", "cs"))
                    return r.ops
                def w2pf():
                    srd(a, 68, 38, 2 * MB)
                    a("s_lshl_b32 s48, s47, 3")
                    a("s_add_u32 s48, s48, s20")
                    a("s_lshl_b32 s48, s48, 12")
                    a("v_lshlrev_b32 v27, 6, v1")
                    a("buffer_load_dword v28, v27, s[68:71], s48 offen")
                hk.update(after1=w2pf, end10=poll_issue, end11=poll_check, spread12=stat_loads, spreadN2=red1, spreadN1=red2)
                if single: hk.update(prebar3=["x"], after3=signal)
                core.mainloop(hooks=hk, npeel=(4 if single else 2), ntail=4, three=THREE)
            a(f"s_branch L_k1_ep{kind}")
    for kind in range(3):
        a.label(f"L_k1_ep{kind}")
        stamp(a, 6)
        hsh, tsh = (17, 11) if kind == 0 else (18, 12)
        base = WS_Q if kind == 0 else (WS_KV + (2048 if kind == 2 else 0))
        a("s_lshl_b32 s48, s44, 2")
        a("s_lshl_b32 s49, s22, 1")
        a("s_add_u32 s48, s48, s49")
        a(f"s_lshl_b32 s48, s48, {hsh}")
        a("s_lshl_b32 s49, s42, 3")
        a("s_lshl_b32 s50, s21, 1")
        a("s_add_u32 s49, s49, s50")
        a(f"s_lshl_b32 s49, s49, {tsh}")
        a("s_add_u32 s48, s48, s49")
        a(f"s_add_u32 s48, s48, {base}")
        a("v_lshrrev_b32 v16, 3, v2")
        a(f"v_lshlrev_b32 v16, {7 if kind == 0 else 8}, v16")
        a("v_and_b32 v17, 7, v2")
        a("v_lshl_add_u32 v16, v17, 4, v16")
        a("v_lshl_add_u32 v16, v3, 9, v16")
        if kind == 0:
            a(f"v_mov_b32 v18, {f2u(QSCALE)}"); a(f"v_mov_b32 v19, {f2u(QSCALE)}")
        n = 0
        for p in range(2):
            for o in range(4):
                t = 128 + 4 * n; n += 1
                if kind == 2:
                    c, pp = (n - 1) // 2, (n - 1) % 2
                    d0, d1 = acc(2 * pp, c), acc(2 * pp + 1, c)
                    soff = (c >> 1) * (1 << hsh) + pp * (1 << tsh); imm = (c & 1) * 128
                else:
                    d0, d1 = acc(o, 2 * p), acc(o, 2 * p + 1)
                    soff = (o >> 1) * (1 << tsh) + p * (1 << hsh); imm = (o & 1) * (256 if kind == 0 else 128)
                if kind == 0:
                    for d in (d0, d0 + 2, d1, d1 + 2):
                        a(f"v_pk_mul_f32 v[{d}:{d+1}], v[{d}:{d+1}], v[18:19]")
                a(f"v_cvt_pk_bf16_f32 v{t}, v{d0}, v{d0+1}")
                a(f"v_cvt_pk_bf16_f32 v{t+1}, v{d0+2}, v{d0+3}")
                a(f"v_cvt_pk_bf16_f32 v{t+2}, v{d1}, v{d1+1}")
                a(f"v_cvt_pk_bf16_f32 v{t+3}, v{d1+2}, v{d1+3}")
                a(f"s_add_u32 s49, s48, {soff}")
                a(f"buffer_store_dwordx4 v[{t}:{t+3}], v16, s[16:19], s49 offen offset:{imm} {ST_FLAG}")
        a("s_branch L_k1_fin")
    a.label("L_k1_ep3")
    a.vm = []; a.lgkm = []
    stamp(a, 6)
    masks = [f"s[{50+2*tt}:{51+2*tt}]" for tt in range(4)]
    a("s_waitcnt vmcnt(0) lgkmcnt(0)")
    ln_gelu_epilogue(a, 48, 1024, [28, 29, 30, 31], masks, [(208 + 2 * t, 209 + 2 * t) for t in range(4)], "regs")
    a.label("L_k1_fin")
    if single: return
    if gen2.STAMP: a("s_waitcnt vmcnt(0)")
    stamp(a, 7); stamp_dump(a, 8, 0)
    a.label("L_k1_end")
    a("s_endpgm")
    return name, a.text(), dict(grid=256, block=512, lds=163840, vgpr=232)
```

```python
from gen2 import *
import gen2
from k1gen import Rec, rec_wave_sum

def phase1u(a, name):
    from gen2 import stamp as _st
    smap = {0: 0, 3: 1, 5: 2, 6: 3} if os.environ.get("ST1") else {0: 0}
    stamp = lambda a, i: (_st(a, smap[i]) if i in smap else None)
    a("s_load_dwordx4 s[4:7], s[0:1], 0")
    a("s_load_dwordx4 s[36:39], s[0:1], 32")
    a("s_load_dwordx4 s[60:63], s[0:1], 80")
    a("s_load_dwordx2 s[72:73], s[0:1], 64")
    code_prefetch(a, name, 3, allcode=True, vd=29, va=30)
    stamp(a, 0)
    lane_setup(a)
    a("s_lshr_b32 s22, s20, 2")
    a("s_xor_b32 s22, s22, s20")
    a("s_and_b32 s22, s22, 1")
    a("s_and_b32 s40, s2, 7")
    a("s_lshr_b32 s41, s2, 3")
    a("s_and_b32 s42, s40, 1")
    a("s_lshl_b32 s42, s42, 2")
    a("s_and_b32 s43, s41, 3")
    a("s_add_u32 s42, s42, s43")
    a("s_lshr_b32 s44, s40, 1")
    a("s_lshl_b32 s44, s44, 3")
    a("s_lshr_b32 s43, s41, 2")
    a("s_add_u32 s44, s44, s43")
    a("s_lshl_b32 s46, s42, 8")
    a("s_cmp_eq_u32 s21, 3")
    a("s_movk_i32 s23, 6144")
    a("s_cselect_b32 s23, 2048, s23")
    a("s_cselect_b32 s45, 0, s21")
    a("s_lshl_b32 s45, s45, 11")
    a("s_lshl_b32 s47, s21, 2")
    a("s_add_u32 s47, s47, s44")
    a("s_and_b32 s47, s47, 31")
    a("s_lshl_b32 s47, s47, 6")
    a("s_add_u32 s45, s45, s47")
    a("s_add_u32 s100, s44, 4"); a("s_and_b32 s100, s100, 31")
    a("s_add_u32 s101, s44, 8"); a("s_and_b32 s101, s101, 31")
    a("s_add_u32 s43, s44, 12"); a("s_and_b32 s43, s43, 31")
    a("s_lshl_b32 s47, s43, 6")
    a("v_lshrrev_b32 v16, 2, v1")
    a("v_and_b32 v17, 3, v1")
    a("v_bfe_u32 v18, v1, 5, 1")
    a("v_lshlrev_b32 v18, 1, v18")
    a("v_xor_b32 v17, v17, v18")
    a("s_and_b32 s33, s20, 1")
    a("s_lshl_b32 s33, s33, 5")
    a("v_add_u32 v16, s33, v16")
    a("v_mul_lo_u32 v16, v16, s23")
    a("v_add_u32 v16, s45, v16")
    a("v_lshl_add_u32 v8, v17, 4, v16")
    a("s_lshl_b32 s33, s23, 4")
    a("s_sub_u32 s33, s33, 1024")
    a("v_add_u32 v9, s33, v8")
    a(f"s_lshl_b32 s{S_LSTEP}, s23, 6")
    a(f"s_lshl_b32 s{S_M0B}, s20, 12")
    a(f"s_lshl_b32 s{S_GSTR}, s20, 11")
    a(f"s_add_u32 s{S_GSTR}, s{S_GSTR}, 32768")
    a(f"s_mov_b32 s{S_LOFF}, 0")
    a(f"s_mov_b32 s{S_LOFF2}, 0")
    a("v_lshrrev_b32 v16, 3, v1")
    a("s_lshl_b32 s33, s20, 5")
    a("s_add_u32 s33, s33, s46")
    a("v_add_u32 v16, s33, v16")
    a("v_lshlrev_b32 v16, 11, v16")
    a("v_and_b32 v17, 7, v1")
    a("v_xor_b32 v17, v17, v3")
    a("v_xor_b32 v18, 4, v17")
    a("v_lshl_add_u32 v17, v17, 4, v16")
    a("v_lshl_add_u32 v18, v18, 4, v16")
    for j in range(4): a(f"v_add_u32 v{V_LD+j}, {4096 + j*8*2048 - j*1024}, v{17 if j % 2 == 0 else 18}")
    a("s_lshl_b32 s33, s21, 6")
    a("v_add_u32 v16, s33, v2")
    a("v_lshlrev_b32 v16, 7, v16")
    a("v_lshrrev_b32 v17, 1, v2")
    a("v_xor_b32 v17, v17, v3")
    a(f"v_lshl_add_u32 v{V_XRD}, v17, 4, v16")
    a(f"v_xor_b32 v{V_XRD+1}, 64, v{V_XRD}")
    a("v_bfe_u32 v17, v1, 2, 2")
    a("v_lshl_add_u32 v18, v3, 3, v17")
    a("v_lshlrev_b32 v18, 6, v18")
    a("v_and_b32 v19, 1, v3")
    a("v_lshl_add_u32 v18, v19, 5, v18")
    a("v_and_b32 v19, 3, v1")
    a("v_lshl_add_u32 v18, v19, 3, v18")
    a("s_lshl_b32 s33, s22, 13")
    a("s_add_u32 s33, s33, 32768")
    a(f"v_add_u32 v{V_WRD}, s33, v18")
    a(f"v_xor_b32 v{V_WRD+1}, 32, v{V_WRD}")
    a(f"v_add_u32 v{V_WRD+2}, 4096, v{V_WRD}")
    a(f"v_add_u32 v{V_WRD+3}, 4096, v{V_WRD+1}")
    a(f"s_mov_b32 s{S_SLOT}, 0")
    a("s_waitcnt lgkmcnt(0)")
    a("s_sub_u32 s8, s4, 4096")
    a("s_subb_u32 s9, s5, 0")
    a(f"s_mov_b32 s10, {4*MB + 4096}")
    a("s_mov_b32 s11, 0x00020000")
    a("s_cmp_eq_u32 s21, 3")
    a("s_cselect_b32 s12, s36, s6")
    a("s_cselect_b32 s13, s37, s7")
    a(f"s_mov_b32 s14, {6*MB}")
    a(f"s_cselect_b32 s14, {2*MB}, s14")
    a("s_mov_b32 s15, 0x00020000")
    a.vm = []
    Core16(a, "row", role="S").prologue_dma()
    srd(a, 16, 62, WS_SIZE)
    srd(a, 64, 60, 256)
    a("s_cmp_lg_u32 s20, 7")
    a("s_cbranch_scc1 L_k1_nozero")
    a("s_lshl_b32 s48, s2, 8")
    a(f"s_add_u32 s48, s48, {WS_FLAG}")
    a("v_lshlrev_b32 v16, 2, v1")
    a("v_mov_b32 v17, 0")
    a("buffer_store_dword v17, v16, s[16:19], s48 offen sc1")
    a.label("L_k1_nozero")
    a("s_lshl_b32 s59, s2, 3")
    a("s_add_u32 s59, s59, s20")
    a("s_lshl_b32 s49, s59, 11")
    a("s_add_u32 s49, s49, 4096")
    a("v_lshlrev_b32 v16, 5, v1")
    for h in range(2): a.vmem(f"buffer_load_dwordx4 v[{192+4*h}:{195+4*h}], v16, s[8:11], s49 offen offset:{16*h}", "duty")
    srd(a, 68, 72, 2048)
    for h in range(2): a.vmem(f"buffer_load_dwordx4 v[{200+4*h}:{203+4*h}], v16, s[68:71], 0 offen offset:{16*h}", "duty")
    a("s_mov_b32 s68, s36"); a("s_mov_b32 s69, s37"); a(f"s_mov_b32 s70, {2*MB}")
    a("s_lshl_b32 s48, s42, 7")
    a("s_lshl_b32 s49, s20, 4")
    a("s_add_u32 s48, s48, s49")
    a("s_lshl_b32 s48, s48, 11")
    a("s_add_u32 s48, s48, s47")
    a("v_lshrrev_b32 v17, 2, v1")
    a("v_lshlrev_b32 v17, 11, v17")
    a("v_and_b32 v18, 3, v1")
    a("v_lshl_add_u32 v17, v18, 4, v17")
    a.vmem("buffer_load_dwordx4 v[216:219], v17, s[68:71], s48 offen", "duty")
    vm0 = list(a.vm)

    def signal():
        lab = a.newlabel("nosig")
        a("s_cmp_lg_u32 s20, 0")
        a(f"s_cbranch_scc1 {lab}")
        a("v_mov_b32 v16, 0")
        a("v_mov_b32 v17, 1")
        a("s_mov_b64 exec, 1")
        a("buffer_atomic_add v17, v16, s[64:67], 0 offen")
        a("s_mov_b64 exec, -1")
        a.label(lab)
    def poll_issue():
        lab = a.newlabel("np1")
        a("v_mov_b32 v16, 0")
        a("s_cmp_lg_u32 s20, 0")
        a(f"s_cbranch_scc1 {lab}")
        a("buffer_load_dword v27, v16, s[64:67], 0 offen sc1")
        a.label(lab)
    def poll_check():
        lab = a.newlabel("poll"); ok = a.newlabel("pollok")
        a("s_cmp_lg_u32 s20, 0")
        a(f"s_cbranch_scc1 {ok}")
        a("s_waitcnt vmcnt(6)")
        a("s_mov_b32 s49, 0")
        a.label(lab)
        a("v_readfirstlane_b32 s48, v27")
        a("s_cmp_ge_u32 s48, 256")
        a(f"s_cbranch_scc1 {ok}")
        a("s_add_u32 s49, s49, 1")
        a(f"s_cmp_ge_u32 s49, {1 << 22}")
        a(f"s_cbranch_scc1 {ok}")
        a("s_sleep 8")
        a("buffer_load_dword v27, v16, s[64:67], 0 offen sc1")
        a("s_waitcnt vmcnt(0)")
        a(f"s_branch {lab}")
        a.label(ok)
    def rs_ops():
        r = Rec(a)
        for i in range(3): r(f"v_mov_b32 v{208+i}, 0")
        for i in range(8):
            x = 192 + i; gw = 200 + i
            r(f"v_lshlrev_b32 v224, 16, v{gw}")
            r(f"v_and_b32 v225, 0xffff0000, v{gw}")
            r(f"v_lshlrev_b32 v226, 16, v{x}")
            r(f"v_and_b32 v227, 0xffff0000, v{x}")
            for h in range(2):
                r(f"v_add_f32 v208, v208, v{226+h}")
                r(f"v_fma_f32 v209, v{226+h}, v{226+h}, v209")
                r(f"v_mul_f32 v{226+h}, v{226+h}, v{224+h}")
            r("v_cvt_pk_bf16_f32 v226, v226, v227")
            r("v_lshlrev_b32 v227, 16, v226")
            r("v_and_b32 v226, 0xffff0000, v226")
            r("v_add_f32 v210, v210, v227")
            r("v_add_f32 v210, v210, v226")
        rec_wave_sum(r, [208, 209, 210])
        r(f"v_mul_f32 v208, {f2u(1/1024)}, v208")
        r(f"v_mul_f32 v209, {f2u(1/1024)}, v209")
        r("v_fma_f32 v209, -v208, v208, v209")
        r("v_max_f32 v209, 0, v209")
        r(f"v_add_f32 v209, {f2u(1e-5)}, v209")
        r("v_rsq_f32 v209, v209")
        r("v_cvt_pk_bf16_f32 v210, v210, v210")
        r("v_lshlrev_b32 v210, 16, v210")
        r(f"v_mul_f32 v210, {f2u(-math.log2(math.e))}, v210")
        r("v_exp_f32 v210, v210", "s_nop 0")
        r("v_add_f32 v210, 1.0, v210")
        r("v_rcp_f32 v210, v210", "s_nop 0")
        r("v_cvt_pk_bf16_f32 v210, v210, v210")
        r("v_lshlrev_b32 v210, 16, v210")
        r("v_sub_f32 v211, 1.0, v210")
        r("v_cvt_pk_bf16_f32 v211, v211, v211")
        r("v_lshlrev_b32 v211, 16, v211")
        r("s_lshl_b32 s50, s59, 3", f"s_add_u32 s54, s50, {WS_G}", f"s_add_u32 s50, s50, {WS_ST}")
        r("v_mov_b32 v20, 0")
        r("s_mov_b32 s52, 0", "s_mov_b32 s53, 0x80000000")
        def st():
            a("s_mov_b64 exec, s[52:53]")
            a.vmem("buffer_store_dwordx2 v[208:209], v20, s[16:19], s50 offen sc1", "dst")
            a.vmem("buffer_store_dwordx2 v[210:211], v20, s[16:19], s54 offen sc1", "dst")
            a("s_mov_b64 exec, -1")
        r.f(st)
        return r
    def cs1():
        r = Rec(a)
        r.f(lambda: a.wait_vm("duty"))
        for i in range(4):
            r(f"v_lshlrev_b32 v{228+2*i}, 16, v{216+i}")
            r(f"v_and_b32 v{229+2*i}, 0xffff0000, v{216+i}")
        r("v_lshlrev_b32 v17, 5, v0")
        r(f"v_add_u32 v17, {LDS_X}, v17")
        r.f(lambda: a.ds("ds_write_b128 v17, v[228:231]", "csw"))
        r.f(lambda: a.ds("ds_write_b128 v17, v[232:235] offset:16", "csw"))
        return r.ops
    def cs2():
        r = Rec(a)
        r("v_and_b32 v17, 31, v0")
        r("v_lshrrev_b32 v18, 5, v0")
        r("v_lshlrev_b32 v18, 10, v18")
        r("v_lshl_add_u32 v18, v17, 2, v18")
        r(f"v_add_u32 v18, {LDS_X}, v18")
        for q in range(8): r.f(lambda q=q: a.ds(f"ds_read_b32 v{228+q}, v18 offset:{128*q}", "csr"))
        for _ in range(4): r("s_nop 0")
        r.f(lambda: a.wait_lgkm("csr"))
        for q in range(1, 8): r(f"v_add_f32 v228, v228, v{228+q}")
        r.f(lambda: a.ds("ds_write_b32 v18, v228", "csw"))
        return r.ops
    def cs3():
        r = Rec(a)
        r("v_lshlrev_b32 v18, 2, v17")
        r(f"v_add_u32 v19, {LDS_X}, v18")
        for q in range(16): r.f(lambda q=q: a.ds(f"ds_read_b32 v{216+q}, v19 offset:{1024*q}", "csr"))
        r("s_lshl_b32 s48, s42, 12", "s_lshl_b32 s49, s43, 7", "s_add_u32 s48, s48, s49", f"s_add_u32 s48, s48, {WS_CS1}")
        for _ in range(4): r("s_nop 0")
        r.f(lambda: a.wait_lgkm("csr"))
        for w in (8, 4, 2, 1):
            for q in range(w): r(f"v_add_f32 v{216+q}, v{216+q}, v{216+w+q}")
        def st():
            lab = a.newlabel("ncs")
            a("s_cmp_lg_u32 s20, 0")
            a(f"s_cbranch_scc1 {lab}")
            a("buffer_store_dword v216, v18, s[16:19], s48 offen sc1")
            a.label(lab)
        r.f(st)
        return r.ops
    def w2pf():
        a("s_mov_b32 s68, s38"); a("s_mov_b32 s69, s39")
        a("s_lshl_b32 s48, s2, 3")
        a("s_add_u32 s48, s48, s20")
        a("s_lshl_b32 s48, s48, 12")
        a("v_lshlrev_b32 v27, 6, v1")
        a("buffer_load_dword v28, v27, s[68:71], s48 offen")
    def stat_loads():
        r = Rec(a)
        r("s_lshl_b32 s48, s21, 6", "s_add_u32 s48, s48, s46", "s_lshl_b32 s48, s48, 3", f"s_add_u32 s48, s48, {WS_ST}")
        r("v_lshlrev_b32 v16, 3, v2")
        for tt in range(4):
            r.f(lambda tt=tt: a.vmem(f"buffer_load_dwordx2 v[{208+2*tt}:{209+2*tt}], v16, s[16:19], s48 offen offset:{128*tt} sc1", "stat"))
        r("v_and_b32 v17, 31, v1")
        r("v_lshlrev_b32 v19, 2, v17")
        r("s_lshl_b32 s49, s43, 7", f"s_add_u32 s49, s49, {WS_CS1}")
        for kb in range(8):
            r.f(lambda kb=kb: (a.vmem(f"buffer_load_dword v{216+kb}, v19, s[16:19], s49 offen sc1", "csp"), a("s_add_u32 s49, s49, 4096")))
        return r.ops
    def red1():
        r = Rec(a)
        r("s_lshr_b32 s48, s43, 3", "s_lshr_b32 s49, s48, 1", "s_add_u32 s49, s49, 1", "s_sub_u32 s50, 0, s49", "s_and_b32 s48, s48, 1",
          "s_cmp_eq_u32 s48, 0", "s_cselect_b32 s49, s49, s50", "s_lshl_b32 s48, s21, 6", "s_add_u32 s48, s48, s46", "s_add_u32 s48, s48, s49")
        for tt in range(4):
            v = 28 + tt
            r(f"v_add_u32 v16, s48, v2")
            if tt: r(f"v_add_u32 v16, {16*tt}, v16")
            r(f"v_mov_b32 v18, 2048")
            r(f"v_cmp_lt_u32 s[{50+2*tt}:{51+2*tt}], v16, v18")
            r("v_and_b32 v16, 2047, v16")
            r("v_lshrrev_b32 v17, 5, v16")
            r("v_lshlrev_b32 v17, 16, v17")
            r("v_bfe_u32 v18, v16, 4, 1")
            r("v_lshl_add_u32 v17, v18, 11, v17")
            r("v_and_b32 v18, 15, v16")
            r("v_lshl_add_u32 v17, v18, 4, v17")
            r(f"v_lshl_add_u32 v{v}, v3, 8, v17")
        return r.ops
    def red2():
        r = Rec(a)
        r.f(lambda: a.wait_vm("csp"))
        for kb in range(1, 8): r(f"v_add_f32 v216, v216, v{216+kb}")
        r("s_lshl_b32 s49, s20, 8", f"s_add_u32 s49, s49, {LDS_X}")
        r("v_add_u32 v19, s49, v19")
        r.f(lambda: a.ds("ds_write_b32 v19, v216", "rw2"))
        r("s_lshr_b32 s48, s43, 1", "s_lshl_b32 s48, s48, 12", "s_and_b32 s58, s43, 1", "s_lshl_b32 s58, s58, 10", "s_add_u32 s48, s48, s58", f"s_add_u32 s48, s48, {WS_HS}")
        r("v_lshl_add_u32 v16, v3, 4, s49")
        for _ in range(4): r("s_nop 0")
        r.f(lambda: a.wait_lgkm("rw2"))
        for c in range(2): r.f(lambda c=c: a.ds(f"ds_read_b128 v[{192+4*c}:{195+4*c}], v16 offset:{64*c}", "cs"))
        return r.ops

    a("s_cmp_eq_u32 s22, 1")
    a("s_cbranch_scc1 L_k1_wc1")
    for wc in range(2):
        if wc: a.label("L_k1_wc1")
        a.vm = list(vm0); a.lgkm = []
        core = Core16(a, "row", swap=({0, 1} if wc else False), tag=f"k1u{wc}", role="S", wseg=True)
        parts = rs_ops().split(3)
        hk = dict(start=lambda: stamp(a, 3), pre_tail=lambda: stamp(a, 5), after1=w2pf,
                  spread2=lambda: cs1() + parts[0], spread3=lambda: cs2() + parts[1], spread4=lambda: parts[2], spread5=cs3,
                  prebar7=["dst"], after7=signal, end10=poll_issue, end11=poll_check)
        if wc: hk.update(spread12=stat_loads, spreadN2=red1, spreadN1=red2)
        core.mainloop(hooks=hk, npeel=8, ntail=4)
        stamp(a, 6)
        a("s_lshl_b32 s33, s42, 3")
        a("s_lshl_b32 s32, s21, 1")
        a("s_add_u32 s33, s33, s32")
        a("v_lshrrev_b32 v20, 3, v2")
        a("v_and_b32 v21, 7, v2")
        a("v_lshlrev_b32 v21, 4, v21")
        a("v_lshl_add_u32 v21, v3, 9, v21")
        a("v_lshl_add_u32 v22, v20, 8, v21")
        a(f"s_lshl_b32 s32, s{101 if wc else 100}, 18")
        a("s_lshl_b32 s34, s33, 12")
        a("s_add_u32 s32, s32, s34")
        a(f"s_add_u32 s32, s32, {WS_KV + (2048 if wc else 0)}")
        a("s_add_u32 s35, s32, 4096")
        n = 0
        if wc == 0:
            a("v_lshl_add_u32 v21, v20, 7, v21")
            a("s_lshl_b32 s34, s44, 17")
            a("s_lshl_b32 s33, s33, 11")
            a("s_add_u32 s34, s34, s33")
            a(f"s_add_u32 s34, s34, {WS_Q}")
            a(f"v_mov_b32 v18, {f2u(QSCALE)}"); a(f"v_mov_b32 v19, {f2u(QSCALE)}")
            for p in range(2):
                for tt in range(4):
                    t = 128 + 4 * n; n += 1
                    d0, d1 = acc(tt, 2 * p), acc(tt, 2 * p + 1)
                    if p == 0:
                        for d in (d0, d0 + 2, d1, d1 + 2): a(f"v_pk_mul_f32 v[{d}:{d+1}], v[{d}:{d+1}], v[18:19]")
                    a(f"v_cvt_pk_bf16_f32 v{t}, v{d0}, v{d0+1}")
                    a(f"v_cvt_pk_bf16_f32 v{t+1}, v{d0+2}, v{d0+3}")
                    a(f"v_cvt_pk_bf16_f32 v{t+2}, v{d1}, v{d1+1}")
                    a(f"v_cvt_pk_bf16_f32 v{t+3}, v{d1+2}, v{d1+3}")
                    if p == 0: a(f"buffer_store_dwordx4 v[{t}:{t+3}], v21, s[16:19], s34 offen offset:{(tt>>1)*2048 + (tt&1)*256} sc1")
                    else: a(f"buffer_store_dwordx4 v[{t}:{t+3}], v22, s[16:19], s{35 if tt>>1 else 32} offen offset:{(tt&1)*128} sc1")
            a("s_branch L_k1_fin")
        else:
            for c in range(2):
                for pp in range(2):
                    t = 128 + 4 * n; n += 1
                    d0, d1 = acc(2 * pp, c), acc(2 * pp + 1, c)
                    a(f"v_cvt_pk_bf16_f32 v{t}, v{d0}, v{d0+1}")
                    a(f"v_cvt_pk_bf16_f32 v{t+1}, v{d0+2}, v{d0+3}")
                    a(f"v_cvt_pk_bf16_f32 v{t+2}, v{d1}, v{d1+1}")
                    a(f"v_cvt_pk_bf16_f32 v{t+3}, v{d1+2}, v{d1+3}")
                    a(f"buffer_store_dwordx4 v[{t}:{t+3}], v22, s[16:19], s{35 if pp else 32} offen offset:{c*128} sc1")
            a("s_waitcnt vmcnt(4) lgkmcnt(0)")
            for tt in range(4):
                m, r_ = 208 + 2 * tt, 209 + 2 * tt
                a(f"v_mul_f32 v224, {f2u(GC1)}, v{r_}")
                a(f"v_mul_f32 v226, v{r_}, v{r_}")
                a(f"v_rcp_f32 v228, v{r_}")
                a(f"v_mul_f32 v226, v226, v224")
                a(f"v_mul_f32 v226, {f2u(0.044715)}, v226")
                a(f"v_sub_f32 v230, 0, v{m}")
                a("v_mov_b32 v225, v224"); a("v_mov_b32 v227, v226"); a("v_mov_b32 v229, v228"); a("v_mov_b32 v231, v230")
                regs = []
                for c in (2, 3):
                    d = acc(tt, c)
                    for i in (0, 2):
                        a(f"v_pk_fma_f32 v[{d+i}:{d+i+1}], v[230:231], v[{192+4*(c-2)+i}:{192+4*(c-2)+i+1}], v[{d+i}:{d+i+1}]")
                    regs += [d, d + 1, d + 2, d + 3]
                gelu_block(a, regs, 224, 226, 228, list(range(32, 40)))
                t = 48 + 4 * tt
                for i in range(4): a(f"v_cvt_pk_bf16_f32 v{t+i}, v{regs[2*i]}, v{regs[2*i+1]}")
                for i in range(4): a(f"v_cndmask_b32 v{t+i}, 0, v{t+i}, s[{50+2*tt}:{51+2*tt}]")
                a(f"buffer_store_dwordx4 v[{t}:{t+3}], v{28+tt}, s[16:19], s48 offen sc1")
    a.label("L_k1_fin")
```

```python
from gen2 import *
import gen2
from k1gen import Rec

SLA = 32768
A_Q = 32; A_NEG = 48; A_S = 64; A_P = 96; A_O = 104; A_L = 136; A_SEL = 144; A_K = 148; A_V = 164
G_ACC = 180
G_F = 196
X_RES = 228
C3 = 196
PK = 212
NVA = 240
V_KVD = 4; V_XD = 5; V_WD = 6; V_KVD2 = 7
V_KVR = 8
V_XR = 10
V_WR = 12
V_LP = 14
V_L16 = 15
V_KV2 = 28
F_QKV = 56
F_HS = 64
HFA = ''
S_KVO = 24; S_XO = 25; S_WO = 26; S_CN = 29; S_MK = 30; S_MX = 31; S_MW = 34; S_MK2 = 27
XCH = 98304
F_X1 = 16
F_O = 32
F_CS = 48

class KA:
    def __init__(self, a, hf=''): self.a = a; self.hf = hf
    def dma(self, stage):
        a = self.a; t = ("st", stage); sl = (stage % 4) * SLA; F = self.hf
        if 1 <= stage <= 16:
            return [
                lambda: a(f"s_add_u32 m0, s{S_MK}, {sl}"),
                lambda: a.vmem(f"buffer_load_dwordx4 v{V_KVD}, s[16:19], s{S_KVO} offen {F}lds", t),
                lambda: a(f"s_add_u32 m0, s{S_MX}, {sl}"),
                lambda: a.vmem(f"buffer_load_dwordx4 v{V_XD}, s[16:19], s{S_XO} offen {F}lds", t),
                lambda: a.vmem(f"buffer_load_dwordx4 v{V_XD}, s[16:19], s{S_XO} offen offset:1024 {F}lds", t),
                lambda: a(f"s_add_u32 m0, s{S_MW}, {sl}"),
                lambda: a.vmem(f"buffer_load_dwordx4 v{V_WD}, s[12:15], s{S_WO} offen lds", t),
                lambda: a(f"s_add_u32 s{S_KVO}, s{S_KVO}, 8192"),
                lambda: a(f"s_add_u32 s{S_XO}, s{S_XO}, 4096"),
                lambda: a(f"s_add_u32 s{S_WO}, s{S_WO}, {64*2048}"),
            ]
        ops = [lambda: a(f"s_add_u32 m0, s{S_MK2}, {sl}")]
        for j in range(4):
            ops.append(lambda j=j: a.vmem(f"buffer_load_dwordx4 v{V_KVD2}, s[16:19], s{S_KVO} offen offset:{1024*j} {F}lds", t))
        ops.append(lambda: a(f"s_add_u32 s{S_KVO}, s{S_KVO}, 32768"))
        return ops
    def kvaddr(self, kt):
        if 4 <= kt < 20:
            sl = (kt - 3) % 4
            return V_KVR + (sl >> 1), (sl & 1) * SLA
        st, j = (0, kt) if kt < 4 else (17 + (kt - 20) // 4, (kt - 20) % 4)
        sl = st % 4
        return V_KV2 + (sl >> 1), (sl & 1) * SLA + j * 4096
    def kreads(self, kt):
        a = self.a; k = A_K + 8 * (kt % 2); v, off = self.kvaddr(kt)
        return [lambda: a.ds(f"ds_read_b128 v[{k}:{k+3}], v{v} offset:{off}", ("k", kt, 0)),
                lambda: a.ds(f"ds_read_b128 v[{k+4}:{k+7}], v{v} offset:{off+1024}", ("k", kt, 1))]
    def vreads(self, kt):
        a = self.a; d = A_V + 8 * (kt % 2); v, off = self.kvaddr(kt)
        return [lambda: a.ds(f"ds_read_b128 v[{d}:{d+3}], v{v} offset:{off+2048}", ("v", kt, 0)),
                lambda: a.ds(f"ds_read_b128 v[{d+4}:{d+7}], v{v} offset:{off+3072}", ("v", kt, 1))]
    def greads(self, T):
        a = self.a; i = T % 4; sl = (1 + T // 4) % 4; pr = sl >> 1; off = (sl & 1) * SLA
        gx = G_F + 8 * i; gw = gx + 4
        kg, s = i >> 1, i & 1
        return [lambda: a.ds(f"ds_read_b128 v[{gx}:{gx+3}], v{V_XR+pr} offset:{off+1024*kg+512*s}", ("gx", T)),
                lambda: a.ds(f"ds_read_b64_tr_b16 v[{gw}:{gw+1}], v{V_WR+pr} offset:{off+(32*kg+8*s)*128}", ("gw", T)),
                lambda: a.ds(f"ds_read_b64_tr_b16 v[{gw+2}:{gw+3}], v{V_WR+pr} offset:{off+(32*kg+8*s+16)*128}", ("gw", T))]
    def reads(self, t):
        T = t + 2
        if T > 63: return []
        kv = self.kreads(T // 2) if T % 2 == 0 else self.vreads(T // 2)
        g = (self.greads(2 * (t - 6)) + self.greads(2 * (t - 6) + 1)) if 6 <= t <= 37 else []
        if os.environ.get("FEWG") and g: g = g[:4]
        return g[:3] + kv + g[3:]
    def qk(self, u, half):
        a = self.a
        kt, qs = u >> 1, u & 1
        k = A_K + 8 * (kt % 2) + 4 * half; S = A_S + 16 * (u % 2); q = A_Q + 8 * qs + 4 * half
        def f():
            a.wait_lgkm(("k", kt, half))
            c = f"v[{A_NEG}:{A_NEG+15}]" if half == 0 else f"v[{S}:{S+15}]"
            a(f"v_mfma_f32_32x32x16_bf16 v[{S}:{S+15}], v[{k}:{k+3}], v[{q}:{q+3}], {c}")
        return f
    def gm(self, T):
        a = self.a
        gx = G_F + 8 * (T % 4); gw = gx + 4
        def f():
            a.wait_lgkm(("gx", T), ("gw", T))
            c = f"v[{G_ACC}:{G_ACC+15}]"
            a(f"v_mfma_f32_32x32x16_bf16 v[{G_ACC}:{G_ACC+15}], v[{gw}:{gw+3}], v[{gx}:{gx+3}], {c}")
        return f
    def pv(self, u, half):
        a = self.a
        kt, qs = u >> 1, u & 1
        v = A_V + 8 * (kt % 2) + 4 * half; p = A_P + 4 * half; O = A_O + 16 * qs
        def f():
            a.wait_lgkm(("v", kt, half))
            a(f"v_mfma_f32_32x32x16_bf16 v[{O}:{O+15}], v[{v}:{v+3}], v[{p}:{p+3}], v[{O}:{O+15}]")
        return f
    def sm(self, u, half):
        a = self.a
        p = A_P + 4 * half; L = A_L + 4 * (u & 1)
        return lambda: a(f"v_mfma_f32_16x16x32_bf16 v[{L}:{L+3}], v[{A_SEL}:{A_SEL+3}], v[{p}:{p+3}], v[{L}:{L+3}]")
    def slot(self, t, misc=()):
        a = self.a
        S = A_S + 16 * (t % 2)
        e = lambda i: (lambda: a(f"v_exp_f32 v{S+i}, v{S+i}"))
        c = lambda i: (lambda: a(f"v_cvt_pk_bf16_f32 v{A_P+i}, v{S+2*i}, v{S+2*i+1}"))
        rd = self.reads(t)
        nxt = 0 <= t + 1 <= 63; prev = 0 <= t <= 64; cur = 0 <= t <= 63
        gg = 7 <= t <= 38
        seq = []
        def M(f, cond):
            if cond: seq.append(f)
        def V(*fs):
            if cur: seq.extend(fs)
        M(self.qk(t + 1, 0), nxt)
        V(e(0), e(1), e(2))
        M(self.pv(t - 1, 1), prev)
        V(c(0), e(3), e(4), c(1))
        M(self.qk(t + 1, 1), nxt)
        V(e(5), e(6), c(2))
        M(self.sm(t - 1, 1), prev)
        V(e(7), e(8))
        M(self.gm(2 * (t - 7)), gg)
        V(c(3), e(9), e(10), c(4))
        M(self.pv(t, 0), cur)
        V(e(11), e(12), c(5))
        M(self.sm(t, 0), cur)
        V(e(13), e(14))
        M(self.gm(2 * (t - 7) + 1), gg)
        V(e(15), c(6), c(7))
        fill = list(rd) + list(misc)
        if os.environ.get("MISCFIRST") and len(misc) >= 6: fill = list(misc) + list(rd)
        n = len(seq)
        out = []; j = 0
        for i, f in enumerate(seq):
            out.append(f)
            tgt = (len(fill) * (i + 1)) // max(1, (n - 6)) if n > 6 else len(fill)
            while j < min(tgt, len(fill)):
                out.append(fill[j]); j += 1
        out += fill[j:]
        for f in out: f()
    def bar(self, tags):
        a = self.a
        n = a._need(a.vm, tags)
        if n is None: a.wait_all(vm=False)
        else:
            a(f"s_waitcnt vmcnt({n}) lgkmcnt(0)")
            a.vm = a.vm[len(a.vm) - n:] if n else []
            a.lgkm = []
        a("s_barrier")
    def period1(self, s, tail=(), extra=None):
        d = self.dma(s + 3)
        h = (len(d) + 1) // 2
        self.a("s_setprio 1")
        self.slot(2 * s + 4, d[:h] + (extra or {}).get(0, []))
        self.a("s_setprio 0")
        self.slot(2 * s + 5, d[h:] + list(tail) + (extra or {}).get(1, []))
        if os.environ.get("HALFBAR") and s % 2 == 0 and 2 <= s <= 13:
            n = self.a._need(self.a.vm, [("st", s + 1)])
            self.a(f"s_waitcnt vmcnt({n})")
            self.a.vm = self.a.vm[len(self.a.vm) - n:]
            return
        self.bar([("st", s + 1)])
    def pair(self, p, tail=(), extra=None):
        a0 = 2 * p + 1
        d1, d2 = self.dma(a0 + 2), self.dma(a0 + 3)
        ms = [d1, d2, [], list(tail)] if not os.environ.get('PDMA') else [d1 + d2, [], [], list(tail)]
        for i in range(4):
            self.a(f"s_setprio {3-i}")
            self.slot(2 * a0 + 4 + i, ms[i] + (extra or {}).get(i, []))
        self.bar([("st", a0 + 2), ("st", a0 + 3)])
    def period2(self, s, extra=None, tail=(), bartags=None, barrier=True):
        a = self.a
        t0 = 38 + 8 * (s - 17)
        for i in range(8):
            if i % 2 == 0: a(f"s_setprio {3 - i//2}")
            m = list((extra or {}).get(i, []))
            if i == 7: m += list(tail)
            self.slot(t0 + i, m)
        if barrier: self.bar(bartags)

def flag_add(a, slot_sgpr_expr_lines, tag):
    lab = a.newlabel("nf" + tag)
    a("s_cmp_lg_u32 s20, 0")
    a(f"s_cbranch_scc1 {lab}")
    for l in slot_sgpr_expr_lines: a(l)
    a("v_mov_b32 v30, 0")
    a("v_mov_b32 v31, 1")
    a("s_mov_b64 exec, 1")
    a("buffer_atomic_add v31, v30, s[16:19], s48 offen")
    a("s_mov_b64 exec, -1")
    a.label(lab)

def phaseA(a, p3_early, single=False, nhs=64):
    from gen2 import stamp as _st
    stamp = (lambda a, i: None) if (os.environ.get('ST3') or os.environ.get('ST4')) else _st
    a("v_and_b32 v2, 31, v1")
    a("v_lshrrev_b32 v3, 5, v1")
    a("s_lshr_b32 s21, s20, 1")
    a("s_and_b32 s22, s20, 1")
    a("s_lshl_b32 s42, s40, 2")
    a("s_and_b32 s43, s41, 3")
    a("s_add_u32 s42, s42, s43")
    a("s_lshr_b32 s43, s41, 2")
    a("s_and_b32 s44, s40, 3")
    a("s_lshl_b32 s44, s44, 2")
    a("s_and_b32 s45, s41, 3")
    a("s_add_u32 s44, s44, s45")
    a("s_lshr_b32 s45, s40, 2")
    a("s_lshl_b32 s45, s45, 3")
    a("s_add_u32 s45, s45, s43")
    a(f"v_lshlrev_b32 v{V_L16}, 4, v1")
    a("s_lshl_b32 s46, s42, 18")
    a(f"s_add_u32 s46, s46, {WS_KV}")
    a("s_lshl_b32 s47, s20, 10")
    a("s_add_u32 s47, s47, s46")
    a(f"v_add_u32 v{V_KVD}, s47, v{V_L16}")
    a("s_lshl_b32 s47, s20, 12")
    a("s_add_u32 s47, s47, s46")
    a(f"v_add_u32 v{V_KVD2}, s47, v{V_L16}")
    a("s_lshl_b32 s46, s44, 2")
    a("s_add_u32 s46, s46, s21")
    a("s_lshl_b32 s46, s46, 16")
    a("s_lshl_b32 s47, s22, 11")
    a("s_add_u32 s46, s46, s47")
    a(f"s_add_u32 s46, s46, {WS_HS}")
    a(f"v_add_u32 v{V_XD}, s46, v{V_L16}")
    a("v_lshrrev_b32 v17, 3, v1")
    a("s_lshl_b32 s46, s20, 3")
    a("v_add_u32 v17, s46, v17")
    a("v_lshlrev_b32 v17, 11, v17")
    a("v_and_b32 v18, 7, v1")
    a("v_bfe_u32 v19, v1, 4, 1")
    a("v_lshlrev_b32 v19, 2, v19")
    a("v_xor_b32 v18, v18, v19")
    a("v_lshl_add_u32 v17, v18, 4, v17")
    a("s_lshl_b32 s46, s45, 7")
    a(f"v_add_u32 v{V_WD}, s46, v17")
    a(f"s_lshl_b32 s{S_MK}, s20, 10")
    a(f"s_lshl_b32 s{S_MX}, s20, 11")
    a(f"s_add_u32 s{S_MX}, s{S_MX}, 8192")
    a(f"s_add_u32 s{S_MW}, s{S_MK}, 24576")
    a(f"s_lshl_b32 s{S_MK2}, s20, 12")
    a("s_lshl_b32 s46, s22, 12")
    a(f"v_add_u32 v{V_KVR}, s46, v{V_L16}")
    a(f"v_add_u32 v{V_KVR+1}, {2*SLA}, v{V_KVR}")
    a("v_lshrrev_b32 v17, 4, v2")
    a("v_lshlrev_b32 v17, 11, v17")
    a("v_lshl_add_u32 v17, v3, 8, v17")
    a("v_and_b32 v18, 15, v2")
    a(f"v_lshl_add_u32 v{V_LP}, v18, 4, v17")
    a("s_lshl_b32 s46, s21, 12")
    a("s_add_u32 s46, s46, 8192")
    a(f"v_add_u32 v{V_XR}, s46, v{V_LP}")
    a(f"v_add_u32 v{V_XR+1}, {2*SLA}, v{V_XR}")
    a("v_bfe_u32 v17, v1, 2, 2")
    a("v_lshl_add_u32 v18, v3, 2, v17")
    a("v_bfe_u32 v19, v1, 1, 1")
    a("v_bfe_u32 v20, v1, 4, 1")
    a("v_lshl_add_u32 v19, v19, 1, v20")
    a("s_lshl_b32 s46, s22, 2")
    a("v_add_u32 v19, s46, v19")
    a("v_lshrrev_b32 v17, 1, v17")
    a("v_lshlrev_b32 v17, 2, v17")
    a("v_xor_b32 v19, v19, v17")
    a("v_lshlrev_b32 v18, 7, v18")
    a("v_lshl_add_u32 v18, v19, 4, v18")
    a("v_and_b32 v20, 1, v1")
    a("v_lshl_add_u32 v18, v20, 3, v18")
    a(f"v_add_u32 v{V_WR}, 24576, v18")
    a(f"v_add_u32 v{V_WR+1}, {2*SLA}, v{V_WR}")
    a("v_bfe_u32 v17, v1, 2, 1")
    a("v_bfe_u32 v18, v1, 4, 1")
    a("v_cmp_eq_u32 vcc, v17, v18")
    a("v_mov_b32 v19, 0x3f803f80")
    a("s_nop 0")
    for i in range(4): a(f"v_cndmask_b32 v{A_SEL+i}, 0, v19, vcc")
    for r in (S_KVO, S_XO, S_WO): a(f"s_mov_b32 s{r}, 0")
    a("s_lshl_b32 s46, s42, 17")
    a("s_lshl_b32 s47, s43, 3")
    a("s_add_u32 s47, s47, s20")
    a("s_andn2_b32 s48, s47, 1")
    a("s_lshl_b32 s48, s48, 11")
    a("s_add_u32 s46, s46, s48")
    a(f"s_add_u32 s46, s46, {WS_Q}")
    a("s_lshl_b32 s48, s22, 14")
    a(f"v_add_u32 v{V_KV2}, s48, v{V_L16}")
    a(f"v_add_u32 v{V_KV2+1}, {2*SLA}, v{V_KV2}")
    from mega import spin_wait
    HF = "sc1 " if single else ""
    if not single:
        a("s_waitcnt lgkmcnt(0)")
        srd(a, 16, 62, WS_SIZE)
    srd(a, 12, 6, 2 * MB)
    srd(a, 8, 4, 4 * MB)
    for i in range(40): a(f"v_mov_b32 v{A_O+i}, 0")
    for i in range(8): a(f"v_mov_b32 v{A_P+i}, 0")
    for i in range(16): a(f"v_mov_b32 v{A_V+i}, 0")
    for i in range(16): a(f"v_mov_b32 v{G_ACC+i}, 0")
    if single:
        single()
    stamp(a, 1)
    K = KA(a, HF)
    for i in range(4):
        a.vmem(f"buffer_load_dwordx4 v[{A_Q+4*i}:{A_Q+4*i+3}], v{V_L16}, s[16:19], s46 offen offset:{1024*i} {HF}", "q")
    for f in K.dma(0): f()
    if single:
        a(f"s_mov_b32 s38, {WS_FLAG + F_HS*256}")
        if nhs < 0:
            a("s_lshr_b32 s38, s44, 1")
            a("s_and_b32 s39, s44, 1")
            a("s_lshl_b32 s39, s39, 1")
            a("s_add_u32 s39, s39, s38")
            a("s_add_u32 s39, s39, 7")
            a("s_and_b32 s39, s39, 7")
            for r in (38, 39):
                a(f"s_add_u32 s{r}, s{r}, 104")
                a(f"s_lshl_b32 s{r}, s{r}, 8")
                a(f"s_add_u32 s{r}, s{r}, {WS_FLAG}")
            a("v_mov_b32 v27, 0")
        a("v_mov_b32 v30, 0")
        a("v_mov_b32 v31, 0")
    else:
        for st in (1, 2):
            for f in K.dma(st): f()
    a.wait_vm(("st", 0))
    a("s_barrier")
    k1b = A_K + 8
    a.ds(f"ds_read_b128 v[{k1b}:{k1b+3}], v{V_L16}", "k0")
    a.ds(f"ds_read_b128 v[{k1b+4}:{k1b+7}], v{V_L16} offset:1024", "k0")
    for f in K.reads(-2): f()
    a.wait_lgkm("k0")
    for qs in range(2):
        S = A_S + 16 * qs
        a(f"v_mfma_f32_32x32x16_bf16 v[{S}:{S+15}], v[{k1b}:{k1b+3}], v[{A_Q+8*qs}:{A_Q+8*qs+3}], 0")
        a(f"v_mfma_f32_32x32x16_bf16 v[{S}:{S+15}], v[{k1b+4}:{k1b+7}], v[{A_Q+8*qs+4}:{A_Q+8*qs+7}], v[{S}:{S+15}]")
    for f in K.reads(-1): f()
    a("s_nop 7"); a("s_nop 7")
    S = A_S
    a(f"v_max3_f32 v17, v{S}, v{S+1}, v{S+2}")
    a(f"v_max3_f32 v18, v{S+3}, v{S+4}, v{S+5}")
    for i in range(6, 32, 4):
        a(f"v_max3_f32 v17, v17, v{S+i}, v{S+i+1}")
        if i + 3 < 32: a(f"v_max3_f32 v18, v18, v{S+i+2}, v{S+i+3}")
    a("v_max_f32 v17, v17, v18")
    a("v_mov_b32 v18, v17")
    a("s_nop 1")
    a("v_permlane32_swap_b32 v17, v18")
    a("s_nop 1")
    a("v_max_f32 v17, v17, v18")
    for i in range(16): a(f"v_sub_f32 v{A_NEG+i}, 0, v17")
    a("s_nop 1")
    K.qk(0, 0)(); K.qk(0, 1)()
    a("s_nop 7"); a("s_nop 3")
    stamp(a, 2)
    def hs_poll():
        lab = a.newlabel("nhp")
        a("s_cmp_lg_u32 s20, 0")
        a(f"s_cbranch_scc1 {lab}")
        a("buffer_load_dword v31, v30, s[16:19], s38 offen" + ("" if os.environ.get("PLAIN2", "0") == "1" else " sc1"))
        if nhs < 0: a("buffer_load_dword v27, v30, s[16:19], s39 offen sc1")
        a.label(lab)
    K.slot(0, [hs_poll] if single else [])
    K.slot(1)
    if single:
        lab = a.newlabel("nhc")
        a("s_cmp_lg_u32 s20, 0")
        a(f"s_cbranch_scc1 {lab}")
        a("s_waitcnt vmcnt(0)")
        spin_wait(a, 31, 30, 38, abs(nhs), "hs")
        if nhs < 0: spin_wait(a, 27, 30, 39, abs(nhs), "hs2")
        a.label(lab)
        a("s_barrier")
        for i in range(2): K.slot(2 + i, K.dma(1 + i))
        K.slot(4); K.slot(5)
    else:
        for t in range(2, 6): K.slot(t)
    K.bar([("st", 1), ("st", 2)])
    K.pair(0)
    a(f"s_mov_b32 s{S_CN}, 3")
    assert a.vm == [], a.vm
    a.lines.append(".p2align 6")
    a.label("L_pa_loop1")
    lt = [lambda: a(f"s_sub_u32 s{S_CN}, s{S_CN}, 1"), lambda: a(f"s_cmp_lg_u32 s{S_CN}, 0")]
    K.pair(1)
    K.pair(2, tail=lt)
    assert a.vm == [], a.vm
    a("s_cbranch_scc1 L_pa_loop1")
    def xres():
        a("s_lshl_b32 s46, s44, 7")
        a("s_lshl_b32 s48, s21, 5")
        a("s_add_u32 s46, s46, s48")
        a("s_lshl_b32 s48, s46, 11")
        a("s_lshl_b32 s49, s45, 7")
        a("s_add_u32 s48, s48, s49")
        a("s_lshl_b32 s49, s22, 6")
        a("s_add_u32 s48, s48, s49")
        a("v_lshlrev_b32 v17, 11, v2")
        a("v_lshl_add_u32 v17, v3, 3, v17")
        for s in range(2):
            for b in range(2):
                d = X_RES + 4 * s + 2 * b
                a.vmem(f"buffer_load_dwordx2 v[{d}:{d+1}], v17, s[8:11], s48 offen offset:{32*b+16*s}", "xres")
        a("s_lshl_b32 s48, s47, 8")
        a(f"s_add_u32 s48, s48, {WS_G}")
        a("v_lshlrev_b32 v17, 3, v2")
        a.vmem(f"buffer_load_dword v25, v17, s[16:19], s48 offen {HF}", "xres")
    K.pair(7, extra={2: [xres]})
    stamp(a, 3)
    r = Rec(a)
    r.f(lambda: a.wait_vm("xres"))
    for s in range(2):
        for b in range(2):
            for w in range(2):
                src = X_RES + 4 * s + 2 * b + w
                d = G_ACC + 8 * s + 4 * b + 2 * w
                r(f"v_lshlrev_b32 v17, 16, v{src}")
                r(f"v_and_b32 v18, 0xffff0000, v{src}")
                r(f"v_add_f32 v{d}, v{d}, v17")
                r(f"v_add_f32 v{d+1}, v{d+1}, v18")
    for i in range(8): r(f"v_cvt_pk_bf16_f32 v{PK+i}, v{G_ACC+2*i}, v{G_ACC+2*i+1}")
    r("s_lshl_b32 s48, s44, 2", "s_add_u32 s48, s48, s21", "s_lshl_b32 s48, s48, 16", "s_lshl_b32 s49, s45, 12", "s_add_u32 s48, s48, s49",
      "s_lshl_b32 s49, s22, 10", "s_add_u32 s48, s48, s49", f"s_add_u32 s48, s48, {WS_X1}")
    r.f(lambda: a.vmem(f"buffer_store_dwordx4 v[{PK}:{PK+3}], v{V_LP}, s[16:19], s48 offen sc1", "x1st"))
    r.f(lambda: a.vmem(f"buffer_store_dwordx4 v[{PK+4}:{PK+7}], v{V_LP}, s[16:19], s48 offen offset:512 sc1", "x1st"))
    r("v_mov_b32 v20, 0"); r("v_mov_b32 v21, 0")
    for i in range(8):
        r(f"v_lshlrev_b32 v17, 16, v{PK+i}")
        r(f"v_and_b32 v18, 0xffff0000, v{PK+i}")
        r("v_add_f32 v20, v20, v17")
        r("v_fma_f32 v21, v17, v17, v21")
        r("v_add_f32 v20, v20, v18")
        r("v_fma_f32 v21, v18, v18, v21")
    r("v_mov_b32 v22, v20", "v_mov_b32 v23, v21", "s_nop 1", "v_permlane32_swap_b32 v20, v22", "v_permlane32_swap_b32 v21, v23", "s_nop 1",
      "v_add_f32 v20, v20, v22", "v_add_f32 v21, v21, v23")
    r("v_lshlrev_b32 v24, 3, v2")
    r("s_lshl_b32 s48, s46, 3", "s_lshl_b32 s49, s45, 1", "s_add_u32 s49, s49, s22", "s_lshl_b32 s49, s49, 14", "s_add_u32 s48, s48, s49", f"s_add_u32 s48, s48, {WS_P2}")
    r.f(lambda: a.vmem("buffer_store_dwordx2 v[20:21], v24, s[16:19], s48 offen sc1", "x1st"))
    parts = r.split(4)
    ex = {2 + i: parts[i] for i in range(4)}
    ex[0] = K.dma(19)
    K.period2(17, extra=ex, bartags=[("st", 18), "x1st", ("st", 19)])
    flag_add(a, ["s_lshr_b32 s48, s44, 1", f"s_add_u32 s48, s48, {F_X1}", "s_lshl_b32 s48, s48, 8", f"s_add_u32 s48, s48, {WS_FLAG}"], "x1")
    r = Rec(a)
    r("s_mov_b32 s96, s68", "s_mov_b32 s97, s69", f"s_mov_b32 s98, {7*MB}", "s_mov_b32 s99, 0x00020000")
    r("s_mul_i32 s48, s2, 7", "s_add_u32 s48, s48, s20", "s_sub_u32 s48, s48, 1", "s_lshl_b32 s48, s48, 12", "s_cmp_eq_u32 s20, 0", "s_cselect_b32 s48, 0x7f000000, s48")
    r("v_lshlrev_b32 v26, 6, v1")
    r.f(lambda: a.vmem("buffer_load_dword v27, v26, s[96:99], s48 offen", "pf"))
    r2 = Rec(a)
    r2("s_mov_b32 s96, s70", "s_mov_b32 s97, s71", f"s_mov_b32 s98, {2*MB}", f"s_sub_u32 s49, s48, {5*MB}")
    r2.f(lambda: a.vmem("buffer_load_dword v27, v26, s[96:99], s49 offen", "pf"))
    r3 = Rec(a)
    r3("s_mov_b32 s96, s72", "s_mov_b32 s97, s73", f"s_mov_b32 s98, {7*MB}")
    r3.f(lambda: a.vmem("buffer_load_dword v27, v26, s[96:99], s48 offen", "pf"))
    K.period2(18, extra={0: r.ops, 4: r2.ops}, bartags=[])
    def poll0():
        lab = a.newlabel("np")
        a("s_and_b32 s38, s60, 7")
        a(f"s_add_u32 s38, s38, {F_X1}")
        a("s_lshl_b32 s38, s38, 8")
        a(f"s_add_u32 s38, s38, {WS_FLAG}")
        a("v_mov_b32 v30, 0")
        a("s_cmp_lg_u32 s20, 0")
        a(f"s_cbranch_scc1 {lab}")
        a("buffer_load_dword v31, v30, s[16:19], s38 offen sc1")
        a.label(lab)
    def chk0():
        lab = a.newlabel("nc")
        a("s_cmp_lg_u32 s20, 0")
        a(f"s_cbranch_scc1 {lab}")
        a("s_waitcnt vmcnt(0)")
        spin_wait(a, 31, 30, 38, 32, "x1")
        a.label(lab)
    K.period2(19, extra={3: [poll0]}, tail=[chk0], bartags=[])
    stamp(a, 4)
    a("s_mov_b32 s35, s47")
    a("s_mov_b32 s36, s42")
    a("s_mov_b32 s37, s43")
    p3_early()
    K.slot(62); K.slot(63)
    a("s_nop 1")
    K.slot(64)
    a("s_nop 3")
    a("s_lshl_b32 s48, s20, 12")
    a(f"s_add_u32 s48, s48, {XCH}")
    a(f"v_add_u32 v22, s48, v{V_L16}")
    a("v_xor_b32 v23, 4096, v22")
    a("s_lshl_b32 s48, s20, 8")
    a("s_add_u32 s48, s48, 131072")
    a("v_lshl_add_u32 v20, v1, 2, s48")
    a("v_xor_b32 v21, 256, v20")
    a("s_cmp_eq_u32 s22, 0")
    a("s_cbranch_scc0 L_pa_x1")
    for i in range(4): a(f"ds_write_b128 v22, v[{A_O+16+4*i}:{A_O+19+4*i}] offset:{1024*i}")
    a(f"ds_write_b32 v20, v{A_L+4}")
    a("s_branch L_pa_x2")
    a.label("L_pa_x1")
    for i in range(4): a(f"ds_write_b128 v22, v[{A_O+4*i}:{A_O+3+4*i}] offset:{1024*i}")
    a(f"ds_write_b32 v20, v{A_L}")
    a("s_waitcnt lgkmcnt(0)")
    for i in range(16): a(f"v_mov_b32 v{A_O+i}, v{A_O+16+i}")
    a(f"v_mov_b32 v{A_L}, v{A_L+4}")
    for i in range(8): a(f"v_mov_b32 v{A_Q+i}, v{A_Q+8+i}")
    a.label("L_pa_x2")
    a("s_waitcnt lgkmcnt(0)")
    a("s_barrier")
    for i in range(4): a(f"ds_read_b128 v[{A_O+16+4*i}:{A_O+19+4*i}], v23 offset:{1024*i}")
    a(f"ds_read_b32 v{A_L+4}, v21")
    a("s_waitcnt lgkmcnt(0)")
    for i in range(16): a(f"v_add_f32 v{A_O+i}, v{A_O+i}, v{A_O+16+i}")
    a(f"v_add_f32 v{A_L}, v{A_L}, v{A_L+4}")
    a(f"v_max3_f32 v18, abs(v{A_O}), abs(v{A_O+1}), abs(v{A_O+2})")
    for i in range(3, 15, 2): a(f"v_max3_f32 v18, v18, abs(v{A_O+i}), abs(v{A_O+i+1})")
    a(f"v_max3_f32 v18, v18, abs(v{A_O+15}), abs(v{A_O+15})")
    a(f"v_mov_b32 v19, {f2u(2.0**60)}")
    a(f"v_cmp_nlt_f32 vcc, v{A_L}, v19")
    a(f"v_mov_b32 v19, {f2u(2.0**120)}")
    a(f"v_cmp_nlt_f32 s[50:51], v18, v19")
    a(f"v_mov_b32 v19, {f2u(2.0**-60)}")
    a(f"v_cmp_ngt_f32 s[52:53], v{A_L}, v19")
    a("s_nop 1")
    a("s_or_b64 vcc, vcc, s[50:51]")
    a("s_or_b64 vcc, vcc, s[52:53]")
    if os.environ.get("FORCE_FB"): a("s_mov_b64 vcc, -1")
    a("s_cbranch_vccnz L_pa_fallback")
    a.label("L_pa_fin")
    a(f"v_rcp_f32 v18, v{A_L}")
    a("s_nop 0")
    a("v_mul_f32 v18, v18, v25")
    for i in range(16): a(f"v_mul_f32 v{A_O+i}, v{A_O+i}, v18")
    for i in range(8): a(f"v_cvt_pk_bf16_f32 v{X_RES+i}, v{A_O+2*i}, v{A_O+2*i+1}")
    a("s_lshl_b32 s48, s35, 16")
    a("s_lshr_b32 s49, s36, 1")
    a("s_lshl_b32 s49, s49, 12")
    a("s_add_u32 s48, s48, s49")
    a("s_and_b32 s49, s36, 1")
    a("s_lshl_b32 s49, s49, 10")
    a("s_add_u32 s48, s48, s49")
    a(f"s_add_u32 s48, s48, {WS_O}")
    a.vmem(f"buffer_store_dwordx4 v[{X_RES}:{X_RES+3}], v{V_LP}, s[16:19], s48 offen sc1", "ost")
    a.vmem(f"buffer_store_dwordx4 v[{X_RES+4}:{X_RES+7}], v{V_LP}, s[16:19], s48 offen offset:512 sc1", "ost")

def phaseA_fallback(a):
    a.label("L_pa_fallback")
    a("s_lshl_b32 s52, s36, 18")
    a(f"s_add_u32 s52, s52, {WS_KV}")
    a("s_mov_b32 s53, s52")
    a("s_mov_b32 s54, 64")
    a("v_mov_b32 v18, 0xff800000")
    S = A_S
    L16 = V_L16
    a.label("L_pa_fb1")
    a(f"buffer_load_dwordx4 v[{A_K}:{A_K+3}], v{L16}, s[16:19], s53 offen sc1")
    a(f"buffer_load_dwordx4 v[{A_K+4}:{A_K+7}], v{L16}, s[16:19], s53 offen offset:1024 sc1")
    a("s_waitcnt vmcnt(0)")
    a(f"v_mfma_f32_32x32x16_bf16 v[{S}:{S+15}], v[{A_K}:{A_K+3}], v[{A_Q}:{A_Q+3}], 0")
    a(f"v_mfma_f32_32x32x16_bf16 v[{S}:{S+15}], v[{A_K+4}:{A_K+7}], v[{A_Q+4}:{A_Q+7}], v[{S}:{S+15}]")
    a("s_nop 7"); a("s_nop 7")
    for i in range(0, 16, 2): a(f"v_max3_f32 v18, v18, v{S+i}, v{S+i+1}")
    a("s_add_u32 s53, s53, 4096")
    a("s_sub_u32 s54, s54, 1")
    a("s_cmp_lg_u32 s54, 0")
    a("s_cbranch_scc1 L_pa_fb1")
    a("v_mov_b32 v19, v18")
    a("s_nop 1")
    a("v_permlane32_swap_b32 v18, v19")
    a("s_nop 1")
    a("v_max_f32 v18, v18, v19")
    for i in range(16): a(f"v_sub_f32 v{A_NEG+i}, 0, v18")
    for i in range(16): a(f"v_mov_b32 v{A_O+i}, 0")
    for i in range(4): a(f"v_mov_b32 v{A_L+i}, 0")
    a("s_mov_b32 s53, s52")
    a("s_mov_b32 s54, 64")
    a.label("L_pa_fb2")
    for i in range(2):
        a(f"buffer_load_dwordx4 v[{A_K+4*i}:{A_K+4*i+3}], v{L16}, s[16:19], s53 offen offset:{1024*i} sc1")
        a(f"buffer_load_dwordx4 v[{A_V+4*i}:{A_V+4*i+3}], v{L16}, s[16:19], s53 offen offset:{2048+1024*i} sc1")
    a("s_waitcnt vmcnt(0)")
    a(f"v_mfma_f32_32x32x16_bf16 v[{S}:{S+15}], v[{A_K}:{A_K+3}], v[{A_Q}:{A_Q+3}], v[{A_NEG}:{A_NEG+15}]")
    a(f"v_mfma_f32_32x32x16_bf16 v[{S}:{S+15}], v[{A_K+4}:{A_K+7}], v[{A_Q+4}:{A_Q+7}], v[{S}:{S+15}]")
    a("s_nop 7"); a("s_nop 7")
    for i in range(16): a(f"v_exp_f32 v{S+i}, v{S+i}")
    a("s_nop 0")
    for i in range(8): a(f"v_cvt_pk_bf16_f32 v{A_P+i}, v{S+2*i}, v{S+2*i+1}")
    a("s_nop 1")
    for h in range(2):
        a(f"v_mfma_f32_32x32x16_bf16 v[{A_O}:{A_O+15}], v[{A_V+4*h}:{A_V+4*h+3}], v[{A_P+4*h}:{A_P+4*h+3}], v[{A_O}:{A_O+15}]")
        a(f"v_mfma_f32_16x16x32_bf16 v[{A_L}:{A_L+3}], v[{A_SEL}:{A_SEL+3}], v[{A_P+4*h}:{A_P+4*h+3}], v[{A_L}:{A_L+3}]")
    a("s_add_u32 s53, s53, 4096")
    a("s_sub_u32 s54, s54, 1")
    a("s_cmp_lg_u32 s54, 0")
    a("s_cbranch_scc1 L_pa_fb2")
    a("s_nop 7"); a("s_nop 7")
    a("s_branch L_pa_fin")
```

```python
from gen2 import *
import gen2

WOHALF = False
P1N = 16

def k3():
    from k1gen import Rec
    a = Asm(); a.uid = 3000
    name = "k3_kernel"
    a("s_cmp_ge_u32 s2, 224")
    a("s_cbranch_scc1 L_k3_end")
    a("s_load_dwordx2 s[6:7], s[0:1], 48")
    a("s_load_dwordx2 s[62:63], s[0:1], 88")
    code_prefetch(a, name, 1, vd=27, va=26)
    stamp(a, 0)
    lane_setup(a)
    a("s_and_b32 s40, s2, 7")
    a("s_lshr_b32 s41, s2, 3")
    a("s_and_b32 s42, s40, 1")
    a("s_lshl_b32 s42, s42, 2")
    a("s_and_b32 s43, s41, 3")
    a("s_add_u32 s42, s42, s43")
    a("s_lshr_b32 s43, s40, 1")
    a("s_mul_i32 s43, s43, 7")
    a("s_lshr_b32 s44, s41, 2")
    a("s_add_u32 s44, s44, s43")
    a("s_movk_i32 s23, 7168")
    a("s_lshl_b32 s45, s44, 8")
    a("s_lshl_b32 s46, s42, 3")
    def pf_setup():
        a(f"s_mov_b32 s{S_LOFF}, 0")
        a("s_lshl_b32 s48, s41, 1")
        a("s_add_u32 s48, s48, s20")
        a("s_sub_u32 s48, s48, 6")
        a("s_lshr_b32 s33, s48, 5")
        a("s_lshl_b32 s33, s33, 6")
        a("s_and_b32 s48, s48, 31")
        a("s_cmp_ge_u32 s48, 16")
        a("s_cbranch_scc1 L_k3_pfw")
        a("s_mov_b32 s34, 0")
        a("s_and_b32 s49, s40, 1")
        a("s_lshl_b32 s49, s49, 5")
        a("s_lshl_b32 s48, s48, 1")
        a("s_add_u32 s48, s48, s49")
        a("v_lshrrev_b32 v16, 5, v1")
        a("v_add_u32 v16, s48, v16")
        a("v_lshlrev_b32 v16, 16, v16")
        a("v_and_b32 v17, 31, v1")
        a("v_lshl_add_u32 v16, v17, 7, v16")
        a(f"v_add_u32 v{V_LD}, s33, v16")
        a(f"s_movk_i32 s{S_LSTEP}, 4096")
        a("s_branch L_ldE_k3")
        a.label("L_k3_pfw")
        a("s_mov_b32 s34, 1")
        a("s_sub_u32 s48, s48, 16")
        a("s_lshl_b32 s48, s48, 2")
        a("v_add_u32 v16, s48, v3")
        a("v_mul_lo_u32 v16, v16, s23")
        a("v_lshl_add_u32 v16, v2, 7, v16")
        a("s_lshl_b32 s49, s43, 8")
        a("s_add_u32 s33, s33, s49")
        a(f"v_add_u32 v{V_LD}, s33, v16")
        a(f"s_lshl_b32 s{S_LSTEP}, s23, 6")
    sym_setup16(a, "frag", 23, 45, 46, 1024)
    read_addr_setup16(a, "frag")
    a("s_waitcnt lgkmcnt(0)")
    stamp(a, 1)
    a(f"s_add_u32 s8, s62, {WS_X1}")
    a("s_addc_u32 s9, s63, 0")
    a(f"s_mov_b32 s10, {4*MB}")
    a("s_mov_b32 s11, 0x00020000")
    srd(a, 12, 6, 7 * MB)
    stamp(a, 2)
    def aux_loads():
        r = Rec(a)
        r("v_lshrrev_b32 v16, 1, v0")
        r("v_lshlrev_b32 v16, 3, v16")
        r("v_and_b32 v17, 1, v0")
        r("v_lshl_add_u32 v16, v17, 17, v16")
        r("s_lshl_b32 s48, s42, 11", f"s_add_u32 s48, s48, {WS_P1}")
        for i in range(8 if "p" not in os.environ.get("NOAUX", "") else 0):
            r.f(lambda i=i: (a.vmem(f"buffer_load_dwordx2 v[{192+2*i}:{193+2*i}], v16, s[16:19], s48 offen", "aux"), a("s_add_u32 s48, s48, 16384")))
        r("v_and_b32 v17, 127, v0")
        r("v_lshrrev_b32 v18, 7, v0")
        r("v_mul_u32_u24 v18, 57344, v18")
        r("v_lshl_add_u32 v18, v17, 2, v18")
        r("s_lshl_b32 s48, s44, 9", f"s_add_u32 s48, s48, {WS_CS3}")
        for kb in range(4 if "c" not in os.environ.get("NOAUX", "") else 0):
            r.f(lambda kb=kb: (a.vmem(f"buffer_load_dword v{208+kb}, v18, s[16:19], s48 offen", "aux"), a("s_add_u32 s48, s48, 14336")))
        return r
    def aux_ops1():
        r = Rec(a)
        r.f(lambda: a.wait_vm("aux"))
        for i in range(1, 8):
            r(f"v_add_f32 v192, v192, v{192+2*i}")
            r(f"v_add_f32 v193, v193, v{193+2*i}")
        for kb in range(1, 4): r(f"v_add_f32 v208, v208, v{208+kb}")
        r("v_add_f32_dpp v192, v192, v192 quad_perm:[1,0,3,2] row_mask:0xf bank_mask:0xf")
        r("v_add_f32_dpp v193, v193, v193 quad_perm:[1,0,3,2] row_mask:0xf bank_mask:0xf")
        r("v_lshlrev_b32 v17, 2, v0")
        r(f"v_add_u32 v17, {LDS_X + 4096}, v17")
        r(f"v_mul_f32 v192, {f2u(1/1024)}, v192")
        r(f"v_mul_f32 v193, {f2u(1/1024)}, v193")
        r.f(lambda: a.ds("ds_write_b32 v17, v208", "auxw"))
        r("v_fma_f32 v193, -v192, v192, v193")
        r("v_max_f32 v193, 0, v193")
        r(f"v_add_f32 v193, {f2u(1e-5)}, v193")
        r("v_rsq_f32 v193, v193")
        r("v_lshrrev_b32 v16, 1, v0")
        r("v_lshlrev_b32 v16, 3, v16")
        r(f"v_add_u32 v16, {LDS_X + 1024}, v16")
        r.f(lambda: a.ds("ds_write_b64 v16, v[192:193]", "auxw"))
        return r.ops
    def aux_ops2():
        r = Rec(a)
        r("s_lshl_b32 s49, s22, 8")
        r(f"s_add_u32 s49, s49, {LDS_X}")
        r("v_lshl_add_u32 v17, v1, 2, s49")
        for g in range(4): r.f(lambda g=g: a.ds(f"ds_read_b32 v{216+g}, v17 offset:{4096+512*g}", "auxr"))
        r("s_lshl_b32 s48, s21, 9")
        r(f"s_add_u32 s48, s48, {LDS_X + 1024}")
        r("v_lshl_add_u32 v16, v2, 3, s48")
        for tt in range(4): r.f(lambda tt=tt: a.ds(f"ds_read_b64 v[{208+2*tt}:{209+2*tt}], v16 offset:{128*tt}", "auxr2"))
        r.f(lambda: a.wait_lgkm("auxr"))
        r("v_add_f32 v216, v216, v217")
        r("v_add_f32 v218, v218, v219")
        r("v_add_f32 v216, v216, v218")
        r.f(lambda: a.ds("ds_write_b32 v17, v216", "auxw"))
        r("s_lshl_b32 s48, s21, 1")
        r("s_add_u32 s48, s48, s46")
        r("s_mul_i32 s48, s48, 229376")
        r("s_lshl_b32 s49, s44, 1")
        r("s_add_u32 s49, s49, s22")
        r("s_lshl_b32 s49, s49, 12")
        r("s_add_u32 s48, s48, s49")
        r(f"s_add_u32 s48, s48, {WS_H3}")
        r("v_lshlrev_b32 v28, 4, v1")
        r("v_add_u32 v29, 2048, v28")
        r("v_add_u32 v30, 229376, v28")
        r("v_add_u32 v31, 229376, v29")
        return r.ops
    for role in ("S",):
        if role == "P": a.label("L_k3_roleP")
        a.vm = []; a.lgkm = []
        core = Core16(a, "frag", tag="k3", role=role)
        core.prologue_dma()
        srd(a, 16, 62, WS_SIZE)
        al = aux_loads().split(2)
        hk = dict(start=lambda: stamp(a, 3), after0=lambda: stamp(a, 4), spread1=lambda: al[0], spread2=lambda: al[1], spread4=aux_ops1, spread5=aux_ops2, pre_tail=lambda: stamp(a, 5))
        core.mainloop(hooks=hk, npeel=6)
        if role == "L": a("s_branch L_k3_ep")
    a.label("L_k3_ep")
    a.vm = []; a.lgkm = []
    stamp(a, 6)
    ln_gelu_epilogue(a, 48, 3584, [28, 29, 30, 31], None, [(208 + 2 * t, 209 + 2 * t) for t in range(4)], None)
    if gen2.STAMP: a("s_waitcnt vmcnt(0)")
    stamp(a, 7); stamp_dump(a, 8, 2)
    a.label("L_k3_end")
    a("s_endpgm")
    return name, a.text(), dict(grid=224, block=512, lds=163840, vgpr=232)

SK = 32768
K_XD = 4; K_WD = 5
K_XR = 8
K_WR = 10
K_XF = 32
K_WF = 128
K_ACC = 64
NA1, NA2, NB = (20, 8, 36) if WOHALF else (16, 16, 40)

class CoreK:
    def __init__(self, a): self.a = a
    def dma(self, stage):
        a = self.a; t = ("st", stage); sl = (stage % 4) * SK
        return [
            lambda: a(f"s_add_u32 m0, s29, {sl}"),
            lambda: a.vmem(f"buffer_load_dwordx4 v{K_XD}, s[16:19], s24 offen {LDF}lds", t),
            lambda: a.vmem(f"buffer_load_dwordx4 v{K_XD}, s[16:19], s24 offen offset:1024 {LDF}lds", t),
            lambda: a(f"s_add_u32 m0, s29, {sl + 16384}"),
            lambda: a.vmem(f"buffer_load_dwordx4 v{K_WD}, s[12:15], s25 offen {LDF}lds", t),
            lambda: a.vmem(f"buffer_load_dwordx4 v{K_WD+1}, s[12:15], s25 offen offset:1024 {LDF}lds", t),
            lambda: a("s_add_u32 s24, s24, 4096"),
            lambda: a(f"s_add_u32 s25, s25, {64*2048}"),
        ]
    def reads(self, s):
        a = self.a; buf = s % 2; sl = s % 4; pr = sl >> 1; off = (sl & 1) * SK
        o = []
        def xr(tt):
            d = K_XF + 16 * buf + 4 * tt
            return lambda: a.ds(f"ds_read_b128 v[{d}:{d+3}], v{K_XR+pr} offset:{off + 2048*tt}", ("x", s, tt))
        def wr(c, r):
            d = K_WF + 16 * buf + 4 * c + 2 * r
            return lambda: a.ds(f"ds_read_b64_tr_b16 v[{d}:{d+1}], v{K_WR+4*pr+c} offset:{off + 4096*r}", ("w", s, c))
        o = [xr(0), wr(0, 0), wr(0, 1), xr(1), xr(2), xr(3)]
        for c in range(1, 4): o += [wr(c, 0), wr(c, 1)]
        return o
    def mfmas(self, s):
        a = self.a; buf = s % 2
        o = []
        for c in range(4):
            for tt in range(4):
                def f(c=c, tt=tt):
                    a.wait_lgkm(("x", s, tt), ("w", s, c))
                    A = K_WF + 16 * buf + 4 * c; B = K_XF + 16 * buf + 4 * tt; d = K_ACC + 4 * (4 * c + tt)
                    a(f"v_mfma_f32_16x16x32_bf16 v[{d}:{d+3}], v[{A}:{A+3}], v[{B}:{B+3}], v[{d}:{d+3}]")
                o.append(f)
        return o
    def period(self, s, dma, last=False, extra=None, first_real=None):
        a = self.a
        sl = [[] for _ in range(17)]
        for i, o in enumerate(self.reads(s)): sl[min(i + 1, 12) if s else 0].append(o)
        if dma:
            for p, o in zip([int(x) for x in os.environ.get('KDPOS', '0,2,5,7,9,12,13,13').split(',')], self.dma(s + 3)): sl[p].append(o)
        for k, v in (extra or {}).items(): sl[k] += v
        if os.environ.get("KPRIO"):
            for q in range(2): sl[8 * q].insert(0, lambda q=q: a(f"s_setprio {1-q}"))
        mf = self.mfmas(s - 1) if s else None
        for i in range(17):
            for o in sl[i]: o()
            if i < 16 and mf: mf[i]()
        if not last:
            n = a._need(a.vm, [("st", s + 1)])
            if n is None: a.wait_all(vm=False)
            else:
                a(f"s_waitcnt vmcnt({n}) lgkmcnt(0)")
                a.vm = a.vm[len(a.vm) - n:] if n else []; a.lgkm = []
            a("s_barrier")

def k4():
    a = Asm(); a.uid = 4000
    name = "k4_kernel"
    a("s_cmp_ge_u32 s2, 256")
    a("s_cbranch_scc1 L_k4_end")
    a("s_load_dwordx2 s[4:5], s[0:1], 16")
    a("s_load_dwordx2 s[6:7], s[0:1], 56")
    a("s_load_dwordx2 s[58:59], s[0:1], 72")
    a("s_load_dwordx4 s[60:63], s[0:1], 80")
    code_prefetch(a, name, 1, vd=23, va=21)
    stamp(a, 0)
    a("v_and_b32 v1, 63, v0")
    a("v_lshrrev_b32 v2, 6, v0")
    a("s_nop 0")
    a("v_readfirstlane_b32 s20, v2")
    a("v_and_b32 v2, 15, v1")
    a("v_lshrrev_b32 v3, 4, v1")
    a("s_lshr_b32 s23, s20, 2")
    a("s_bfe_u32 s21, s20, 0x10001")
    a("s_and_b32 s22, s20, 1")
    a("s_and_b32 s40, s2, 7")
    a("s_lshr_b32 s41, s2, 3")
    a("s_and_b32 s43, s40, 1")
    a("s_lshr_b32 s42, s40, 1")
    a("s_lshl_b32 s42, s42, 2")
    a("s_and_b32 s44, s41, 3")
    a("s_add_u32 s42, s42, s44")
    a("s_lshr_b32 s44, s41, 2")
    a("s_lshl_b32 s47, s42, 3")
    a("s_add_u32 s47, s47, s44")
    a("v_lshlrev_b32 v20, 4, v1")
    a("s_lshl_b32 s48, s42, 2")
    a("s_lshr_b32 s49, s20, 1")
    a("s_add_u32 s48, s48, s49")
    a("s_lshl_b32 s50, s22, 11")
    a("s_mul_i32 s49, s48, 229376")
    a("s_add_u32 s49, s49, s50")
    a(f"s_add_u32 s49, s49, {WS_H3}")
    a(f"v_add_u32 v{K_XD}, s49, v20")
    a("s_lshl_b32 s49, s48, 16")
    a("s_add_u32 s49, s49, s50")
    a(f"s_add_u32 s49, s49, {WS_O}")
    a("v_add_u32 v7, s49, v20")
    a("v_lshlrev_b32 v18, 1, v3")
    a("v_xor_b32 v18, v2, v18")
    a("v_xor_b32 v19, 8, v18")
    a("s_lshl_b32 s48, s20, 3")
    a("v_add_u32 v21, s48, v3")
    a("v_lshlrev_b32 v21, 11, v21")
    a("s_lshl_b32 s48, s44, 8")
    a("v_add_u32 v21, s48, v21")
    a(f"v_lshl_add_u32 v{K_WD}, v18, 4, v21")
    a("v_lshl_add_u32 v19, v19, 4, v21")
    a(f"v_add_u32 v{K_WD+1}, {4*2048-1024}, v19")
    a("s_lshl_b32 s29, s20, 11")
    a("s_lshl_b32 s48, s21, 13")
    a("s_lshl_b32 s49, s23, 10")
    a("s_add_u32 s48, s48, s49")
    a(f"v_add_u32 v{K_XR}, s48, v20")
    a(f"v_add_u32 v{K_XR+1}, {2*SK}, v{K_XR}")
    a("v_bfe_u32 v18, v1, 2, 2")
    a("v_lshl_add_u32 v18, v3, 2, v18")
    a("v_and_b32 v19, 7, v18")
    a("s_lshl_b32 s48, s22, 2")
    a("v_xor_b32 v19, s48, v19")
    a("v_lshlrev_b32 v18, 8, v18")
    a("v_lshl_add_u32 v18, v19, 5, v18")
    a("v_and_b32 v19, 3, v1")
    a("v_lshl_add_u32 v18, v19, 3, v18")
    a("s_lshl_b32 s48, s23, 13")
    a("s_add_u32 s48, s48, 16384")
    a(f"v_add_u32 v{K_WR}, s48, v18")
    for c in range(1, 4): a(f"v_xor_b32 v{K_WR+c}, {c<<5}, v{K_WR}")
    for c in range(4): a(f"v_add_u32 v{K_WR+4+c}, {2*SK}, v{K_WR+c}")
    a("s_cmp_eq_u32 s43, 0")
    a(f"s_cselect_b32 s24, {NA1*4096}, 0")
    a(f"s_cselect_b32 s25, {NA1*64*2048}, 0")
    a(f"s_cselect_b32 s28, {NB//4 - 1}, {(NA1+NA2)//4 - 1}")
    a("s_mov_b32 s30, 0")
    a("s_waitcnt lgkmcnt(0)")
    stamp(a, 1)
    srd(a, 12, 6, 7 * MB)
    srd(a, 16, 62, WS_SIZE)
    srd(a, 8, 58, 4 * MB)
    srd(a, 64, 60, 256)
    C = CoreK(a)
    for st in range(3):
        for f in C.dma(st): f()
    a("s_lshl_b32 s48, s42, 7")
    a("s_lshl_b32 s49, s21, 6")
    a("s_add_u32 s46, s48, s49")
    a("s_lshl_b32 s48, s46, 3")
    a(f"s_add_u32 s48, s48, {WS_G}")
    a("v_lshlrev_b32 v18, 3, v2")
    for tt in range(4):
        a.vmem(f"buffer_load_dwordx2 v[{24+2*tt}:{25+2*tt}], v18, s[16:19], s48 offen offset:{128*tt}", "gate")
    a("s_lshl_b32 s50, s42, 2")
    a("s_lshl_b32 s51, s21, 1")
    a("s_add_u32 s50, s50, s51")
    a("s_lshl_b32 s50, s50, 16")
    a("s_lshl_b32 s51, s44, 1")
    a("s_add_u32 s51, s51, s22")
    a("s_lshl_b32 s51, s51, 12")
    a("s_add_u32 s50, s50, s51")
    a("s_lshl_b32 s51, s23, 10")
    a("s_add_u32 s50, s50, s51")
    a("s_cmp_eq_u32 s43, 0")
    a(f"s_mov_b32 s51, {WS_PA}")
    a(f"s_cselect_b32 s51, {WS_X1}, s51")
    a("s_add_u32 s36, s50, s51")
    a("s_add_u32 s37, s36, 65536")
    for i in range(64): a(f"v_mov_b32 v{K_ACC+i}, 0")
    a.wait_vm(("st", 0))
    a("s_barrier")
    stamp(a, 2)
    C.period(0, dma=True)
    for s in range(1, 5): C.period(s, dma=True)
    stamp(a, 3)
    a("s_sub_u32 s28, s28, 1")
    a("s_mov_b32 s30, 1")
    vm_top = list(a.vm)
    a.lines.append(".p2align 6")
    a.label("L_k4_loop")
    a("s_cmp_eq_u32 s43, 0")
    a("s_cbranch_scc1 L_k4_nosw")
    a(f"s_cmp_eq_u32 s30, {NA1//4 - 1}")
    a("s_cbranch_scc1 L_k4_sw_dma")
    a(f"s_cmp_eq_u32 s30, {NA1//4}")
    a("s_cbranch_scc1 L_k4_sw_scale")
    a.label("L_k4_nosw")
    lt = [lambda: a("s_add_u32 s30, s30, 1"), lambda: a("s_sub_u32 s28, s28, 1"), lambda: a("s_cmp_lg_u32 s28, 0")]
    for s in range(5, 9): C.period(s, dma=True, extra=({15: lt} if s == 8 else None))
    assert [(t[0], t[1] - 4) for t in a.vm] == vm_top, (a.vm, vm_top)
    a("s_cbranch_scc1 L_k4_loop")
    stamp(a, 4)
    a.vm = [("st", 38)] * 4 + [("st", 39)] * 4
    def poll_issue():
        a("s_lshr_b32 s48, s47, 5")
        a("s_lshl_b32 s48, s48, 2")
        a("v_mov_b32 v18, 0")
        a.vmem("buffer_load_dword v19, v18, s[64:67], s48 offen sc1", "poll")
    a("s_lshl_b32 s56, s47, 15")
    a("s_lshl_b32 s49, s20, 12")
    a("s_add_u32 s56, s56, s49")
    a(f"s_add_u32 s56, s56, {WS_PART}")
    a("s_and_b32 s52, s47, 31")
    a("s_lshr_b32 s53, s47, 5")
    a("s_lshl_b32 s53, s53, 2")
    a("s_mov_b32 s55, 0")
    def early():
        a("s_cmp_eq_u32 s43, 0")
        a("s_cbranch_scc0 L_k4_noearly")
        for tt in range(4):
            a(f"buffer_load_dwordx4 v[{176+4*tt}:{179+4*tt}], v20, s[16:19], s{36 + (tt>>1)} offen offset:{2048*(tt&1)}")
        a("v_readfirstlane_b32 s54, v19")
        a("s_lshr_b32 s54, s54, s52")
        a("s_and_b32 s55, s54, 1")
        a("s_cbranch_scc0 L_k4_noearly")
        for i in range(4):
            a(f"buffer_load_dwordx4 v[{160+4*i}:{163+4*i}], v20, s[16:19], s56 offen offset:{1024*i} sc1")
        a.label("L_k4_noearly")
    C.period(37, dma=False, extra={8: [poll_issue]})
    C.period(38, dma=False, extra={16: [lambda: a.wait_vm("poll")]})
    C.period(39, dma=False, last=True, extra={0: [early]})
    for f in C.mfmas(39): f()
    stamp(a, 5)
    a("s_barrier")
    a("s_nop 3")
    a("s_lshl_b32 s48, s20, 13")
    a("v_add_u32 v21, s48, v20")
    a("s_xor_b32 s48, s20, 4")
    a("s_lshl_b32 s48, s48, 13")
    a("v_add_u32 v22, s48, v20")
    a("s_cmp_eq_u32 s23, 0")
    a("s_cbranch_scc0 L_k4_x1")
    for i in range(8): a(f"ds_write_b128 v21, v[{K_ACC+32+4*i}:{K_ACC+35+4*i}] offset:{1024*i}")
    a("s_branch L_k4_x2")
    a.label("L_k4_x1")
    for i in range(8): a(f"ds_write_b128 v21, v[{K_ACC+4*i}:{K_ACC+3+4*i}] offset:{1024*i}")
    a("s_waitcnt lgkmcnt(0)")
    for i in range(32): a(f"v_mov_b32 v{K_ACC+i}, v{K_ACC+32+i}")
    a.label("L_k4_x2")
    a("s_waitcnt lgkmcnt(0)")
    a("s_barrier")
    for i in range(8): a(f"ds_read_b128 v[{K_ACC+32+4*i}:{K_ACC+35+4*i}], v22 offset:{1024*i}")
    a("s_cmp_eq_u32 s43, 0")
    a("s_cbranch_scc1 L_k4_main_ep")
    a("s_waitcnt lgkmcnt(0)")
    for i in range(32): a(f"v_add_f32 v{K_ACC+i}, v{K_ACC+i}, v{K_ACC+32+i}")
    for tt in range(4):
        t = 32 + 4 * tt
        d0, d1 = K_ACC + 4 * tt, K_ACC + 4 * (4 + tt)
        a(f"v_cvt_pk_bf16_f32 v{t}, v{d0}, v{d0+1}")
        a(f"v_cvt_pk_bf16_f32 v{t+1}, v{d0+2}, v{d0+3}")
        a(f"v_cvt_pk_bf16_f32 v{t+2}, v{d1}, v{d1+1}")
        a(f"v_cvt_pk_bf16_f32 v{t+3}, v{d1+2}, v{d1+3}")
        a(f"buffer_store_dwordx4 v[{t}:{t+3}], v20, s[16:19], s56 offen offset:{1024*tt} sc1")
    a("s_waitcnt vmcnt(0)")
    a("s_barrier")
    a("s_cmp_lg_u32 s20, 0")
    a("s_cbranch_scc1 L_k4_fin")
    a("s_and_b32 s48, s47, 31")
    a("s_lshl_b32 s48, 1, s48")
    a("v_mov_b32 v19, s48")
    a("s_lshr_b32 s48, s47, 5")
    a("s_lshl_b32 s48, s48, 2")
    a("v_mov_b32 v18, 0")
    a("s_mov_b64 exec, 1")
    a("buffer_atomic_or v19, v18, s[64:67], s48 offen")
    a("s_branch L_k4_fin")
    a.label("L_k4_main_ep")
    a("s_cmp_eq_u32 s55, 1")
    a("s_cbranch_scc1 L_k4_have")
    a("buffer_load_dword v19, v18, s[64:67], s53 offen sc1")
    a.label("L_k4_have")
    a("s_waitcnt vmcnt(4) lgkmcnt(0)")
    a("s_waitcnt vmcnt(1)") if False else None
    for i in range(32): a(f"v_add_f32 v{K_ACC+i}, v{K_ACC+i}, v{K_ACC+32+i}")
    a("s_cmp_eq_u32 s55, 1")
    a("s_cbranch_scc1 L_k4_have2")
    a("s_waitcnt vmcnt(1)")
    a.label("L_k4_have2")
    for tt in range(4):
        for cl in range(2):
            for w in range(2):
                src = 176 + 4 * tt + 2 * cl + w
                d = K_ACC + 4 * (4 * cl + tt) + 2 * w
                a(f"v_lshlrev_b32 v48, 16, v{src}")
                a(f"v_and_b32 v49, 0xffff0000, v{src}")
                a(f"v_add_f32 v{d}, v{d}, v48")
                a(f"v_add_f32 v{d+1}, v{d+1}, v49")
    a("s_cmp_eq_u32 s55, 1")
    a("s_cbranch_scc1 L_k4_have3")
    a.label("L_k4_poll")
    a("s_waitcnt vmcnt(0)")
    a("v_readfirstlane_b32 s54, v19")
    a("s_lshr_b32 s54, s54, s52")
    a("s_and_b32 s54, s54, 1")
    a("s_cbranch_scc1 L_k4_pollok")
    a("s_sleep 1")
    a("buffer_load_dword v19, v18, s[64:67], s53 offen sc1")
    a("s_branch L_k4_poll")
    a.label("L_k4_pollok")
    for i in range(4):
        a(f"buffer_load_dwordx4 v[{160+4*i}:{163+4*i}], v20, s[16:19], s56 offen offset:{1024*i} sc1")
    a.label("L_k4_have3")
    a("v_lshrrev_b32 v48, 1, v3")
    a("v_and_b32 v49, 1, v3")
    a("v_lshl_add_u32 v48, v49, 1, v48")
    a("v_lshlrev_b32 v48, 4, v48")
    a("v_lshl_add_u32 v48, v2, 11, v48")
    a("s_lshl_b32 s50, s46, 11")
    a("s_lshl_b32 s51, s44, 8")
    a("s_add_u32 s50, s50, s51")
    a("s_lshl_b32 s51, s22, 7")
    a("s_add_u32 s50, s50, s51")
    a("s_lshl_b32 s51, s23, 6")
    a("s_add_u32 s50, s50, s51")
    a("s_waitcnt vmcnt(0)")
    for tt in range(4):
        for cl in range(2):
            for w in range(2):
                src = 160 + 4 * tt + 2 * cl + w
                d = K_ACC + 4 * (4 * cl + tt) + 2 * w
                a(f"v_lshlrev_b32 v50, 16, v{src}")
                a(f"v_and_b32 v51, 0xffff0000, v{src}")
                a(f"v_fma_f32 v{d}, v{d}, v{25+2*tt}, v50")
                a(f"v_fma_f32 v{d+1}, v{d+1}, v{25+2*tt}, v51")
        t = 32 + 4 * tt
        d0, d1 = K_ACC + 4 * tt, K_ACC + 4 * (4 + tt)
        a(f"v_cvt_pk_bf16_f32 v{t}, v{d0}, v{d0+1}")
        a(f"v_cvt_pk_bf16_f32 v{t+1}, v{d0+2}, v{d0+3}")
        a(f"v_cvt_pk_bf16_f32 v{t+2}, v{d1}, v{d1+1}")
        a(f"v_cvt_pk_bf16_f32 v{t+3}, v{d1+2}, v{d1+3}")
        a("s_nop 1")
        a(f"v_permlane16_swap_b32 v{t}, v{t+2}")
        a(f"v_permlane16_swap_b32 v{t+1}, v{t+3}")
        a("s_nop 1")
        a(f"buffer_store_dwordx4 v[{t}:{t+3}], v48, s[8:11], s50 offen")
        a("s_add_u32 s50, s50, 32768")
    a.label("L_k4_fin")
    if gen2.STAMP: a("s_mov_b64 exec, -1"); a("s_waitcnt vmcnt(0)")
    stamp(a, 6); stamp(a, 7); stamp_dump(a, 8, 3)
    a.label("L_k4_end")
    a("s_endpgm")
    a.label("L_k4_sw_dma")
    if WOHALF:
        for tt in range(4):
            a(f"buffer_load_dwordx4 v[{160+4*tt}:{163+4*tt}], v20, s[16:19], s{36 + (tt>>1)} offen offset:{2048*(tt&1)}")
    a(f"v_mov_b32 v{K_XD}, v7")
    a("s_mov_b32 s12, s4")
    a("s_mov_b32 s13, s5")
    a(f"s_mov_b32 s14, {2*MB}")
    a(f"s_mov_b32 s24, {(16-NA2)*4096}")
    a(f"s_mov_b32 s25, {(16-NA2)*64*2048}")
    a("s_branch L_k4_nosw")
    a.label("L_k4_sw_scale")
    a("s_nop 7")
    for c in range(4):
        for tt in range(4):
            for i in range(4):
                d = K_ACC + 4 * (4 * c + tt) + i
                a(f"v_mul_f32 v{d}, v{d}, v{25+2*tt}")
    if not WOHALF:
        a("s_nop 1")
        a("s_branch L_k4_nosw")
    a("s_cmp_eq_u32 s23, 0")
    a("s_cbranch_scc0 L_k4_pa1")
    for kh in range(2):
        if kh: a.label("L_k4_pa1")
        for tt in range(4):
            for cl in range(2):
                for w in range(2):
                    src = 160 + 4 * tt + 2 * cl + w
                    d = K_ACC + 4 * (4 * (2 * kh + cl) + tt) + 2 * w
                    a(f"v_lshlrev_b32 v21, 16, v{src}")
                    a(f"v_and_b32 v22, 0xffff0000, v{src}")
                    a(f"v_add_f32 v{d}, v{d}, v21")
                    a(f"v_add_f32 v{d+1}, v{d+1}, v22")
        a("s_nop 1")
        a("s_branch L_k4_nosw")
    return name, a.text(), dict(grid=256, block=512, lds=4 * SK, vgpr=192)
```

```python
from gen2 import *
import gen2
from k1gen import Rec
from k34gen import CoreK, SK, K_XD, K_WD, K_XR, K_WR, K_XF, K_WF, K_ACC
HF = os.environ.get('HF', 'sc1 ')
D_H3 = 32
SPIN_MAX = 1 << 22
OUTF = os.environ.get('OUTF', 'nt')
NA4, NB4 = [int(x) for x in os.environ.get("NAB", "34,38").split(",")]
EXTRA = NA4 % 4
assert NB4 % 4 == EXTRA and EXTRA in (0, 2) and NA4 + NB4 == 72

def spin_wait(a, vdst, vzero, soff_sgpr, target, tag, issued=True):
    lab = a.newlabel("sp" + tag); ok = a.newlabel("spok" + tag)
    a("s_mov_b32 s91, 0")
    a.label(lab)
    a(f"v_readfirstlane_b32 s90, v{vdst}")
    a(f"s_cmp_ge_u32 s90, {target}")
    a(f"s_cbranch_scc1 {ok}")
    a("s_add_u32 s91, s91, 1")
    a(f"s_cmp_ge_u32 s91, {SPIN_MAX}")
    a(f"s_cbranch_scc1 {ok}")
    a("s_sleep 4")
    a(f"buffer_load_dword v{vdst}, v{vzero}, s[16:19], s{soff_sgpr} offen sc1")
    a("s_waitcnt vmcnt(0)")
    a(f"s_branch {lab}")
    a.label(ok)

class CoreK2(CoreK):
    def __init__(self, a): self.a = a; self.xf = ""
    def mfmas(self, s):
        a = self.a; buf = s % 2
        o = []
        for c in range(4):
            for tt in range(4):
                def f(c=c, tt=tt):
                    a.wait_lgkm(("x", s, tt), ("w", s, c))
                    A = K_WF + 16 * buf + 4 * c; B = K_XF + 16 * buf + 4 * tt; d = K_ACC + 4 * (4 * c + tt)
                    cc = "0" if s == 0 else f"v[{d}:{d+3}]"
                    a(f"v_mfma_f32_16x16x32_bf16 v[{d}:{d+3}], v[{A}:{A+3}], v[{B}:{B+3}], {cc}")
                o.append(f)
        return o
    def dma(self, stage):
        a = self.a; t = ("st", stage); sl = (stage % 4) * SK
        o = self.dma0(stage)
        return (o[3:6] + o[0:3] + o[6:]) if os.environ.get("KWFIRST") else o
    def dma0(self, stage):
        a = self.a; t = ("st", stage); sl = (stage % 4) * SK
        return [
            lambda: a(f"s_add_u32 m0, s29, {sl}"),
            lambda: a.vmem(f"buffer_load_dwordx4 v{K_XD}, s[16:19], s24 offen {HF}lds", t),
            lambda: a.vmem(f"buffer_load_dwordx4 v{K_XD}, s[16:19], s24 offen offset:1024 {HF}lds", t),
            lambda: a(f"s_add_u32 m0, s29, {sl + 16384}"),
            lambda: a.vmem(f"buffer_load_dwordx4 v{K_WD}, s[12:15], s25 offen lds", t),
            lambda: a.vmem(f"buffer_load_dwordx4 v{K_WD+1}, s[12:15], s25 offen offset:1024 lds", t),
            lambda: a("s_add_u32 s24, s24, 4096"),
            lambda: a(f"s_add_u32 s25, s25, {64*2048}"),
        ]

def p4_early(a):
    R = Rec(a)
    R("s_and_b32 s43, s40, 1")
    R("s_lshr_b32 s42, s40, 1")
    R("s_lshl_b32 s42, s42, 2")
    R("s_and_b32 s44, s41, 3")
    R("s_add_u32 s42, s42, s44")
    R("s_lshr_b32 s44, s41, 2")
    R("s_lshl_b32 s47, s42, 3")
    R("s_add_u32 s47, s47, s44")
    R("v_lshlrev_b32 v224, 4, v1")
    R("s_lshl_b32 s55, s42, 2")
    R("s_lshr_b32 s56, s20, 1")
    R("s_add_u32 s55, s55, s56")
    R("s_lshl_b32 s57, s22, 11")
    R("s_mul_i32 s56, s55, 229376")
    R("s_add_u32 s56, s56, s57")
    R(f"s_add_u32 s56, s56, {WS_H3}")
    R("v_add_u32 v7, s56, v224")
    R("s_lshl_b32 s56, s55, 16")
    R("s_add_u32 s56, s56, s57")
    R(f"s_add_u32 s56, s56, {WS_O}")
    R(f"v_add_u32 v{K_XD}, s56, v224")
    R("v_lshlrev_b32 v225, 1, v3")
    R("v_xor_b32 v225, v2, v225")
    R("v_xor_b32 v226, 8, v225")
    R("s_lshl_b32 s55, s20, 3")
    R("v_add_u32 v227, s55, v3")
    R("v_lshlrev_b32 v227, 11, v227")
    PAIR = int(os.environ.get("PAIR", "-1"))
    if PAIR >= 0:
        R(f"s_add_u32 s56, s44, {PAIR}", "s_and_b32 s56, s56, 7", "s_add_u32 s56, s56, 8")
        R("s_mov_b32 s55, s44")
    else:
        R("s_lshl_b32 s55, s44, 1", "s_add_u32 s56, s55, 1")
    R("s_cmp_eq_u32 s22, 0", "s_cselect_b32 s45, s55, s56")
    R("s_lshl_b32 s55, s55, 7", "s_lshl_b32 s56, s56, 7")
    R("v_and_b32 v228, 7, v225")
    R("v_lshl_add_u32 v227, v228, 4, v227")
    R("v_mov_b32 v228, s55")
    R("v_mov_b32 v229, s56")
    R("v_cmp_gt_u32 vcc, 8, v225", "s_nop 1", "v_cndmask_b32 v230, v229, v228, vcc", "v_cndmask_b32 v231, v228, v229, vcc")
    R(f"v_add_u32 v{K_WD}, v227, v230")
    R("v_add_u32 v231, v227, v231")
    R(f"v_add_u32 v{K_WD+1}, {4*2048-1024}, v231")
    R("s_lshl_b32 s29, s20, 11")
    R(f"s_mul_i32 s24, s43, {8*4096}")
    R(f"s_mul_i32 s25, s43, {8*64*2048}")
    R("s_mov_b32 s12, s70", "s_mov_b32 s13, s71", f"s_mov_b32 s14, {2*MB}", "s_mov_b32 s15, 0x00020000")
    return R.ops

def p4_setup(a0):
    a = Rec(a0)
    a("s_lshr_b32 s23, s20, 2")
    a("s_bfe_u32 s21, s20, 0x10001")
    a("v_lshlrev_b32 v20, 4, v1")
    a("s_lshl_b32 s49, s21, 13")
    a("s_lshl_b32 s57, s23, 10")
    a("s_add_u32 s49, s49, s57")
    a(f"v_add_u32 v{K_XR}, s49, v20")
    a(f"v_add_u32 v{K_XR+1}, {2*SK}, v{K_XR}")
    a("v_bfe_u32 v22, v1, 2, 2")
    a("v_lshl_add_u32 v22, v3, 2, v22")
    a("v_and_b32 v23, 7, v22")
    a("s_lshl_b32 s49, s22, 2")
    a("v_xor_b32 v23, s49, v23")
    a("v_lshlrev_b32 v22, 8, v22")
    a("v_lshl_add_u32 v22, v23, 5, v22")
    a("v_and_b32 v23, 3, v1")
    a("v_lshl_add_u32 v22, v23, 3, v22")
    a("s_lshl_b32 s49, s23, 13")
    a("s_add_u32 s49, s49, 16384")
    a(f"v_add_u32 v{K_WR}, s49, v22")
    for c in range(1, 4): a(f"v_xor_b32 v{K_WR+c}, {c<<5}, v{K_WR}")
    for c in range(4): a(f"v_add_u32 v{K_WR+4+c}, {2*SK}, v{K_WR+c}")
    a("s_cmp_eq_u32 s43, 0", f"s_cselect_b32 s28, {(NB4-EXTRA)//4-2}, {(NA4-EXTRA)//4-2}")
    a("s_lshl_b32 s49, s42, 7")
    a("s_lshl_b32 s57, s21, 6")
    a("s_add_u32 s46, s49, s57")
    a("s_lshl_b32 s50, s42, 2")
    a("s_lshl_b32 s51, s21, 1")
    a("s_add_u32 s50, s50, s51")
    a("s_lshl_b32 s50, s50, 16")
    a("s_lshl_b32 s51, s45, 12")
    a("s_add_u32 s50, s50, s51")
    a("s_lshl_b32 s51, s23, 10")
    a("s_add_u32 s50, s50, s51")
    a(f"s_add_u32 s36, s50, {WS_X1}")
    a("s_add_u32 s37, s36, 65536")
    a("s_lshr_b32 s38, s42, 1")
    a("s_lshl_b32 s38, s38, 8")
    a(f"s_add_u32 s38, s38, {WS_FLAG}")
    return a.ops

def p3_early_emit(a, remap=None):
    a("s_and_b32 s42, s60, 7")
    a("s_mov_b32 s39, s42")
    a("s_lshr_b32 s43, s40, 1")
    a("s_mul_i32 s43, s43, 7")
    a("s_lshr_b32 s44, s60, 3")
    a("s_add_u32 s44, s44, s43")
    a("s_movk_i32 s23, 7168")
    a("s_lshl_b32 s45, s44, 8")
    a("s_lshl_b32 s46, s42, 3")
    if remap:
        a(f"v_and_b32 v{remap[2]}, 15, v1")
        a(f"v_lshrrev_b32 v{remap[3]}, 4, v1")
    sym_setup16(a, "frag", 23, 45, 46, 1024, remap=remap)
    a(f"s_add_u32 s8, s62, {WS_X1}")
    a("s_addc_u32 s9, s63, 0")
    a(f"s_mov_b32 s10, {4*MB}")
    a("s_mov_b32 s11, 0x00020000")
    srd(a, 12, 68, 7 * MB)
    a(f"s_mov_b32 s{S_SLOT}, 0")
    Core16(a, "frag", role="S", xflag=HF).prologue_dma()

def phase3(a, C4, merged=False):
    from k2n import flag_add, F_O, F_CS
    a("v_and_b32 v2, 15, v1")
    a("v_lshrrev_b32 v3, 4, v1")
    a("s_lshr_b32 s21, s20, 1")
    a(f"s_mov_b32 s49, s{S_SLOT}")
    read_addr_setup16(a, "frag")
    a(f"s_mov_b32 s{S_SLOT}, s49")
    def addr_ops():
        r = Rec(a)
        r("s_lshl_b32 s48, s21, 1")
        r("s_add_u32 s48, s48, s46")
        r("s_mul_i32 s48, s48, 229376")
        r("s_lshl_b32 s49, s44, 1")
        r("s_add_u32 s49, s49, s22")
        r("s_lshl_b32 s49, s49, 12")
        r("s_add_u32 s48, s48, s49")
        r(f"s_add_u32 s48, s48, {WS_H3}")
        r("v_lshlrev_b32 v28, 4, v1")
        r("v_add_u32 v29, 2048, v28")
        r("v_add_u32 v30, 229376, v28")
        r("v_add_u32 v31, 229376, v29")
        r("s_lshl_b32 s51, s42, 8", "s_lshl_b32 s52, s21, 6", "s_add_u32 s51, s51, s52", "s_lshl_b32 s51, s51, 3", f"s_add_u32 s53, s51, {WS_ST1}", f"s_add_u32 s51, s51, {WS_G + 4}")
        r("v_lshlrev_b32 v19, 3, v2")
        for tt in range(4):
            r.f(lambda tt=tt: a.vmem(f"buffer_load_dword v{220+tt}, v19, s[16:19], s51 offen offset:{128*tt} sc1", "aux"))
        r("s_lshl_b32 s54, s44, 9", "s_lshl_b32 s52, s22, 8", "s_add_u32 s54, s54, s52", f"s_add_u32 s54, s54, {WS_CSF}")
        r("v_lshlrev_b32 v18, 4, v3")
        return r.ops
    def late_loads():
        r = Rec(a)
        for tt in range(4):
            r.f(lambda tt=tt: a.vmem(f"buffer_load_dwordx2 v[{208+2*tt}:{209+2*tt}], v19, s[16:19], s53 offen offset:{128*tt} sc1", "late"))
        for c in range(4):
            r.f(lambda c=c: a.vmem(f"buffer_load_dwordx4 v[{192+4*c}:{195+4*c}], v18, s[16:19], s54 offen offset:{64*c} sc1", "late"))
        return r.ops
    core = Core16(a, "frag", tag="k3", role="S", xflag=HF)
    def sigs():
        flag_add(a, [f"s_add_u32 s48, s37, {F_O}", "s_lshl_b32 s48, s48, 8", f"s_add_u32 s48, s48, {WS_FLAG}"], "o")
    def polls():
        lab = a.newlabel("np3")
        a("s_lshr_b32 s38, s40, 1")
        a("s_lshl_b32 s38, s38, 1")
        a("s_bfe_u32 s50, s41, 0x10001")
        a("s_add_u32 s38, s38, s50")
        a(f"s_add_u32 s38, s38, {F_O}")
        a("s_lshl_b32 s38, s38, 8")
        a(f"s_add_u32 s38, s38, {WS_FLAG}")
        a(f"s_mov_b32 s34, {WS_FLAG + F_CS*256}")
        a("v_mov_b32 v24, 0")
        a("s_cmp_lg_u32 s20, 0")
        a(f"s_cbranch_scc1 {lab}")
        a("buffer_load_dword v25, v24, s[16:19], s38 offen sc1")
        a("buffer_load_dword v26, v24, s[16:19], s34 offen" + ("" if os.environ.get("PLAIN2", "0") == "1" else " sc1"))
        a.label(lab)
    def chks():
        lab = a.newlabel("nc3")
        a("s_cmp_lg_u32 s20, 0")
        a(f"s_cbranch_scc1 {lab}")
        a("s_waitcnt vmcnt(6)")
        spin_wait(a, 25, 24, 38, 32, "o")
        spin_wait(a, 26, 24, 34, 32, "cs")
        a.label(lab)
    hk = dict(prebar3=["ost"], after3=sigs, spread12=addr_ops, end12=polls, end13=chks,
              spreadN2=late_loads, spreadN1=lambda: p4_early(a))
    def final_hook():
        a.wait_all(vm=False)
        a("s_barrier")
        ops = []
        for st in range(3): ops += C4.dma(st)
        return ops + p4_setup(a)
    hk["final"] = final_hook
    if os.environ.get("ST3"):
        stamp(a, 1)
        hk.update(start=lambda: stamp(a, 2), after3=lambda: (sigs(), stamp(a, 3)), pre_tail=lambda: stamp(a, 4))
    core.mainloop(hooks=hk, npeel=4, ntail=2)
    a.wait_vm("late")
    stamp(a, 1 if os.environ.get("ST4") else 5)
    ln_gelu_epilogue(a, 48, 3584, [28, 29, 30, 31], None, [(208 + 2 * t, 209 + 2 * t) for t in range(4)], "regs", scale=[220, 221, 222, 223], tag="h3st")

def service(a):
    from k2n import flag_add, F_X1, F_CS
    a("s_lshr_b32 s50, s40, 1")
    a("s_lshl_b32 s50, s50, 3")
    a("s_add_u32 s50, s50, s60")
    a("s_sub_u32 s50, s50, 56")
    a("s_mov_b32 s96, s68"); a("s_mov_b32 s97, s69"); a(f"s_mov_b32 s98, {7*MB}"); a("s_mov_b32 s99, 0x00020000")
    a("v_mul_u32_u24 v16, 147, v1")
    a("v_lshrrev_b32 v16, 11, v16")
    a("v_mul_u32_u24 v17, 14, v16")
    a("v_sub_u32 v17, v1, v17")
    a("v_mul_u32_u24 v18, 7168, v16")
    a("v_lshl_add_u32 v18, v17, 4, v18")
    a("v_cmp_le_u32 vcc, 56, v1")
    a("v_mov_b32 v19, 0x7fffffff")
    a("s_mul_i32 s51, s20, {}".format(128 * 7168))
    a("v_cndmask_b32 v18, v18, v19, vcc")
    a("s_mul_i32 s52, s50, 224")
    a("s_add_u32 s51, s51, s52")
    a("v_mov_b32 v28, 0x00003f80")
    a("v_mov_b32 v29, 0x3f800000")
    for i in range(8): a(f"v_mov_b32 v{32+i}, 0")
    for i in range(32):
        a(f"buffer_load_dwordx4 v[{64+4*i}:{67+4*i}], v18, s[96:99], s51 offen")
        a(f"s_add_u32 s51, s51, {4*7168}")
    for i in range(32):
        if i % 4 == 0: a(f"s_waitcnt vmcnt({28-i})")
        for q in range(4):
            a(f"v_dot2_f32_bf16 v{32+2*q}, v{64+4*i+q}, v28, v{32+2*q}")
            a(f"v_dot2_f32_bf16 v{33+2*q}, v{64+4*i+q}, v29, v{33+2*q}")
    a("v_mul_u32_u24 v19, 448, v16")
    a("v_lshl_add_u32 v19, v17, 5, v19")
    a("s_mul_i32 s51, s20, 1792")
    a("v_add_u32 v19, s51, v19")
    a("v_lshlrev_b32 v20, 5, v1")
    a("v_add_u32 v20, 32768, v20")
    a("v_cndmask_b32 v19, v19, v20, vcc")
    a("ds_write_b128 v19, v[32:35]")
    a("ds_write_b128 v19, v[36:39] offset:16")
    a("s_lshr_b32 s38, s50, 2")
    a(f"s_add_u32 s38, s38, {F_X1}")
    a("s_lshl_b32 s38, s38, 8")
    a(f"s_add_u32 s38, s38, {WS_FLAG}")
    a("s_cmp_lg_u32 s20, 0")
    a("s_cbranch_scc1 L_sv_w")
    a("v_mov_b32 v24, 0")
    a("v_mov_b32 v25, 0")
    a("s_nop 0")
    spin_wait(a, 25, 24, 38, 32, "svx")
    a.label("L_sv_w")
    a("s_waitcnt lgkmcnt(0)")
    a("s_barrier")
    a("s_lshl_b32 s51, s50, 9")
    a("s_lshl_b32 s52, s20, 16")
    a("s_add_u32 s51, s51, s52")
    a(f"s_add_u32 s51, s51, {WS_P2}")
    a("v_lshlrev_b32 v21, 3, v1")
    for q in range(4):
        a(f"buffer_load_dwordx2 v[{40+2*q}:{41+2*q}], v21, s[16:19], s51 offen sc1")
        a("s_add_u32 s51, s51, 16384")
    a("v_and_b32 v22, 127, v0")
    a("v_lshlrev_b32 v22, 2, v22")
    for q in range(32): a(f"ds_read_b32 v{64+q}, v22 offset:{448*q}")
    a("s_waitcnt lgkmcnt(0)")
    for w in (16, 8, 4, 2, 1):
        for q in range(w): a(f"v_add_f32 v{64+q}, v{64+q}, v{64+w+q}")
    a("v_mov_b32 v23, 112")
    a("v_cmp_lt_u32 vcc, v0, v23")
    a("v_mov_b32 v23, 0x7fffffff")
    a("s_mul_i32 s51, s50, 448")
    a(f"s_add_u32 s51, s51, {WS_CSF}")
    a("v_cndmask_b32 v22, v23, v22, vcc")
    a("s_waitcnt vmcnt(0)")
    a("buffer_store_dword v64, v22, s[16:19], s51 offen sc1")
    for q in range(1, 4):
        a(f"v_add_f32 v40, v40, v{40+2*q}")
        a(f"v_add_f32 v41, v41, v{41+2*q}")
    a("s_lshl_b32 s51, s20, 9")
    a("s_add_u32 s51, s51, 65536")
    a("v_add_u32 v23, s51, v21")
    a("ds_write_b64 v23, v[40:41]")
    a("s_waitcnt lgkmcnt(0)")
    a("s_barrier")
    a("v_add_u32 v23, 65536, v21")
    for q in range(8): a(f"ds_read_b64 v[{64+2*q}:{65+2*q}], v23 offset:{512*q}")
    a("s_waitcnt lgkmcnt(0)")
    for q in range(1, 8):
        a(f"v_add_f32 v64, v64, v{64+2*q}")
        a(f"v_add_f32 v65, v65, v{65+2*q}")
    a(f"v_mul_f32 v64, {f2u(1/1024)}, v64")
    a(f"v_mul_f32 v65, {f2u(1/1024)}, v65")
    a("v_fma_f32 v65, -v64, v64, v65")
    a("v_max_f32 v65, 0, v65")
    a(f"v_add_f32 v65, {f2u(1e-5)}, v65")
    a("v_rsq_f32 v65, v65")
    a("s_lshl_b32 s51, s50, 9")
    a(f"s_add_u32 s51, s51, {WS_ST1}")
    a("s_cmp_lg_u32 s20, 0")
    a("s_cbranch_scc1 L_sv_ns")
    a("buffer_store_dwordx2 v[64:65], v21, s[16:19], s51 offen sc1")
    a.label("L_sv_ns")
    a("s_waitcnt vmcnt(0)")
    a("s_barrier")
    flag_add(a, [f"s_mov_b32 s48, {WS_FLAG + F_CS*256}"], "cs")
    a("s_lshl_b32 s51, s50, 3")
    a("s_add_u32 s51, s51, s20")
    a("v_lshlrev_b32 v26, 6, v1")
    a("s_mov_b32 s96, s72"); a("s_mov_b32 s97, s73"); a(f"s_mov_b32 s98, {7*MB}")
    a("s_lshl_b32 s52, s51, 12")
    for i in (0, 3, 1, 4, 2, 5, 6):
        a(f"s_add_u32 s53, s52, {i*MB}")
        a("buffer_load_dword v27, v26, s[96:99], s53 offen")

def phase4(a, C, had3, st=(4, 5, 6)):
    a("v_mov_b32 v18, 0")
    a.wait_all()
    a("s_barrier")
    if st[0] is not None: stamp(a, st[0])
    def signal():
        lab = a.newlabel("nosig3")
        a("s_cmp_ge_u32 s60, 56")
        a(f"s_cbranch_scc1 {lab}")
        a("s_cmp_lg_u32 s20, 0")
        a(f"s_cbranch_scc1 {lab}")
        a("s_lshl_b32 s48, s39, 8")
        a(f"s_add_u32 s48, s48, {WS_FLAG}")
        a("v_mov_b32 v19, 1")
        a("s_mov_b64 exec, 1")
        a("buffer_atomic_add v19, v18, s[16:19], s48 offen")
        a("s_mov_b64 exec, -1")
        a.label(lab)
    signal()
    C.period(0, dma=True)
    C.period(1, dma=True)
    C.period(2, dma=True)
    def poll0():
        lab = a.newlabel("nopoll")
        a("s_cmp_lg_u32 s20, 0")
        a(f"s_cbranch_scc1 {lab}")
        a("buffer_load_dword v19, v18, s[16:19], s38 offen sc1")
        a.label(lab)
    def chk0():
        lab = a.newlabel("nochk")
        a("s_cmp_lg_u32 s20, 0")
        a(f"s_cbranch_scc1 {lab}")
        a("s_waitcnt vmcnt(4)")
        spin_wait(a, 19, 18, 38, 28, "h3")
        a.label(lab)
    C.period(3, dma=True, extra={16: [poll0]})
    C.period(4, dma=True, extra={16: [chk0]})
    a(f"v_mov_b32 v{K_XD}, v7")
    a("s_mov_b32 s12, s72")
    a("s_mov_b32 s13, s73")
    a(f"s_mov_b32 s14, {7*MB}")
    a("s_cmp_eq_u32 s43, 0")
    a(f"s_cselect_b32 s24, {(NA4-8)*4096}, 0")
    a(f"s_cselect_b32 s25, {(NA4-8)*64*2048}, 0")
    if st[1] is not None: stamp(a, st[1])
    a.vm = [("st", 6)] * 4 + [("st", 7)] * 4
    vm_top = list(a.vm)
    a.lines.append(".p2align 6")
    a.label("L_p4_loop")
    lt = [lambda: a("s_sub_u32 s28, s28, 1"), lambda: a("s_cmp_lg_u32 s28, 0")]
    for s in range(5, 9): C.period(s, dma=True, extra=({15: lt} if s == 8 else None))
    assert [(t[0], t[1] - 4) for t in a.vm] == vm_top, (a.vm, vm_top)
    a("s_cbranch_scc1 L_p4_loop")
    a.vm = [("st", 38)] * 4 + [("st", 39)] * 4
    a("s_lshl_b32 s56, s47, 15")
    a("s_lshl_b32 s49, s20, 12")
    a("s_add_u32 s56, s56, s49")
    a(f"s_add_u32 s56, s56, {WS_PART}")
    a("s_mov_b32 s52, 0")
    a("s_lshl_b32 s53, s47, 8")
    a(f"s_add_u32 s53, s53, {WS_FLAG + 128*256}")
    a("s_mov_b32 s55, 0")
    def poll_issue():
        a.vmem("buffer_load_dword v19, v18, s[16:19], s53 offen sc1", "poll")
    def early():
        a("s_cmp_eq_u32 s43, 0")
        a("s_cbranch_scc0 L_p4_noearly")
        for tt in range(4):
            a(f"buffer_load_dwordx4 v[{176+4*tt}:{179+4*tt}], v20, s[16:19], s{36 + (tt>>1)} offen offset:{2048*(tt&1)} {HF}")
        a("s_lshl_b32 s48, s46, 3")
        a(f"s_add_u32 s48, s48, {WS_G + 4}")
        a("v_lshlrev_b32 v21, 3, v2")
        for tt in range(4):
            a(f"buffer_load_dword v{24+tt}, v21, s[16:19], s48 offen offset:{128*tt} sc1")
        a("v_readfirstlane_b32 s54, v19")
        a("s_lshr_b32 s54, s54, s52")
        a("s_and_b32 s55, s54, 1")
        a("s_cbranch_scc0 L_p4_noearly")
        for i in range(4):
            a(f"buffer_load_dwordx4 v[{160+4*i}:{163+4*i}], v20, s[16:19], s56 offen offset:{1024*i} sc1")
        a.label("L_p4_noearly")
    for e in range(EXTRA): C.period(37 + e, dma=True)
    T = 37 + EXTRA
    C.period(T, dma=False, extra={8: [poll_issue]})
    C.period(T + 1, dma=False, extra={16: [lambda: a.wait_vm("poll")]})
    C.period(T + 2, dma=False, last=True, extra={0: [early]})
    for f in C.mfmas(T + 2): f()
    if st[2] is not None: stamp(a, st[2])
    a("s_barrier")
    a("s_nop 3")
    a("s_lshl_b32 s48, s20, 13")
    a("v_add_u32 v21, s48, v20")
    a("s_xor_b32 s48, s20, 4")
    a("s_lshl_b32 s48, s48, 13")
    a("v_add_u32 v22, s48, v20")
    a("s_cmp_eq_u32 s23, 0")
    a("s_cbranch_scc0 L_p4_x1")
    for i in range(8): a(f"ds_write_b128 v21, v[{K_ACC+32+4*i}:{K_ACC+35+4*i}] offset:{1024*i}")
    a("s_branch L_p4_x2")
    a.label("L_p4_x1")
    for i in range(8): a(f"ds_write_b128 v21, v[{K_ACC+4*i}:{K_ACC+3+4*i}] offset:{1024*i}")
    a("s_waitcnt lgkmcnt(0)")
    for i in range(32): a(f"v_mov_b32 v{K_ACC+i}, v{K_ACC+32+i}")
    a.label("L_p4_x2")
    a("s_waitcnt lgkmcnt(0)")
    a("s_barrier")
    for i in range(8): a(f"ds_read_b128 v[{K_ACC+32+4*i}:{K_ACC+35+4*i}], v22 offset:{1024*i}")
    a("s_cmp_eq_u32 s43, 0")
    a("s_cbranch_scc1 L_p4_main_ep")
    a("s_waitcnt lgkmcnt(0)")
    for tt in range(4):
        t = 32 + 4 * tt
        d0, d1 = K_ACC + 4 * tt, K_ACC + 4 * (4 + tt)
        for d in (d0, d1):
            for i in range(4): a(f"v_add_f32 v{d+i}, v{d+i}, v{d+32+i}")
        a(f"v_cvt_pk_bf16_f32 v{t}, v{d0}, v{d0+1}")
        a(f"v_cvt_pk_bf16_f32 v{t+1}, v{d0+2}, v{d0+3}")
        a(f"v_cvt_pk_bf16_f32 v{t+2}, v{d1}, v{d1+1}")
        a(f"v_cvt_pk_bf16_f32 v{t+3}, v{d1+2}, v{d1+3}")
        a(f"buffer_store_dwordx4 v[{t}:{t+3}], v20, s[16:19], s56 offen offset:{1024*tt} sc1")
    if os.environ.get("ST4"): stamp(a, 5)
    a("s_waitcnt vmcnt(0)")
    a("s_barrier")
    if os.environ.get("ST4"): stamp(a, 6)
    a("s_cmp_lg_u32 s20, 0")
    a("s_cbranch_scc1 L_p4_fin")
    a("s_lshl_b32 s48, 1, s52")
    a("v_mov_b32 v19, s48")
    a("s_mov_b64 exec, 1")
    a("buffer_atomic_or v19, v18, s[16:19], s53 offen")
    a("s_branch L_p4_fin")
    a.label("L_p4_main_ep")
    a("s_cmp_eq_u32 s55, 1")
    a("s_cbranch_scc1 L_p4_have")
    a("buffer_load_dword v19, v18, s[16:19], s53 offen sc1")
    a("s_waitcnt vmcnt(1) lgkmcnt(0)")
    a.label("L_p4_have")
    a("s_waitcnt vmcnt(4) lgkmcnt(0)")
    for i in range(32): a(f"v_add_f32 v{K_ACC+i}, v{K_ACC+i}, v{K_ACC+32+i}")
    for tt in range(4):
        for cl in range(2):
            for w in range(2):
                src = 176 + 4 * tt + 2 * cl + w
                d = K_ACC + 4 * (4 * cl + tt) + 2 * w
                a(f"v_lshlrev_b32 v48, 16, v{src}")
                a(f"v_and_b32 v49, 0xffff0000, v{src}")
                a(f"v_fma_f32 v{d}, v48, v{24+tt}, v{d}")
                a(f"v_fma_f32 v{d+1}, v49, v{24+tt}, v{d+1}")
    a("s_cmp_eq_u32 s55, 1")
    a("s_cbranch_scc1 L_p4_have3")
    a("s_mov_b32 s91, 0")
    a.label("L_p4_poll")
    a("s_waitcnt vmcnt(0)")
    a("v_readfirstlane_b32 s54, v19")
    a("s_lshr_b32 s54, s54, s52")
    a("s_and_b32 s54, s54, 1")
    a("s_cbranch_scc1 L_p4_pollok")
    a("s_add_u32 s91, s91, 1")
    a(f"s_cmp_ge_u32 s91, {SPIN_MAX}")
    a("s_cbranch_scc1 L_p4_pollok")
    a("s_sleep 1")
    a("buffer_load_dword v19, v18, s[16:19], s53 offen sc1")
    a("s_branch L_p4_poll")
    a.label("L_p4_pollok")
    for i in range(4):
        a(f"buffer_load_dwordx4 v[{160+4*i}:{163+4*i}], v20, s[16:19], s56 offen offset:{1024*i} sc1")
    a.label("L_p4_have3")
    if os.environ.get("ST4"): stamp(a, 5)
    srd(a, 8, 58, 4 * MB)
    a("v_lshrrev_b32 v48, 1, v3")
    a("v_and_b32 v49, 1, v3")
    a("v_lshl_add_u32 v48, v49, 1, v48")
    a("v_lshlrev_b32 v48, 4, v48")
    a("v_lshl_add_u32 v48, v2, 11, v48")
    a("s_lshl_b32 s50, s46, 11")
    a("s_lshl_b32 s51, s45, 7")
    a("s_add_u32 s50, s50, s51")
    a("s_lshl_b32 s51, s23, 6")
    a("s_add_u32 s50, s50, s51")
    a("s_waitcnt vmcnt(0)")
    if os.environ.get("ST4"): stamp(a, 6)
    for tt in range(4):
        for cl in range(2):
            for w in range(2):
                src = 160 + 4 * tt + 2 * cl + w
                d = K_ACC + 4 * (4 * cl + tt) + 2 * w
                a(f"v_lshlrev_b32 v50, 16, v{src}")
                a(f"v_and_b32 v51, 0xffff0000, v{src}")
                a(f"v_add_f32 v{d}, v{d}, v50")
                a(f"v_add_f32 v{d+1}, v{d+1}, v51")
        t = 32 + 4 * tt
        d0, d1 = K_ACC + 4 * tt, K_ACC + 4 * (4 + tt)
        a(f"v_cvt_pk_bf16_f32 v{t}, v{d0}, v{d0+1}")
        a(f"v_cvt_pk_bf16_f32 v{t+1}, v{d0+2}, v{d0+3}")
        a(f"v_cvt_pk_bf16_f32 v{t+2}, v{d1}, v{d1+1}")
        a(f"v_cvt_pk_bf16_f32 v{t+3}, v{d1+2}, v{d1+3}")
        a("s_nop 1")
        a(f"v_permlane16_swap_b32 v{t}, v{t+2}")
        a(f"v_permlane16_swap_b32 v{t+1}, v{t+3}")
        a("s_nop 1")
        a(f"buffer_store_dwordx4 v[{t}:{t+3}], v48, s[8:11], s50 offen {OUTF}")
        a("s_add_u32 s50, s50, 32768")
    a.label("L_p4_fin")

def k34():
    a = Asm(); a.uid = 5000
    name = "k34_kernel"
    a("s_cmp_ge_u32 s2, 256")
    a("s_cbranch_scc1 L_k34_end")
    a("s_load_dwordx2 s[68:69], s[0:1], 48")
    a("s_load_dwordx2 s[70:71], s[0:1], 16")
    a("s_load_dwordx2 s[72:73], s[0:1], 56")
    a("s_load_dwordx2 s[58:59], s[0:1], 72")
    a("s_load_dwordx4 s[60:63], s[0:1], 80")
    code_prefetch(a, name, 1, vd=27, va=26)
    stamp(a, 0)
    lane_setup(a)
    a("s_and_b32 s40, s2, 7")
    a("s_lshr_b32 s41, s2, 3")
    a("s_waitcnt lgkmcnt(0)")
    srd(a, 16, 62, WS_SIZE)
    srd(a, 64, 60, 256)
    C4 = CoreK2(a)
    a("s_cmp_ge_u32 s41, 28")
    a("s_cbranch_scc1 L_k34_skip3")
    a.vm = []
    p3_early_emit(a)
    phase3(a, C4)
    vm3 = list(a.vm)
    a("s_branch L_k34_p4")
    a.label("L_k34_skip3")
    a("s_mov_b32 s39, 0")
    for i in range(1, 4): stamp(a, i)
    for f in p4_early(a): f()
    a.vm = []
    for st in range(3):
        for f in C4.dma(st): f()
    a("s_waitcnt vmcnt(0)")
    a.label("L_k34_p4")
    a.vm = vm3; a.lgkm = []
    phase4(a, C4, True)
    if gen2.STAMP: a("s_mov_b64 exec, -1"); a("s_waitcnt vmcnt(0)")
    stamp(a, 7); stamp_dump(a, 8, 2)
    a.label("L_k34_end")
    a("s_endpgm")
    return name, a.text(), dict(grid=256, block=512, lds=163840, vgpr=240)

def k234():
    from k2n import phaseA, phaseA_fallback, flag_add, F_O, F_CS, A_K
    a = Asm(); a.uid = 6000
    name = "k234_kernel"
    a("s_cmp_ge_u32 s2, 256")
    a("s_cbranch_scc1 L_k234_end")
    a("s_load_dwordx2 s[4:5], s[0:1], 0")
    a("s_load_dwordx2 s[6:7], s[0:1], 40")
    a("s_load_dwordx2 s[68:69], s[0:1], 48")
    a("s_load_dwordx2 s[70:71], s[0:1], 16")
    a("s_load_dwordx2 s[72:73], s[0:1], 56")
    a("s_load_dwordx2 s[58:59], s[0:1], 72")
    a("s_load_dwordx2 s[62:63], s[0:1], 88")
    code_prefetch(a, name, 2, vd=27, va=26)
    stamp(a, 0)
    a("v_and_b32 v1, 63, v0")
    a("v_lshrrev_b32 v2, 6, v0")
    a("s_and_b32 s40, s2, 7")
    a("v_readfirstlane_b32 s20, v2")
    a("s_lshr_b32 s41, s2, 3")
    a("s_and_b32 s60, s40, 1")
    a("s_lshl_b32 s60, s60, 5")
    a("s_add_u32 s60, s60, s41")
    C4 = CoreK2(a)
    def p3e():
        a("s_cmp_ge_u32 s60, 56")
        a("s_cbranch_scc1 L_k234_noe")
        vm = list(a.vm)
        p3_early_emit(a, remap={2: 236, 3: 237, 16: 238, 17: 239, 18: 235})
        a.label("L_k234_noe")
    phaseA(a, p3e)
    a("s_setprio 0")
    a("s_cmp_ge_u32 s60, 56")
    a("s_cbranch_scc1 L_k234_skip3")
    phase3(a, C4, merged=True)
    vm3 = list(a.vm)
    a("s_branch L_k234_p4")
    a.label("L_k234_skip3")
    a("s_mov_b32 s39, 0")
    a("v_and_b32 v2, 15, v1")
    a("v_lshrrev_b32 v3, 4, v1")
    a("s_waitcnt vmcnt(0) lgkmcnt(0)")
    a("s_barrier")
    flag_add(a, [f"s_add_u32 s48, s37, {F_O}", "s_lshl_b32 s48, s48, 8", f"s_add_u32 s48, s48, {WS_FLAG}"], "o2")
    service(a)
    for f in p4_early(a): f()
    a("s_lshr_b32 s38, s42, 1")
    a(f"s_add_u32 s38, s38, {F_O}")
    a("s_lshl_b32 s38, s38, 8")
    a(f"s_add_u32 s38, s38, {WS_FLAG}")
    a("s_cmp_lg_u32 s20, 0")
    a("s_cbranch_scc1 L_k234_w")
    a("v_mov_b32 v24, 0")
    a("v_mov_b32 v25, 0")
    a("s_nop 0")
    spin_wait(a, 25, 24, 38, 32, "o3")
    a.label("L_k234_w")
    a("s_barrier")
    stamp(a, 1 if os.environ.get("ST4") else 5)
    a.vm = []
    for st in range(3):
        for f in C4.dma(st): f()
    for f in p4_setup(a): f()
    a.label("L_k234_p4")
    a.vm = vm3; a.lgkm = []
    phase4(a, C4, True, st=((2, 3, 4) if os.environ.get('ST4') else (6, None, None) if os.environ.get('ST3') else (None, 6, None)))
    if gen2.STAMP: a("s_mov_b64 exec, -1"); a("s_waitcnt vmcnt(0)")
    stamp(a, 7); stamp_dump(a, 8, 1)
    a.label("L_k234_end")
    a("s_endpgm")
    phaseA_fallback(a)
    return name, a.text(), dict(grid=256, block=512, lds=163840, vgpr=240)

def kall():
    from k2n import phaseA, phaseA_fallback, flag_add, F_O, F_CS, A_K
    a = Asm(); a.uid = 6000
    name = "kall_kernel"
    a("s_cmp_ge_u32 s2, 256")
    a("s_cbranch_scc1 L_ka_end")
    from k1gen import k1
    from k2n import F_QKV, F_HS
    k1(a, name)
    a("s_cmp_eq_u32 s43, 3")
    a(f"s_add_u32 s61, s44, {F_QKV}")
    a("s_cmp_eq_u32 s43, 3")
    a(f"s_cselect_b32 s61, {F_HS}, s61")
    a("s_lshl_b32 s61, s61, 8")
    a(f"s_add_u32 s61, s61, {WS_FLAG}")
    a("s_load_dwordx2 s[6:7], s[0:1], 40")
    a("s_load_dwordx2 s[68:69], s[0:1], 48")
    a("s_load_dwordx2 s[70:71], s[0:1], 16")
    a("s_load_dwordx2 s[72:73], s[0:1], 56")
    a("s_load_dwordx2 s[58:59], s[0:1], 72")
    a("s_waitcnt lgkmcnt(0)")
    a.vm = []; a.lgkm = []
    a("s_and_b32 s60, s40, 1")
    a("s_lshl_b32 s60, s60, 5")
    a("s_add_u32 s60, s60, s41")
    C4 = CoreK2(a)
    def p3e():
        a("s_cmp_ge_u32 s60, 56")
        a("s_cbranch_scc1 L_ka_noe")
        vm = list(a.vm)
        p3_early_emit(a, remap={2: 236, 3: 237, 16: 238, 17: 239, 18: 235})
        a.label("L_ka_noe")
    def sgl():
        if os.environ.get("ST1"): stamp(a, 4)
        a("s_waitcnt vmcnt(0) lgkmcnt(0)")
        a("s_barrier")
        if os.environ.get("ST1"): stamp(a, 5)
        flag_add(a, ["s_mov_b32 s48, s61"], "p1")
        a(f"s_add_u32 s38, s40, {F_QKV}")
        a("s_lshl_b32 s38, s38, 8")
        a(f"s_add_u32 s38, s38, {WS_FLAG}")
        a("s_cmp_lg_u32 s20, 0")
        a("s_cbranch_scc1 L_ka_qw")
        a("v_mov_b32 v30, 0")
        a("v_mov_b32 v31, 0")
        a("s_nop 0")
        spin_wait(a, 31, 30, 38, 24, "qkv")
        a.label("L_ka_qw")
        a("s_barrier")
        if os.environ.get("ST1"): stamp(a, 6); gen2.STAMP_OFF = True
    phaseA(a, p3e, single=sgl)
    a("s_setprio 0")
    a("s_cmp_ge_u32 s60, 56")
    a("s_cbranch_scc1 L_ka_skip3")
    phase3(a, C4, merged=True)
    vm3 = list(a.vm)
    a("s_branch L_ka_p4")
    a.label("L_ka_skip3")
    a("s_mov_b32 s39, 0")
    a("v_and_b32 v2, 15, v1")
    a("v_lshrrev_b32 v3, 4, v1")
    a("s_waitcnt vmcnt(0) lgkmcnt(0)")
    a("s_barrier")
    flag_add(a, [f"s_add_u32 s48, s37, {F_O}", "s_lshl_b32 s48, s48, 8", f"s_add_u32 s48, s48, {WS_FLAG}"], "o2")
    service(a)
    for f in p4_early(a): f()
    a("s_lshr_b32 s38, s42, 1")
    a(f"s_add_u32 s38, s38, {F_O}")
    a("s_lshl_b32 s38, s38, 8")
    a(f"s_add_u32 s38, s38, {WS_FLAG}")
    a("s_cmp_lg_u32 s20, 0")
    a("s_cbranch_scc1 L_ka_w")
    a("v_mov_b32 v24, 0")
    a("v_mov_b32 v25, 0")
    a("s_nop 0")
    spin_wait(a, 25, 24, 38, 32, "o3")
    a.label("L_ka_w")
    a("s_barrier")
    stamp(a, 1 if os.environ.get("ST4") else 5)
    a.vm = []
    for st in range(3):
        for f in C4.dma(st): f()
    for f in p4_setup(a): f()
    a.label("L_ka_p4")
    a.vm = vm3; a.lgkm = []
    phase4(a, C4, True, st=((2, 3, 4) if os.environ.get('ST4') else (6, None, None) if os.environ.get('ST3') else (None, 6, None)))
    if gen2.STAMP: a("s_mov_b64 exec, -1"); a("s_waitcnt vmcnt(0)")
    stamp(a, 7); stamp_dump(a, 8, 0)
    a.label("L_ka_end")
    a("s_endpgm")
    phaseA_fallback(a)
    return name, a.text(), dict(grid=256, block=512, lds=163840, vgpr=240)

def kallu():
    from k2n import phaseA, phaseA_fallback, flag_add, F_O, F_CS, A_K
    a = Asm(); a.uid = 6000
    name = "kall_kernel"
    a("s_cmp_ge_u32 s2, 256")
    a("s_cbranch_scc1 L_ka_end")
    from k1u import phase1u
    from k2n import F_HS
    F_QH = 72
    phase1u(a, name)
    a(f"s_add_u32 s61, s44, {F_QH}")
    a("s_lshl_b32 s61, s61, 8")
    a(f"s_add_u32 s61, s61, {WS_FLAG}")
    a("s_add_u32 s39, s42, 104")
    a("s_lshl_b32 s39, s39, 8")
    a(f"s_add_u32 s39, s39, {WS_FLAG}")
    a("s_load_dwordx2 s[6:7], s[0:1], 40")
    a("s_load_dwordx2 s[68:69], s[0:1], 48")
    a("s_load_dwordx2 s[70:71], s[0:1], 16")
    a("s_load_dwordx2 s[72:73], s[0:1], 56")
    a("s_load_dwordx2 s[58:59], s[0:1], 72")
    a("s_waitcnt lgkmcnt(0)")
    a.vm = []; a.lgkm = []
    a("s_and_b32 s60, s40, 1")
    a("s_lshl_b32 s60, s60, 5")
    a("s_add_u32 s60, s60, s41")
    C4 = CoreK2(a)
    def p3e():
        a("s_cmp_ge_u32 s60, 56")
        a("s_cbranch_scc1 L_ka_noe")
        vm = list(a.vm)
        p3_early_emit(a, remap={2: 236, 3: 237, 16: 238, 17: 239, 18: 235})
        a.label("L_ka_noe")
    def sgl():
        if os.environ.get("ST1"): stamp(a, 4)
        a("s_waitcnt vmcnt(0) lgkmcnt(0)")
        a("s_barrier")
        if os.environ.get("ST1"): stamp(a, 5)
        flag_add(a, ["s_mov_b32 s48, s61"], "p1")
        for r in (100, 101):
            flag_add(a, [f"s_add_u32 s48, s{r}, {F_QH}", "s_lshl_b32 s48, s48, 8", f"s_add_u32 s48, s48, {WS_FLAG}"], f"p1{r}")
        flag_add(a, ["s_mov_b32 s48, s39"], "p1h")
        a(f"s_add_u32 s38, s42, {F_QH}")
        a("s_lshl_b32 s38, s38, 8")
        a(f"s_add_u32 s38, s38, {WS_FLAG}")
        a("s_cmp_lg_u32 s20, 0")
        a("s_cbranch_scc1 L_ka_qw")
        a("v_mov_b32 v30, 0")
        a("v_mov_b32 v31, 0")
        a("s_nop 0")
        spin_wait(a, 31, 30, 38, 24, "qkv")
        a.label("L_ka_qw")
        a("s_barrier")
        if os.environ.get("ST1"): stamp(a, 6); gen2.STAMP_OFF = True
    phaseA(a, p3e, single=sgl, nhs=-32)
    a("s_setprio 0")
    a("s_cmp_ge_u32 s60, 56")
    a("s_cbranch_scc1 L_ka_skip3")
    phase3(a, C4, merged=True)
    vm3 = list(a.vm)
    a("s_branch L_ka_p4")
    a.label("L_ka_skip3")
    a("s_mov_b32 s39, 0")
    a("v_and_b32 v2, 15, v1")
    a("v_lshrrev_b32 v3, 4, v1")
    a("s_waitcnt vmcnt(0) lgkmcnt(0)")
    a("s_barrier")
    flag_add(a, [f"s_add_u32 s48, s37, {F_O}", "s_lshl_b32 s48, s48, 8", f"s_add_u32 s48, s48, {WS_FLAG}"], "o2")
    service(a)
    for f in p4_early(a): f()
    a("s_lshr_b32 s38, s42, 1")
    a(f"s_add_u32 s38, s38, {F_O}")
    a("s_lshl_b32 s38, s38, 8")
    a(f"s_add_u32 s38, s38, {WS_FLAG}")
    a("s_cmp_lg_u32 s20, 0")
    a("s_cbranch_scc1 L_ka_w")
    a("v_mov_b32 v24, 0")
    a("v_mov_b32 v25, 0")
    a("s_nop 0")
    spin_wait(a, 25, 24, 38, 32, "o3")
    a.label("L_ka_w")
    a("s_barrier")
    stamp(a, 1 if os.environ.get("ST4") else 5)
    a.vm = []
    for st in range(3):
        for f in C4.dma(st): f()
    for f in p4_setup(a): f()
    a.label("L_ka_p4")
    a.vm = vm3; a.lgkm = []
    phase4(a, C4, True, st=((2, 3, 4) if os.environ.get('ST4') else (6, None, None) if os.environ.get('ST3') else (None, 6, None)))
    if gen2.STAMP: a("s_mov_b64 exec, -1"); a("s_waitcnt vmcnt(0)")
    stamp(a, 7); stamp_dump(a, 8, 0)
    a.label("L_ka_end")
    a("s_endpgm")
    phaseA_fallback(a)
    return name, a.text(), dict(grid=256, block=512, lds=163840, vgpr=240)
```

```python
from asmlib import *
import os
LDF = os.environ.get('LDFLAG', '')
S_SRDX = 8; S_SRDW = 12
S_SRDL = 96
S_LOFF = 24
S_LOFF2 = 25
S_SLOT = 26; S_DELTA = 27; S_CNT = 28
S_M0B = 29
S_GSTR = 30
S_LSTEP = 31
S_TMP = 32
V_LD = 4
V_PFD = 8
V_XRD = 10
V_WRD = 12
V_CSR = 21; V_CSD = 224; V_CSA = 232
V_WF = 32; V_ACC = 64; V_XF = 128
SLOT = 49152
PFD = int(os.environ.get("PFD", "6"))

def xf(buf, tt, ks): return V_XF + 32 * buf + 8 * tt + 4 * ks
def wf(c, ks): return V_WF + 8 * c + 4 * ks
def acc(tt, c): return V_ACC + 4 * (4 * c + tt)

class Core16:
    def __init__(self, a, xmode, swap=False, nsteps=16, tag="", role="L", xflag="", colsum=False, wseg=False, krot=False):
        self.krot = krot
        self.xflag = xflag; self.colsum = colsum; self.wseg = wseg
        self.a = a; self.xmode = xmode; self.swap = swap; self.nsteps = nsteps; self.tag = tag; self.role = role

    def dma_ops(self, stage):
        a = self.a
        if self.role == "P":
            return [lambda: a.vmem(f"buffer_load_dword v{V_PFD}, v{V_LD}, s[{S_SRDL}:{S_SRDL+3}], s{S_LOFF} offen", "pf"),
                    lambda: a(f"s_add_u32 s{S_LOFF}, s{S_LOFF}, s{S_LSTEP}")]
        if self.role == "S":
            xstep = 128 if self.xmode == "row" else 4096
            ops = [lambda: a(f"s_add_u32 m0, s{S_SLOT}, s{S_M0B}")]
            for j in range(4):
                v = V_LD + (j if self.xmode == "row" else 0)
                ops.append(lambda j=j, v=v: a.vmem(f"buffer_load_dwordx4 v{v}, s[{S_SRDX}:{S_SRDX+3}], s{S_LOFF} offen offset:{1024*j} {self.xflag}lds", ("st", stage)))
            ops.append(lambda: a(f"s_add_u32 m0, s{S_SLOT}, s{S_GSTR}"))
            for j in range(2):
                ops.append(lambda j=j: a.vmem(f"buffer_load_dwordx4 v{8+j}, s[{S_SRDW}:{S_SRDW+3}], s{S_LOFF2} offen offset:{1024*j} {LDF}lds", ("st", stage)))
            if os.environ.get("WFIRST", "1") == "1": ops = ops[5:8] + ops[0:5]
            if self.krot:
                ops.append(lambda: (a(f"s_add_u32 s{S_LOFF}, s{S_LOFF}, {xstep}"), a(f"s_add_u32 s{S_LOFF2}, s{S_LOFF2}, s{S_LSTEP}")))
                ops.append(lambda: (a(f"s_and_b32 s{S_LOFF}, s{S_LOFF}, {16*xstep-1}"), a(f"s_cselect_b32 s{S_LOFF2}, s{S_LOFF2}, 0")))
                return ops
            ops.append(lambda: a(f"s_add_u32 s{S_LOFF}, s{S_LOFF}, {xstep}"))
            ops.append(lambda: a(f"s_add_u32 s{S_LOFF2}, s{S_LOFF2}, s{S_LSTEP}"))
            return ops
        ops = [lambda: a(f"s_add_u32 m0, s{S_SLOT}, s{S_M0B}"),
               lambda: a(f"s_add_u32 s{S_LOFF2}, s{S_LOFF}, s{S_GSTR}")]
        for g in range(2):
            if g: ops.append(lambda: a("s_add_u32 m0, m0, 4096"))
            for j in range(4):
                ops.append(lambda j=j, g=g: a.vmem(f"buffer_load_dwordx4 v{V_LD+j}, s[{S_SRDL}:{S_SRDL+3}], s{S_LOFF2 if g else S_LOFF} offen offset:{1024*j} {LDF}lds", ("st", stage)))
        ops.append(lambda: a(f"s_add_u32 s{S_LOFF}, s{S_LOFF}, s{S_LSTEP}"))
        return ops

    def xr(self, buf, tt, ks):
        a = self.a
        d = xf(buf, tt, ks)
        if self.xmode == "row":
            return lambda: a.ds(f"ds_read_b128 v[{d}:{d+3}], v{V_XRD+ks} offset:{2048*tt}", ("x", buf, tt, ks))
        return lambda: a.ds(f"ds_read_b128 v[{d}:{d+3}], v{V_XRD} offset:{2048*tt+1024*ks}", ("x", buf, tt, ks))

    def wr(self, c, ks, r):
        a = self.a
        off = 8192 * ks + (1024 * r if self.xmode == "row" else 4096 * r)
        if self.wseg: off = 2048 * ks + 256 * r
        d = wf(c, ks) + 2 * r
        return lambda: a.ds(f"ds_read_b64_tr_b16 v[{d}:{d+1}], v{V_WRD+c} offset:{off}", ("w", c, ks))

    def reads(self, buf):
        o = [self.xr(buf, 0, 0), self.wr(0, 0, 0), self.wr(0, 0, 1), self.xr(buf, 0, 1), self.wr(0, 1, 0), self.wr(0, 1, 1)]
        for tt in range(1, 4):
            o += [self.xr(buf, tt, 0), self.xr(buf, tt, 1)]
        for c in range(1, 4):
            o += [self.wr(c, 0, 0), self.wr(c, 0, 1), self.wr(c, 1, 0), self.wr(c, 1, 1)]
        return o

    def group(self, buf, c, first=False):
        a = self.a
        ops = []
        for tt in range(4):
            for ks in range(2):
                def f(tt=tt, ks=ks):
                    a.wait_lgkm(("x", buf, tt, ks), ("w", c, ks))
                    A, B = wf(c, ks), xf(buf, tt, ks)
                    if self.swap is True or (self.swap and c in self.swap): A, B = B, A
                    d = acc(tt, c)
                    cc = "0" if (first and ks == 0) else f"v[{d}:{d+3}]"
                    a(f"v_mfma_f32_16x16x32_bf16 v[{d}:{d+3}], v[{A}:{A+3}], v[{B}:{B+3}], {cc}")
                ops.append(f)
        return ops

    def bump_ops(self):
        a = self.a
        n = 2 if self.xmode == "row" else 1
        ops = [lambda i=i: a(f"v_add_u32 v{V_XRD+i}, s{S_DELTA}, v{V_XRD+i}") for i in range(n)]
        ops += [lambda i=i: a(f"v_add_u32 v{V_WRD+i}, s{S_DELTA}, v{V_WRD+i}") for i in range(4)]
        if self.colsum: ops.append(lambda: a(f"v_add_u32 v{V_CSR}, s{S_DELTA}, v{V_CSR}"))
        return ops

    def period(self, s, dma, last=False, extra=None, loop_tail=None, spread=None, prebar=None):
        a = self.a
        first = (s == 0)
        buf = s % 2
        sl = [[] for _ in range(33)]
        rd = self.reads(buf)
        if first:
            for i, o in enumerate(rd): sl[16 if i < 12 else 16 + (i - 11)].append(o)
        else:
            for i, o in enumerate(rd): sl[i + 1].append(o)
        if dma:
            d = self.dma_ops(s + 2)
            if self.role == "P": pos = [16 if first else 2] * 2
            elif self.role == "S":
                pos = [16] * 10 if first else [0, 2, 7, 12, 17, 21, 22, 27, 28, 28]
                if os.environ.get("WFIRST", "1") == "1" and not first: pos = [int(x) for x in os.environ.get("GDPOS", "0,1,5,9,10,15,21,27,28,28").split(",")]
                if prebar and not first and os.environ.get("EARLYD", "1") == "1": pos = [0, 1, 2, 4, 5, 6, 7, 9, 10, 10]
            else: pos = [16] * 12 if first else [0, 0, 1, 4, 8, 11, 13, 15, 18, 22, 25, 26]
            for p, o in zip(pos, d): sl[p].append(o)
        adv = [lambda: a(f"s_add_u32 s{S_SLOT}, s{S_SLOT}, {SLOT}"),
               lambda: a(f"s_cmp_eq_u32 s{S_SLOT}, {3*SLOT}"),
               lambda: a(f"s_cselect_b32 s{S_SLOT}, 0, s{S_SLOT}"),
               lambda: a(f"s_cmp_eq_u32 s{S_SLOT}, {2*SLOT}"),
               lambda: a(f"s_cselect_b32 s{S_DELTA}, s{S_TMP}, s{S_TMP+1}")]
        if not last:
            sl[29] += adv
            b = self.bump_ops()
            sl[30] += b[:3]; sl[31] += b[3:]
        if loop_tail: sl[31] += loop_tail
        for k, v in (extra or {}).items(): sl[k] += v
        if spread:
            lo = 17 if first else 1
            n = len(spread)
            for i, o in enumerate(spread): sl[lo + (i * (28 - lo)) // n].append(o)
        if self.colsum:
            lo = 16 if first else 0
            sl[lo].append(lambda: a.ds(f"ds_read_b128 v[{V_CSD}:{V_CSD+3}], v{V_CSR}", "csd"))
            sl[lo].append(lambda: a.ds(f"ds_read_b128 v[{V_CSD+4}:{V_CSD+7}], v{V_CSR} offset:8192", "csd"))
            ops = [lambda: a.wait_lgkm("csd")]
            for j in range(8):
                x = V_CSD + j; q = V_CSA + 2 * (j % 4)
                ops += [lambda x=x: a(f"v_lshlrev_b32 v22, 16, v{x}"), lambda x=x: a(f"v_and_b32 v23, 0xffff0000, v{x}"),
                        lambda q=q: a(f"v_add_f32 v{q}, v{q}, v22"), lambda q=q: a(f"v_add_f32 v{q+1}, v{q+1}, v23")]
            l2 = lo + 6
            for i, o in enumerate(ops): sl[l2 + (i * (29 - l2)) // len(ops)].append(o)
        if os.environ.get("GPRIO"):
            for q in range(4): sl[8 * q].insert(0, lambda q=q: a(f"s_setprio {3-q}"))
        mf = self.group(1 - buf, 2, first=(s == 1)) + self.group(1 - buf, 3, first=(s == 1)) + self.group(buf, 0, first) + self.group(buf, 1, first)
        for i in range(33):
            for o in sl[i]: o()
            if i < 32 and not (first and i < 16): mf[i]()
        if not last:
            n = a._need(a.vm, [("st", s + 1)])
            if prebar: n = 0
            if n is None:
                a.wait_all(vm=False)
            else:
                a(f"s_waitcnt vmcnt({n}) lgkmcnt(0)")
                a.vm = a.vm[len(a.vm) - n:] if n else []
                a.lgkm = []
            a("s_barrier")

    def prologue_dma(self, three=False):
        a = self.a
        if self.role == "P":
            a(f"s_lshl_b32 s{S_TMP}, s{S_LSTEP}, 1")
            a(f"s_add_u32 s{S_LOFF}, s{S_LOFF}, s{S_TMP}")
            for st in range(PFD):
                for o in self.dma_ops(0): o()
            a(f"s_mov_b32 s{S_SLOT}, {2*SLOT}")
            return
        for st in (0, 1):
            for o in self.dma_ops(st): o()
            a(f"s_add_u32 s{S_SLOT}, s{S_SLOT}, {SLOT}")
        if three:
            for o in self.dma_ops(2): o()

    def mainloop(self, hooks=None, npeel=2, ntail=0, three=False):
        a = self.a
        hooks = hooks or {}
        N = self.nsteps
        L = self.role != "P"
        ND = 6 if self.role == "S" else 8
        assert N % 2 == 0 and npeel % 2 == 0 and N >= npeel + 4
        a(f"s_mov_b32 s{S_TMP}, {(-2*SLOT) & 0xffffffff}")
        a(f"s_mov_b32 s{S_TMP+1}, {SLOT}")
        a.wait_vm(("st", 0))
        a("s_barrier")
        if "start" in hooks: hooks["start"]()
        for s in range(npeel):
            self.period(s, dma=not (three and s == 0), spread=(hooks[f"spread{s}"]() if f"spread{s}" in hooks else None), prebar=hooks.get(f"prebar{s}"))
            if f"after{s}" in hooks: hooks[f"after{s}"]()
        lab = a.newlabel("loop" + self.tag + self.role)
        a(f"s_mov_b32 s{S_CNT}, {(N-2-npeel-ntail)//2}")
        a.vm = [("st", 3)] * ND if L else []
        a.lgkm = []
        a.lines.append(".p2align 6")
        a.label(lab)
        self.period(2, dma=True)
        lt = [lambda: a(f"s_sub_u32 s{S_CNT}, s{S_CNT}, 1"), lambda: a(f"s_cmp_lg_u32 s{S_CNT}, 0")]
        self.period(3, dma=True, loop_tail=lt)
        if L: assert a.vm == [("st", 5)] * ND, a.vm
        a(f"s_cbranch_scc1 {lab}")
        a.vm = [("st", N - 1 - ntail)] * ND if L else []
        for s in range(N - 2 - ntail, N - 2):
            self.period(s, dma=True, spread=(hooks[f"spread{s}"]() if f"spread{s}" in hooks else None), prebar=hooks.get(f"prebar{s}"),
                        extra=({32: [hooks[f"end{s}"]]} if f"end{s}" in hooks else None))
            if f"after{s}" in hooks: hooks[f"after{s}"]()
        if "pre_tail" in hooks: hooks["pre_tail"]()
        self.period(N - 2, dma=False, extra=({32: [hooks["pre_last"]]} if "pre_last" in hooks else None),
                    spread=(hooks["spreadN2"]() if "spreadN2" in hooks else None))
        self.period(N - 1, dma=False, last=True, extra=({0: [hooks["last_start"]]} if "last_start" in hooks else None),
                    spread=(hooks["spreadN1"]() if "spreadN1" in hooks else None))
        fin = self.group((N - 1) % 2, 2) + self.group((N - 1) % 2, 3)
        fo = hooks["final"]() if "final" in hooks else []
        for o in interleave(fin, fo): o()

def read_addr_setup16(a, xmode):
    a("v_bfe_u32 v17, v1, 2, 2")
    if xmode == "row":
        a("v_lshl_add_u32 v18, v3, 3, v17")
        a("v_and_b32 v19, 1, v3")
        a("v_lshl_add_u32 v19, v19, 2, v17")
    else:
        a("v_lshl_add_u32 v18, v3, 2, v17")
        a("v_and_b32 v19, 7, v18")
    a("s_lshl_b32 s33, s22, 2")
    a("v_xor_b32 v19, s33, v19")
    a("v_lshlrev_b32 v18, 8, v18")
    a("v_lshl_add_u32 v18, v19, 5, v18")
    a("v_and_b32 v20, 3, v1")
    a("v_lshl_add_u32 v18, v20, 3, v18")
    a(f"v_add_u32 v{V_WRD}, 32768, v18")
    for c in range(1, 4): a(f"v_xor_b32 v{V_WRD+c}, {c << 5}, v{V_WRD}")
    if xmode == "row":
        a("s_lshl_b32 s33, s21, 6")
        a("v_add_u32 v16, s33, v2")
        a("v_lshlrev_b32 v16, 7, v16")
        a("v_lshrrev_b32 v17, 1, v2")
        a("v_xor_b32 v17, v17, v3")
        a(f"v_lshl_add_u32 v{V_XRD}, v17, 4, v16")
        a(f"v_xor_b32 v{V_XRD+1}, 64, v{V_XRD}")
    else:
        a("s_lshl_b32 s33, s21, 13")
        a("v_lshlrev_b32 v16, 4, v1")
        a(f"v_add_u32 v{V_XRD}, s33, v16")
    a(f"s_mov_b32 s{S_SLOT}, 0")

def loader_setup16(a, xmode, s_ldw, s_col0b, s_xbase, kd, pf, uniq):
    a("s_cmp_ge_u32 s20, 6")
    a(f"s_cbranch_scc1 L_ldP_{uniq}")
    a("s_cmp_ge_u32 s20, 4")
    a(f"s_cbranch_scc1 L_ldW_{uniq}")
    a("s_mov_b32 s34, 0")
    a(f"s_lshl_b32 s{S_M0B}, s20, 13")
    a(f"s_mov_b32 s{S_LOFF}, 0")
    if xmode == "row":
        a("v_lshrrev_b32 v16, 3, v1")
        a("s_lshl_b32 s33, s20, 6")
        a(f"s_add_u32 s33, s33, s{s_xbase}")
        a("v_add_u32 v16, s33, v16")
        a("v_lshlrev_b32 v16, 11, v16")
        a("v_and_b32 v17, 7, v1")
        a("v_xor_b32 v17, v17, v3")
        a("v_xor_b32 v18, 4, v17")
        a("v_lshl_add_u32 v17, v17, 4, v16")
        a("v_lshl_add_u32 v18, v18, 4, v16")
        for j in range(4):
            a(f"v_add_u32 v{V_LD+j}, {4096 + j*8*2048 - j*1024}, v{17 if j % 2 == 0 else 18}")
        a(f"s_mov_b32 s{S_GSTR}, {32*2048}")
        a(f"s_movk_i32 s{S_LSTEP}, 128")
    else:
        a("s_lshl_b32 s33, s20, 1")
        a(f"s_add_u32 s33, s33, s{s_xbase}")
        a(f"s_mul_i32 s33, s33, {kd*64}")
        a("v_lshlrev_b32 v16, 4, v1")
        for j in range(4): a(f"v_add_u32 v{V_LD+j}, s33, v16")
        a(f"s_mov_b32 s{S_GSTR}, {kd*64}")
        a(f"s_movk_i32 s{S_LSTEP}, 4096")
    a(f"s_branch L_ldE_{uniq}")
    a.label(f"L_ldW_{uniq}")
    a("s_mov_b32 s34, 1")
    a("s_sub_u32 s33, s20, 4")
    a(f"s_lshl_b32 s{S_M0B}, s33, 13")
    a(f"s_add_u32 s{S_M0B}, s{S_M0B}, 32768")
    a(f"s_mov_b32 s{S_LOFF}, 0")
    a("s_lshl_b32 s33, s33, 5")
    a("v_add_u32 v16, s33, v3")
    a(f"v_mul_lo_u32 v16, v16, s{s_ldw}")
    a(f"v_add_u32 v16, s{s_col0b}, v16")
    a("v_lshlrev_b32 v17, 1, v3")
    a("v_xor_b32 v17, v2, v17")
    a("v_xor_b32 v18, 8, v17")
    a("v_lshl_add_u32 v17, v17, 4, v16")
    a("v_lshl_add_u32 v18, v18, 4, v16")
    a(f"s_lshl_b32 s33, s{s_ldw}, 2")
    a("s_sub_u32 s33, s33, 1024")
    for j in range(4):
        bit = ((j >> 1) & 1) if xmode == "row" else (j & 1)
        src = 18 if bit else 17
        if j == 0: a(f"v_mov_b32 v{V_LD}, v{src}")
        else:
            a(f"s_mul_i32 s{S_GSTR}, s33, {j}")
            a(f"v_add_u32 v{V_LD+j}, s{S_GSTR}, v{src}")
    a(f"s_lshl_b32 s{S_GSTR}, s{s_ldw}, 4")
    a(f"s_lshl_b32 s{S_LSTEP}, s{s_ldw}, 6")
    a(f"s_branch L_ldE_{uniq}")
    a.label(f"L_ldP_{uniq}")
    for j in range(1, 4): a(f"v_mov_b32 v{V_LD+j}, 0")
    a(f"s_mov_b32 s{S_M0B}, 0")
    a(f"s_mov_b32 s{S_GSTR}, 0")
    pf()
    a.label(f"L_ldE_{uniq}")

def loader_srd(a):
    a("s_cmp_eq_u32 s34, 0")
    a(f"s_cselect_b32 s{S_SRDL}, s8, s12")
    a(f"s_cselect_b32 s{S_SRDL+1}, s9, s13")
    a(f"s_cselect_b32 s{S_SRDL+2}, s10, s14")
    a(f"s_mov_b32 s{S_SRDL+3}, 0x00020000")

def sym_setup16(a0, xmode, s_ldw, s_col0b, s_xbase, kd, remap=None):
    import re
    def a(s):
        if remap:
            s = re.sub(r"\bv(\d+)\b", lambda m: "v%d" % remap.get(int(m.group(1)), int(m.group(1))), s)
        a0(s)
    a("v_lshlrev_b32 v18, 1, v3")
    a("v_xor_b32 v17, v2, v18")
    if xmode == "row":
        a("s_and_b32 s33, s20, 1")
        a("s_lshl_b32 s33, s33, 3")
        a("v_xor_b32 v17, s33, v17")
        a("v_mov_b32 v18, v17")
    else:
        a("v_xor_b32 v18, 8, v17")
    a("s_lshl_b32 s33, s20, 3")
    a("v_add_u32 v16, s33, v3")
    a(f"v_mul_lo_u32 v16, v16, s{s_ldw}")
    a(f"v_add_u32 v16, s{s_col0b}, v16")
    a("v_lshl_add_u32 v8, v17, 4, v16")
    a(f"s_lshl_b32 s33, s{s_ldw}, 2")
    a("s_sub_u32 s33, s33, 1024")
    a("v_lshl_add_u32 v18, v18, 4, v16")
    a("v_add_u32 v9, s33, v18")
    a(f"s_lshl_b32 s{S_LSTEP}, s{s_ldw}, 6")
    a(f"s_lshl_b32 s{S_M0B}, s20, 12")
    a(f"s_lshl_b32 s{S_GSTR}, s20, 11")
    a(f"s_add_u32 s{S_GSTR}, s{S_GSTR}, 32768")
    a(f"s_mov_b32 s{S_LOFF}, 0")
    a(f"s_mov_b32 s{S_LOFF2}, 0")
    if xmode == "row":
        a("v_lshrrev_b32 v16, 3, v1")
        a("s_lshl_b32 s33, s20, 5")
        a(f"s_add_u32 s33, s33, s{s_xbase}")
        a("v_add_u32 v16, s33, v16")
        a("v_lshlrev_b32 v16, 11, v16")
        a("v_and_b32 v17, 7, v1")
        a("v_xor_b32 v17, v17, v3")
        a("v_xor_b32 v18, 4, v17")
        a("v_lshl_add_u32 v17, v17, 4, v16")
        a("v_lshl_add_u32 v18, v18, 4, v16")
        for j in range(4):
            a(f"v_add_u32 v{V_LD+j}, {4096 + j*8*2048 - j*1024}, v{17 if j % 2 == 0 else 18}")
    else:
        a(f"s_add_u32 s33, s{s_xbase}, s20")
        a(f"s_mul_i32 s33, s33, {kd*64}")
        a("v_lshlrev_b32 v16, 4, v1")
        a(f"v_add_u32 v{V_LD}, s33, v16")
```

```python
from gen2 import *
import gen2

class Rec:
    def __init__(self, a): self.a = a; self.ops = []
    def __call__(self, *lines):
        self.ops.append(lambda: [self.a(l) for l in lines])
    def f(self, fn): self.ops.append(fn)
    def split(self, n):
        k = (len(self.ops) + n - 1) // n
        return [self.ops[i*k:(i+1)*k] for i in range(n)]

def rec_wave_sum(r, regs):
    steps = ["row_shr:1 row_mask:0xf bank_mask:0xf bound_ctrl:0", "row_shr:2 row_mask:0xf bank_mask:0xf bound_ctrl:0",
             "row_shr:4 row_mask:0xf bank_mask:0xf bound_ctrl:0", "row_shr:8 row_mask:0xf bank_mask:0xf bound_ctrl:0",
             "row_bcast:15 row_mask:0xa bank_mask:0xf", "row_bcast:31 row_mask:0xc bank_mask:0xf"]
    r("s_nop 1")
    for st in steps:
        for x in regs: r(f"v_add_f32_dpp v{x}, v{x}, v{x} {st}")

def k1(a=None, name="k1_kernel"):
    single = a is not None
    if not single:
        a = Asm(); a.uid = 1000
        a("s_cmp_ge_u32 s2, 256")
        a("s_cbranch_scc1 L_k1_end")
    from gen2 import stamp as _st
    smap = {0: 0, 3: 1, 5: 2, 6: 3} if os.environ.get("ST1") else {0: 0}
    stamp = (lambda a, i: (_st(a, smap[i]) if i in smap else None)) if single else _st
    NSIG = 256 if single else 192
    a("s_load_dwordx4 s[4:7], s[0:1], 0")
    a("s_load_dwordx4 s[36:39], s[0:1], 32")
    a("s_load_dwordx4 s[60:63], s[0:1], 80")
    a("s_load_dwordx2 s[72:73], s[0:1], 64")
    code_prefetch(a, name, 3, allcode=True, vd=29, va=30)
    stamp(a, 0)
    lane_setup(a)
    a("s_and_b32 s40, s2, 7")
    a("s_lshr_b32 s41, s2, 3")
    a("s_and_b32 s42, s40, 1")
    a("s_lshl_b32 s42, s42, 2")
    a("s_and_b32 s43, s41, 3")
    a("s_add_u32 s42, s42, s43")
    a("s_lshr_b32 s43, s40, 1")
    a("s_lshr_b32 s44, s41, 2")
    a("s_cmp_eq_u32 s43, 3")
    a("s_movk_i32 s23, 6144")
    a("s_cselect_b32 s23, 2048, s23")
    a("s_cselect_b32 s45, 0, s43")
    a("s_lshl_b32 s58, s45, 11")
    a("s_lshl_b32 s45, s44, 8")
    a("s_add_u32 s45, s45, s58")
    a("s_lshl_b32 s46, s42, 8")
    a("s_lshl_b32 s47, s42, 3")
    a("s_add_u32 s47, s47, s44")
    def pf_setup():
        a(f"s_mov_b32 s{S_LOFF}, 0")
        a("s_sub_u32 s33, s20, 6")
        a("s_lshl_b32 s33, s33, 6")
        a("s_cmp_ge_u32 s41, 16")
        a("s_cbranch_scc1 L_k1_pfw")
        a("s_mov_b32 s34, 0")
        a("s_and_b32 s48, s40, 1")
        a("s_lshl_b32 s48, s48, 10")
        a("s_lshl_b32 s49, s41, 6")
        a("s_add_u32 s48, s48, s49")
        a("v_add_u32 v16, s48, v1")
        a("v_lshlrev_b32 v16, 11, v16")
        a("s_add_u32 s33, s33, 4096")
        a(f"v_add_u32 v{V_LD}, s33, v16")
        a(f"s_movk_i32 s{S_LSTEP}, 128")
        a("s_branch L_ldE_k1")
        a.label("L_k1_pfw")
        a("s_mov_b32 s34, 1")
        a("s_sub_u32 s48, s41, 16")
        a("s_lshl_b32 s48, s48, 2")
        a("v_add_u32 v16, s48, v3")
        a("v_mul_lo_u32 v16, v16, s23")
        a("v_lshl_add_u32 v16, v2, 7, v16")
        a("s_add_u32 s33, s33, s58")
        a(f"v_add_u32 v{V_LD}, s33, v16")
        a(f"s_lshl_b32 s{S_LSTEP}, s23, 6")
    sym_setup16(a, "row", 23, 45, 46, 1024)
    read_addr_setup16(a, "row")
    KROT = os.environ.get("KROT", "")
    if KROT:
        r1, r2 = [int(x) for x in KROT.split(",")]
        a("s_and_b32 s48, s40, 1")
        a(f"s_mul_i32 s48, s48, {r1}")
        a(f"s_mul_i32 s49, s43, {r2}")
        a("s_add_u32 s48, s48, s49")
        a("s_and_b32 s48, s48, 15")
        a(f"s_lshl_b32 s{S_LOFF}, s48, 7")
        a(f"s_mul_i32 s{S_LOFF2}, s48, s{S_LSTEP}")
    a("s_waitcnt lgkmcnt(0)")
    stamp(a, 1)
    a("s_sub_u32 s8, s4, 4096")
    a("s_subb_u32 s9, s5, 0")
    a(f"s_mov_b32 s10, {4*MB + 4096}")
    a("s_mov_b32 s11, 0x00020000")
    a("s_cmp_eq_u32 s43, 3")
    a("s_cselect_b32 s12, s36, s6")
    a("s_cselect_b32 s13, s37, s7")
    a(f"s_mov_b32 s14, {6*MB}")
    a(f"s_cselect_b32 s14, {2*MB}, s14")
    a("s_mov_b32 s15, 0x00020000")
    stamp(a, 2)

    def signal():
        lab = a.newlabel("nosig")
        a("s_cmp_lg_u32 s20, 0")
        a(f"s_cbranch_scc1 {lab}")
        a("v_mov_b32 v16, 0")
        a("v_mov_b32 v17, 1")
        a("s_mov_b64 s[50:51], exec")
        a("s_mov_b64 exec, 1")
        a("buffer_atomic_add v17, v16, s[64:67], 0 offen")
        a("s_mov_b64 exec, s[50:51]")
        a.label(lab)

    def rs_loads(kind):
        a(f"s_add_u32 s48, s47, {(kind-1)*64}")
        a("s_lshl_b32 s48, s48, 4")
        a("s_lshl_b32 s49, s20, 1")
        a("s_add_u32 s59, s48, s49")
        a("s_lshl_b32 s49, s59, 11")
        a("s_add_u32 s49, s49, 4096")
        a("v_lshlrev_b32 v16, 5, v1")
        for r in range(2):
            for h in range(2):
                d = 192 + 8 * r + 4 * h
                a.vmem(f"buffer_load_dwordx4 v[{d}:{d+3}], v16, s[8:11], s49 offen offset:{2048*r+16*h}", "duty")
        srd(a, 68, 72, 2048)
        for h in range(2):
            a.vmem(f"buffer_load_dwordx4 v[{216+4*h}:{219+4*h}], v16, s[68:71], 0 offen offset:{16*h}", "duty")
    def rs_ops():
        r = Rec(a)
        r.f(lambda: a.wait_vm("duty"))
        for i in range(6): r(f"v_mov_b32 v{208+i}, 0")
        for i in range(8):
            r(f"v_lshlrev_b32 v224, 16, v{216+i}")
            r(f"v_and_b32 v225, 0xffff0000, v{216+i}")
            for q in range(2):
                x = 192 + 8 * q + i
                r(f"v_lshlrev_b32 v{226+2*q}, 16, v{x}")
                r(f"v_and_b32 v{227+2*q}, 0xffff0000, v{x}")
            for q in range(2):
                for h in range(2):
                    r(f"v_add_f32 v{208+2*q}, v{208+2*q}, v{226+2*q+h}")
                    r(f"v_fma_f32 v{209+2*q}, v{226+2*q+h}, v{226+2*q+h}, v{209+2*q}")
                    r(f"v_mul_f32 v{226+2*q+h}, v{226+2*q+h}, v{224+h}")
            for q in range(2): r(f"v_cvt_pk_bf16_f32 v{226+2*q}, v{226+2*q}, v{227+2*q}")
            for q in range(2):
                r(f"v_lshlrev_b32 v{227+2*q}, 16, v{226+2*q}")
                r(f"v_and_b32 v{226+2*q}, 0xffff0000, v{226+2*q}")
                r(f"v_add_f32 v{212+q}, v{212+q}, v{227+2*q}")
                r(f"v_add_f32 v{212+q}, v{212+q}, v{226+2*q}")
        rec_wave_sum(r, [208, 209, 210, 211, 212, 213])
        for q in range(2):
            s_, q_ = 208 + 2 * q, 209 + 2 * q
            r(f"v_mul_f32 v{s_}, {f2u(1/1024)}, v{s_}")
            r(f"v_mul_f32 v{q_}, {f2u(1/1024)}, v{q_}")
            r(f"v_fma_f32 v{q_}, -v{s_}, v{s_}, v{q_}")
            r(f"v_max_f32 v{q_}, 0, v{q_}")
            r(f"v_add_f32 v{q_}, {f2u(1e-5)}, v{q_}")
            r(f"v_rsq_f32 v{q_}, v{q_}")
        r("v_cvt_pk_bf16_f32 v212, v212, v213")
        r("v_and_b32 v213, 0xffff0000, v212")
        r("v_lshlrev_b32 v212, 16, v212")
        for q in range(2): r(f"v_mul_f32 v{212+q}, {f2u(-math.log2(math.e))}, v{212+q}")
        for q in range(2): r(f"v_exp_f32 v{212+q}, v{212+q}")
        r("s_nop 0")
        for q in range(2): r(f"v_add_f32 v{212+q}, 1.0, v{212+q}")
        for q in range(2): r(f"v_rcp_f32 v{212+q}, v{212+q}")
        r("s_nop 0")
        r("v_cvt_pk_bf16_f32 v212, v212, v213")
        r("v_lshlrev_b32 v216, 16, v212")
        r("v_and_b32 v218, 0xffff0000, v212")
        r("v_sub_f32 v217, 1.0, v216")
        r("v_sub_f32 v219, 1.0, v218")
        r("v_cvt_pk_bf16_f32 v212, v217, v219")
        r("v_lshlrev_b32 v217, 16, v212")
        r("v_and_b32 v219, 0xffff0000, v212")
        r("s_lshl_b32 s49, s59, 3")
        r(f"s_add_u32 s54, s49, {WS_G}")
        r(f"s_add_u32 s49, s49, {WS_ST}")
        r("v_mov_b32 v16, 0")
        r("s_mov_b32 s52, 0")
        r("s_mov_b32 s53, 0x80000000")
        def st():
            a("s_mov_b64 exec, s[52:53]")
            a.vmem("buffer_store_dwordx4 v[208:211], v16, s[16:19], s49 offen sc1", "dst")
            a.vmem("buffer_store_dwordx4 v[216:219], v16, s[16:19], s54 offen sc1", "dst")
            a("s_mov_b64 exec, -1")
        r.f(st)
        return r
    def cs_loads():
        srd(a, 68, 36, 2 * MB)
        a("s_lshl_b32 s48, s42, 7")
        a("s_lshl_b32 s49, s20, 4")
        a("s_add_u32 s48, s48, s49")
        a("s_lshl_b32 s48, s48, 11")
        a("s_lshl_b32 s49, s44, 8")
        a("s_add_u32 s48, s48, s49")
        a("v_lshlrev_b32 v16, 11, v3")
        a("v_lshl_add_u32 v16, v2, 4, v16")
        for r in range(4):
            a.vmem(f"buffer_load_dwordx4 v[{192+4*r}:{195+4*r}], v16, s[68:71], s48 offen", "duty")
            if r < 3: a("s_add_u32 s48, s48, 8192")
    def cs_ops1():
        r = Rec(a)
        r.f(lambda: a.wait_vm("duty"))
        for q in range(4):
            for i in range(4):
                x = 192 + 4 * q + i
                if q == 0:
                    r(f"v_lshlrev_b32 v{208+2*i}, 16, v{x}")
                    r(f"v_and_b32 v{209+2*i}, 0xffff0000, v{x}")
                else:
                    r(f"v_lshlrev_b32 v216, 16, v{x}")
                    r(f"v_and_b32 v217, 0xffff0000, v{x}")
                    r(f"v_add_f32 v{208+2*i}, v{208+2*i}, v216")
                    r(f"v_add_f32 v{209+2*i}, v{209+2*i}, v217")
        r("s_lshl_b32 s48, s20, 11")
        r(f"s_add_u32 s48, s48, {LDS_X}")
        r("v_lshlrev_b32 v16, 9, v3")
        r("v_lshl_add_u32 v16, v2, 5, v16")
        r("v_add_u32 v16, s48, v16")
        r.f(lambda: a.ds("ds_write_b128 v16, v[208:211]", "csw"))
        r.f(lambda: a.ds("ds_write_b128 v16, v[212:215] offset:16", "csw"))
        return r.ops
    def cs_ops2():
        r = Rec(a)
        r("v_and_b32 v16, 127, v0")
        r("v_lshrrev_b32 v17, 7, v0")
        r("v_lshlrev_b32 v18, 12, v17")
        r("v_lshl_add_u32 v18, v16, 2, v18")
        r(f"v_add_u32 v19, {LDS_X}, v18")
        for q in range(8): r.f(lambda q=q: a.ds(f"ds_read_b32 v{192+q}, v19 offset:{512*q}", "csr"))
        r("s_lshl_b32 s48, s42, 14")
        r("s_lshl_b32 s49, s44, 9")
        r("s_add_u32 s48, s48, s49")
        r(f"s_add_u32 s48, s48, {WS_CS1}")
        for _ in range(4): r("s_nop 0")
        r.f(lambda: a.wait_lgkm("csr"))
        for q in range(1, 8): r(f"v_add_f32 v192, v192, v{192+q}")
        r.f(lambda: a.vmem("buffer_store_dword v192, v18, s[16:19], s48 offen sc1", "dst"))
        return r.ops

    def poll_issue():
        lab = a.newlabel("np1")
        a("v_mov_b32 v16, 0")
        a("s_cmp_lg_u32 s20, 0")
        a(f"s_cbranch_scc1 {lab}")
        a("buffer_load_dword v27, v16, s[64:67], 0 offen" + ("" if os.environ.get("PLAIN1", "0") == "1" else " sc1"))
        a.label(lab)
    def poll_check():
        lab = a.newlabel("poll"); ok = a.newlabel("pollok")
        a("s_cmp_lg_u32 s20, 0")
        a(f"s_cbranch_scc1 {ok}")
        a("s_waitcnt vmcnt(6)")
        a("s_mov_b32 s49, 0")
        a.label(lab)
        a("v_readfirstlane_b32 s48, v27")
        a(f"s_cmp_ge_u32 s48, {NSIG}")
        a(f"s_cbranch_scc1 {ok}")
        a("s_add_u32 s49, s49, 1")
        a(f"s_cmp_ge_u32 s49, {1 << 22}")
        a(f"s_cbranch_scc1 {ok}")
        a("s_sleep 4")
        a("buffer_load_dword v27, v16, s[64:67], 0 offen sc1")
        a("s_waitcnt vmcnt(0)")
        a(f"s_branch {lab}")
        a.label(ok)
    PFW = os.environ.get("PFW", "none")
    PFR = int(os.environ.get("PFR", "256"))
    def wq_pf(kind):
        a(f"s_add_u32 s94, s47, {kind*64}")
        a("s_lshl_b32 s94, s94, 3")
        a("s_add_u32 s94, s94, s20")
        a("s_lshl_b32 s94, s94, 12")
        a(f"s_add_u32 s94, s94, {PFR*6144}")
        a("v_lshlrev_b32 v27, 6, v1")
        a.vmem("buffer_load_dword v28, v27, s[12:15], s94 offen", "pf")
    for role in ("S",):
        if role == "P": a.label("L_k1_roleP")
        a.vm = []; a.lgkm = []
        THREE = os.environ.get("THREE", "0") == "1"
        Core16(a, "row", role=role, krot=bool(KROT)).prologue_dma(three=THREE)
        vm0 = list(a.vm)
        srd(a, 16, 62, WS_SIZE)
        srd(a, 64, 60, 256)
        a("s_cmp_lg_u32 s20, 7")
        a("s_cbranch_scc1 L_k1_nozero")
        a("s_lshl_b32 s48, s2, 8")
        a(f"s_add_u32 s48, s48, {WS_FLAG}")
        a("v_lshlrev_b32 v16, 2, v1")
        a("v_mov_b32 v17, 0")
        a("buffer_store_dword v17, v16, s[16:19], s48 offen sc1")
        a.label("L_k1_nozero")
        for k in (1, 2, 3):
            a(f"s_cmp_eq_u32 s43, {k}")
            a(f"s_cbranch_scc1 L_k1_p{k}{role}")
        for kind in range(4):
            if kind: a.label(f"L_k1_p{kind}{role}")
            a.vm = list(vm0); a.lgkm = []
            core = Core16(a, "row", swap=(kind == 2), tag=f"k1{kind}", role=role, krot=bool(KROT))
            hk = dict(start=lambda: stamp(a, 3), after0=lambda: stamp(a, 4), pre_tail=lambda: stamp(a, 5))
            if kind < 3 and PFW != "none":
                prev = hk[PFW]
                hk[PFW] = (lambda prev=prev, kind=kind: (prev(), wq_pf(kind)))
            ND = os.environ.get("NODUTY", "")
            if kind == 0:
                cs_loads()
                hk.update(spread2=cs_ops1, spread3=cs_ops2, prebar5=["dst"], after5=signal)
                if "v" in ND: hk.pop("spread2"); hk.pop("spread3")
                if "d" in ND: hk.pop("prebar5")
                if single: hk.update(end12=poll_issue, end13=poll_check)
                core.mainloop(hooks=hk, npeel=6, ntail=(2 if single else 0), three=THREE)
            elif kind in (1, 2):
                rs_loads(kind)
                NSP = 4
                D0 = int(os.environ.get("DUTY0", "2"))
                parts = rs_ops().split(NSP)
                for i in range(NSP): hk[f"spread{D0+i}"] = (lambda i=i: parts[i])
                SG = int(os.environ.get("DUTYSIG", "7"))
                hk.update({f"prebar{SG}": ["dst"], f"after{SG}": signal})
                if single: hk.update(end12=poll_issue, end13=poll_check)
                core.mainloop(hooks=hk, npeel=8, ntail=(2 if single else 0), three=THREE)
            else:
                def stat_loads():
                    r = Rec(a)
                    r("s_lshl_b32 s48, s21, 6", "s_add_u32 s48, s48, s46", "s_lshl_b32 s48, s48, 3", f"s_add_u32 s48, s48, {WS_ST}")
                    r("v_lshlrev_b32 v16, 3, v2")
                    for tt in range(4):
                        r.f(lambda tt=tt: a.vmem(f"buffer_load_dwordx2 v[{208+2*tt}:{209+2*tt}], v16, s[16:19], s48 offen offset:{128*tt} sc1", "stat"))
                    r("v_and_b32 v17, 127, v0")
                    r("v_lshrrev_b32 v18, 7, v0")
                    r("v_lshlrev_b32 v19, 15, v18")
                    r("v_lshl_add_u32 v19, v17, 2, v19")
                    r("s_lshl_b32 s49, s44, 9", f"s_add_u32 s49, s49, {WS_CS1}")
                    for kb in range(8):
                        r.f(lambda kb=kb: (a.vmem(f"buffer_load_dword v{216+kb}, v19, s[16:19], s49 offen sc1", "csp"), a("s_add_u32 s49, s49, 4096")))
                    return r.ops
                def red1():
                    r = Rec(a)
                    r("s_lshr_b32 s48, s44, 1", "s_lshr_b32 s49, s48, 1", "s_add_u32 s49, s49, 1", "s_sub_u32 s50, 0, s49", "s_and_b32 s48, s48, 1",
                      "s_cmp_eq_u32 s48, 0", "s_cselect_b32 s49, s49, s50", "s_lshl_b32 s48, s21, 6", "s_add_u32 s48, s48, s46", "s_add_u32 s48, s48, s49")
                    for tt in range(4):
                        v = 28 + tt
                        r(f"v_add_u32 v16, s48, v2")
                        if tt: r(f"v_add_u32 v16, {16*tt}, v16")
                        r(f"v_mov_b32 v18, 2048")
                        r(f"v_cmp_lt_u32 s[{50+2*tt}:{51+2*tt}], v16, v18")
                        r("v_and_b32 v16, 2047, v16")
                        r("v_lshrrev_b32 v17, 5, v16")
                        r("v_lshlrev_b32 v17, 16, v17")
                        r("v_bfe_u32 v18, v16, 4, 1")
                        r("v_lshl_add_u32 v17, v18, 11, v17")
                        r("v_and_b32 v18, 15, v16")
                        r("v_lshl_add_u32 v17, v18, 4, v17")
                        r(f"v_lshl_add_u32 v{v}, v3, 8, v17")
                    r.f(lambda: a.wait_vm("csp"))
                    for kb in range(1, 8): r(f"v_add_f32 v216, v216, v{216+kb}")
                    r("v_lshlrev_b32 v19, 2, v0")
                    r(f"v_add_u32 v19, {LDS_X + 1024}, v19")
                    r.f(lambda: a.ds("ds_write_b32 v19, v216", "rw"))
                    return r.ops
                def red2():
                    r = Rec(a)
                    r("s_lshl_b32 s49, s22, 8", f"s_add_u32 s49, s49, {LDS_X + 1024}")
                    r("v_lshl_add_u32 v19, v1, 2, s49")
                    for g in range(4): r.f(lambda g=g: a.ds(f"ds_read_b32 v{216+g}, v19 offset:{512*g}", "rr"))
                    r("s_lshl_b32 s48, s44, 1", "s_add_u32 s48, s48, s22", "s_lshl_b32 s48, s48, 12", f"s_add_u32 s48, s48, {WS_HS}")
                    for _ in range(4): r("s_nop 0")
                    r.f(lambda: a.wait_lgkm("rr"))
                    r("v_add_f32 v216, v216, v217")
                    r("v_add_f32 v218, v218, v219")
                    r("v_add_f32 v216, v216, v218")
                    r("v_subrev_u32 v19, 1024, v19")
                    r.f(lambda: a.ds("ds_write_b32 v19, v216", "rw2"))
                    for _ in range(4): r("s_nop 0")
                    r.f(lambda: a.wait_lgkm("rw2"))
                    r("s_lshl_b32 s49, s22, 8", f"s_add_u32 s49, s49, {LDS_X}")
                    r("v_lshl_add_u32 v16, v3, 4, s49")
                    for c in range(4): r.f(lambda c=c: a.ds(f"ds_read_b128 v[{192+4*c}:{195+4*c}], v16 offset:{64*c}", "cs"))
                    return r.ops
                def w2pf():
                    srd(a, 68, 38, 2 * MB)
                    a("s_lshl_b32 s48, s47, 3")
                    a("s_add_u32 s48, s48, s20")
                    a("s_lshl_b32 s48, s48, 12")
                    a("v_lshlrev_b32 v27, 6, v1")
                    a("buffer_load_dword v28, v27, s[68:71], s48 offen")
                hk.update(after1=w2pf, end10=poll_issue, end11=poll_check, spread12=stat_loads, spreadN2=red1, spreadN1=red2)
                if single: hk.update(prebar3=["x"], after3=signal)
                core.mainloop(hooks=hk, npeel=(4 if single else 2), ntail=4, three=THREE)
            a(f"s_branch L_k1_ep{kind}")
    for kind in range(3):
        a.label(f"L_k1_ep{kind}")
        stamp(a, 6)
        hsh, tsh = (17, 11) if kind == 0 else (18, 12)
        base = WS_Q if kind == 0 else (WS_KV + (2048 if kind == 2 else 0))
        a("s_lshl_b32 s48, s44, 2")
        a("s_lshl_b32 s49, s22, 1")
        a("s_add_u32 s48, s48, s49")
        a(f"s_lshl_b32 s48, s48, {hsh}")
        a("s_lshl_b32 s49, s42, 3")
        a("s_lshl_b32 s50, s21, 1")
        a("s_add_u32 s49, s49, s50")
        a(f"s_lshl_b32 s49, s49, {tsh}")
        a("s_add_u32 s48, s48, s49")
        a(f"s_add_u32 s48, s48, {base}")
        a("v_lshrrev_b32 v16, 3, v2")
        a(f"v_lshlrev_b32 v16, {7 if kind == 0 else 8}, v16")
        a("v_and_b32 v17, 7, v2")
        a("v_lshl_add_u32 v16, v17, 4, v16")
        a("v_lshl_add_u32 v16, v3, 9, v16")
        if kind == 0:
            a(f"v_mov_b32 v18, {f2u(QSCALE)}"); a(f"v_mov_b32 v19, {f2u(QSCALE)}")
        n = 0
        for p in range(2):
            for o in range(4):
                t = 128 + 4 * n; n += 1
                if kind == 2:
                    c, pp = (n - 1) // 2, (n - 1) % 2
                    d0, d1 = acc(2 * pp, c), acc(2 * pp + 1, c)
                    soff = (c >> 1) * (1 << hsh) + pp * (1 << tsh); imm = (c & 1) * 128
                else:
                    d0, d1 = acc(o, 2 * p), acc(o, 2 * p + 1)
                    soff = (o >> 1) * (1 << tsh) + p * (1 << hsh); imm = (o & 1) * (256 if kind == 0 else 128)
                if kind == 0:
                    for d in (d0, d0 + 2, d1, d1 + 2):
                        a(f"v_pk_mul_f32 v[{d}:{d+1}], v[{d}:{d+1}], v[18:19]")
                a(f"v_cvt_pk_bf16_f32 v{t}, v{d0}, v{d0+1}")
                a(f"v_cvt_pk_bf16_f32 v{t+1}, v{d0+2}, v{d0+3}")
                a(f"v_cvt_pk_bf16_f32 v{t+2}, v{d1}, v{d1+1}")
                a(f"v_cvt_pk_bf16_f32 v{t+3}, v{d1+2}, v{d1+3}")
                a(f"s_add_u32 s49, s48, {soff}")
                a(f"buffer_store_dwordx4 v[{t}:{t+3}], v16, s[16:19], s49 offen offset:{imm} {ST_FLAG}")
        a("s_branch L_k1_fin")
    a.label("L_k1_ep3")
    a.vm = []; a.lgkm = []
    stamp(a, 6)
    masks = [f"s[{50+2*tt}:{51+2*tt}]" for tt in range(4)]
    a("s_waitcnt vmcnt(0) lgkmcnt(0)")
    ln_gelu_epilogue(a, 48, 1024, [28, 29, 30, 31], masks, [(208 + 2 * t, 209 + 2 * t) for t in range(4)], "regs")
    a.label("L_k1_fin")
    if single: return
    if gen2.STAMP: a("s_waitcnt vmcnt(0)")
    stamp(a, 7); stamp_dump(a, 8, 0)
    a.label("L_k1_end")
    a("s_endpgm")
    return name, a.text(), dict(grid=256, block=512, lds=163840, vgpr=232)
```
